```python
import torch

def _softmax(x, axis=-1):
    return torch.softmax(x, dim=axis)
def _gelu(x):
    return torch.nn.functional.gelu(x, approximate="tanh")
def _silu(x):
    return torch.nn.functional.silu(x)
def _sigmoid(x):
    return torch.sigmoid(x)
def _layernorm(x, axis=-1, eps=1e-5):
    m = x.mean(dim=axis, keepdim=True)
    v = x.var(dim=axis, keepdim=True, unbiased=False)
    return (x - m) / torch.sqrt(v + eps)
def _scatter_add(tgt, idx, src, axis=0):
    return tgt.clone().index_add_(axis, idx, src)
def _segment_sum(src, seg, n):
    out = torch.zeros((n,) + src.shape[1:], dtype=src.dtype)
    return out.index_add_(0, seg, src)
def _pad(x, pw):
    flat = tuple(v for pair in reversed(pw) for v in pair)
    return torch.nn.functional.pad(x, flat)

kernel_name = 'sequential_preLN__mha_block_cached__dense_activation_relu__decode'

def setup_inputs():

    _w = (lambda a: (lambda t: t.to(torch.bfloat16) if t.is_floating_point() else t)(torch.as_tensor(a)))
    def _A_setup():
        B, Sq, D = 1, 1, 640
        H, Sk, Dh = 32, 32768, 192
        return {
            "x": _w((lambda *s: torch.randn(*s, dtype=torch.bfloat16) * 0.05)(B, Sq, D)),
            "k_cache": _w((lambda *s: torch.randn(*s, dtype=torch.bfloat16) * 3.2)(B, H, Sk, Dh)),
            "v_cache": _w((lambda *s: torch.randn(*s, dtype=torch.bfloat16) * 0.4)(B, H, Sk, Dh)),
            "wq": _w((lambda *s: torch.randn(*s, dtype=torch.bfloat16) * 3.2)(D, H * Dh) * (D ** -0.5)),
            "wo": _w((lambda *s: torch.randn(*s, dtype=torch.bfloat16) * 0.4)(H * Dh, D) * ((H * Dh) ** -0.5)),
        }
    _A_in = _A_setup()

    def _B_setup():
        B, S, D, Dff = 1, 1, 640, 1536
        return {
            "x": _w((lambda *s: torch.randn(*s, dtype=torch.bfloat16) * 0.05)(B, S, D)),
            "w1": _w((lambda *s: torch.randn(*s, dtype=torch.bfloat16) * 0.05)(D, Dff)),
            "w2": _w((lambda *s: torch.randn(*s, dtype=torch.bfloat16) * 0.05)(Dff, D)),
        }
    _B_in = _B_setup()

    return {
        "A_x": _A_in["x"],
        "A_k_cache": _A_in["k_cache"],
        "A_v_cache": _A_in["v_cache"],
        "A_wq": _A_in["wq"],
        "A_wo": _A_in["wo"],
        "B_x": _B_in["x"],
        "B_w1": _B_in["w1"],
        "B_w2": _B_in["w2"],
    }

def reference(A_x, A_k_cache, A_v_cache, A_wq, A_wo, B_x, B_w1, B_w2):
    def _A_ref(x, k_cache, v_cache, wq, wo):
        B, Sq, D = x.shape
        H, Dh = 32, 192
        q = (lambda x, *d: x.permute(*d))((x @ wq).reshape(B, Sq, H, Dh), 0, 2, 1, 3)
        scores = torch.einsum("bhqd,bhkd->bhqk", q, k_cache) * (Dh ** -0.5)
        p = _softmax(scores, axis=-1)
        o = torch.einsum("bhqk,bhkd->bhqd", p, v_cache)
        return (lambda x, *d: x.permute(*d))(o, 0, 2, 1, 3).reshape(B, Sq, H * Dh) @ wo

    def _B_ref(x, w1, w2):
        h = torch.einsum("bsd,df->bsf", x, w1)
        zero = torch.zeros_like(h)
        h = torch.maximum(h, zero)
        return torch.einsum("bsf,fd->bsd", h, w2)

    x = A_x
    h = x + _A_ref(_layernorm(x, axis=-1), A_k_cache, A_v_cache, A_wq, A_wo)
    h2 = h + _B_ref(_layernorm(h, axis=-1), B_w1, B_w2)
    return h2
```

```python
import sys, json

KNAME = "sequential_preLN__mha_block_cached__dense_activation_relu__decode_kernel"

HEADER = """; Kernarg layout for this problem (88 bytes, ptrs only, base s[0:1]):
"""

QP = 0x000000
OP = 0x040000
YP = 0x080000
FP = 0x090000
CT = 0x0D0000
ST = 0x100000
WS_REC = 0x200000

MISC = 0
WGT = 0x3000
RING = 0xF000
QV = MISC
XO = MISC + 0x200
OV = MISC + 0x1200
XY = MISC + 0x1A00
HV = MISC + 0x1C00
XS = MISC + 0x2200
XN = MISC + 0x2300
XH = MISC + 0x2900
XF = MISC + 0x2A00
LDS_BYTES = RING + 0x18000

SCALE = 0x3d93cd3a
LOG2E = 0x3fb8aa3b
EPS = 0x3727c5ac
R640 = 0x3acccccd
R160 = 0x3bcccccd
HEAD_BYTES = 12582912
CB = 12288


class G:
    def __init__(self):
        self.L = []
        self.nlabel = 0

    def a(self, s):
        self.L.append("  " + s)

    def lab(self, s):
        self.L.append(s + ":")

    def c(self, s):
        self.L.append("  ; " + s)

    def newlab(self, p):
        self.nlabel += 1
        return f"L_{p}{self.nlabel}"

    def nop(self, n):
        while n > 0:
            k = min(n, 16)
            self.a(f"s_nop {k-1}")
            n -= k


def vr(b, n=1):
    return f"v{b}" if n == 1 else f"v[{b}:{b+n-1}]"


def sr(b, n=1):
    return f"s{b}" if n == 1 else f"s[{b}:{b+n-1}]"


def gen(name=KNAME, kvflags="nt", wflags="", qflags="nt", nstat=24, dyn=1, rot=1, diag=0, bound=1 << 20,
        sleep=1):
    g = G()
    a, lab, c, nop = g.a, g.lab, g.c, g.nop
    pX, pK, pV, pWQ, pWO, pW1, pW2, pOUT, pDBG, pWS = 4, 6, 8, 10, 12, 16, 18, 20, 22, 24
    rK, rV, rWS, rWQ, rX, rDBG, rWA, rWB, rOUT = 28, 32, 36, 40, 44, 48, 52, 56, 60
    sW, sH, sM, sR, sRow, sRole, sF = 64, 65, 66, 67, 68, 69, 70
    sT0, sT1, sT2, sT3 = 71, 72, 73, 74
    sMK, sMV = 75, 78
    sOff, sCnt, sBound, sChunk = 81, 82, 83, 84
    sEx = 86
    sLog, sSc = 88, 89
    sStamp = 90
    sTm = 100
    vLane, vDMA, vKA, vVA, vG, vT = 1, 2, 3, 4, 5, 6
    vML, vL, vTk, vCa = 16, 17, 18, 19
    vXF = 20
    vS = 24
    vP = 32
    vE = 36
    vQ = 44
    vF = 68
    vACC = 116
    vU = 164
    vWF = 212
    NV = 216

    nst = [0]

    def stamp():
        if not diag:
            return
        i = nst[0]
        nst[0] += 1
        assert i < 10
        a(f"s_memrealtime {sr(sTm,2)}")
        a("s_waitcnt lgkmcnt(0)")
        a(f"s_mov_b32 s{sStamp+i}, s{sTm}")

    def srd(d, p, n, addlo=None):
        if addlo is None:
            a(f"s_mov_b32 s{d}, s{p}")
            a(f"s_and_b32 s{d+1}, s{p+1}, 0xffff")
        else:
            a(f"s_add_u32 s{d}, s{p}, s{addlo}")
            a(f"s_addc_u32 s{d+1}, s{p+1}, 0")
            a(f"s_and_b32 s{d+1}, s{d+1}, 0xffff")
        a(f"s_mov_b32 s{d+2}, {n}")
        a(f"s_mov_b32 s{d+3}, 0x20000")

    def exec_first(n):
        a(f"s_bfm_b64 exec, {n}, 0")

    def exec_all():
        a("s_mov_b64 exec, -1")

    def exec_n0():
        a("s_mov_b32 exec_lo, 0x00010001")
        a("s_mov_b32 exec_hi, 0x00010001")

    def allreduce(op, regs, tmps):
        pad = max(0, 2 - (len(regs) - 1))
        nop(2)
        for rr in (8, 4, 2, 1):
            for r in regs:
                a(f"{op}_dpp v{r}, v{r}, v{r} row_ror:{rr} row_mask:0xf bank_mask:0xf")
            nop(pad)
        xgroup(op, regs, tmps)

    def xgroup(op, regs, tmps):
        for sw in ("v_permlane16_swap_b32", "v_permlane32_swap_b32"):
            for r, t in zip(regs, tmps):
                a(f"v_mov_b32 v{t}, v{r}")
            nop(2)
            for r, t in zip(regs, tmps):
                a(f"{sw} v{r}, v{t}")
            for r, t in zip(regs, tmps):
                a(f"{op} v{r}, v{r}, v{t}")

    def unpack(src, lo, hi):
        a(f"v_lshlrev_b32 v{lo}, 16, v{src}")
        a(f"v_and_b32 v{hi}, 0xffff0000, v{src}")

    def round_bf16(r, t):
        a(f"v_cvt_pk_bf16_f32 v{t}, v{r}, v{r}")
        a(f"v_and_b32 v{r}, 0xffff0000, v{t}")

    def ln_finish(vMean, vVar, vRcp, t):
        round_bf16(vMean, t)
        round_bf16(vVar, t)
        a(f"v_add_f32 v{vVar}, {EPS:#x}, v{vVar}")
        round_bf16(vVar, t)
        a(f"v_sqrt_f32 v{vVar}, v{vVar}")
        nop(1)
        round_bf16(vVar, t)
        a(f"v_rcp_f32 v{vRcp}, v{vVar}")
        nop(1)

    def normalise_pair(src, dst, vMean, vDen, vRcp, t):
        unpack(src, t, t + 1)
        a(f"v_sub_f32 v{t}, v{t}, v{vMean}")
        a(f"v_sub_f32 v{t+1}, v{t+1}, v{vMean}")
        a(f"v_cvt_pk_bf16_f32 v{dst}, v{t}, v{t+1}")
        unpack(dst, t, t + 1)
        for k in (0, 1):
            a(f"v_mul_f32 v{t+2+k}, v{t+k}, v{vRcp}")
        for k in (0, 1):
            a(f"v_fma_f32 v{t+k}, -v{t+2+k}, v{vDen}, v{t+k}")
        for k in (0, 1):
            a(f"v_fma_f32 v{t+2+k}, v{t+k}, v{vRcp}, v{t+2+k}")
        a(f"v_cvt_pk_bf16_f32 v{dst}, v{t+2}, v{t+3}")

    def any_marker(regs, t):
        regs = list(regs)
        a(f"v_max3_u32 v{t}, v{regs[0]}, v{regs[1]}, v{regs[2]}")
        regs = regs[3:]
        while len(regs) >= 2:
            a(f"v_max3_u32 v{t}, v{t}, v{regs[0]}, v{regs[1]}")
            regs = regs[2:]
        if regs:
            a(f"v_max_u32 v{t}, v{t}, v{regs[0]}")
        a(f"v_cmp_eq_u32 vcc, -1, v{t}")

    def poll(loads, regs, t, pre_wait=0):
        top, done = g.newlab("poll"), g.newlab("got")
        a(f"s_mov_b32 s{sBound}, {bound}")
        lab(top)
        loads()
        a("s_waitcnt vmcnt(0)")
        any_marker(regs, t)
        nop(1)
        a(f"s_cbranch_vccz {done}")
        if sleep:
            a(f"s_sleep {sleep}")
        a(f"s_sub_u32 s{sBound}, s{sBound}, 1")
        a(f"s_cmp_lg_u32 s{sBound}, 0")
        a(f"s_cbranch_scc1 {top}")
        a("s_branch L_end")
        lab(done)

    def issue_chunk(r, m0base):
        for j in range(3):
            a(f"s_mov_b32 m0, s{m0base+j}")
            if j == 0:
                a(f"s_mov_b32 s{sT0}, s{sOff}")
            else:
                a(f"s_add_u32 s{sT0}, s{sOff}, {4096*j}")
            for k in range(4):
                a(f"buffer_load_dwordx4 v{vDMA}, {sr(r,4)}, s{sT0} offen offset:{1024*k} {kvflags} lds")

    c("---------------- entry ----------------")
    a("s_cmp_ge_u32 s2, 256")
    a("s_cbranch_scc1 L_end")
    if diag:
        a(f"s_memrealtime {sr(sTm,2)}")
    a("s_load_dwordx16 s[4:19], s[0:1], 0")
    a("s_load_dwordx4 s[20:23], s[0:1], 64")
    a("s_load_dwordx2 s[24:25], s[0:1], 80")
    a(f"v_lshrrev_b32 v{vT}, 6, v0")
    a(f"v_and_b32 v{vLane}, 63, v0")
    a(f"v_readfirstlane_b32 s{sW}, v{vT}")
    a(f"v_lshlrev_b32 v{vDMA}, 4, v{vLane}")
    a(f"v_lshrrev_b32 v{vG}, 4, v{vLane}")
    a(f"s_and_b32 s{sM}, s2, 7")
    a(f"s_lshr_b32 s{sR}, s2, 3")
    a(f"s_mul_i32 s{sT0}, s{sM}, {rot}")
    a(f"s_add_u32 s{sH}, s{sR}, s{sT0}")
    a(f"s_and_b32 s{sH}, s{sH}, 31")
    a(f"s_lshl_b32 s{sRow}, s{sH}, 3")
    a(f"s_add_u32 s{sRow}, s{sRow}, s{sM}")
    a(f"s_mul_i32 s{sF}, s{sM}, 12")
    a(f"s_add_u32 s{sF}, s{sF}, s{sR}")
    a(f"s_sub_u32 s{sF}, s{sF}, 20")
    vWQ = vU
    for b in range(3):
        a(f"v_add_u32 v{vT}, {64*b}, v{vLane}")
        a(f"v_mul_u32_u24 v{vT}, 2731, v{vT}")
        a(f"v_lshrrev_b32 v{vT}, 16, v{vT}")
        a(f"v_mul_u32_u24 v{vT}, 11904, v{vT}")
        a(f"v_add_u32 v{vWQ+b}, v{vT}, v{vDMA}")
    vXA, vXB = vU + 3, vU + 4
    a(f"v_lshlrev_b32 v{vXA}, 2, v{vLane}")
    a(f"s_mul_i32 s{sT1}, s{sM}, 160")
    a(f"v_lshl_add_u32 v{vXB}, v{vG}, 3, s{sT1}")
    a("s_waitcnt lgkmcnt(0)")
    if diag:
        a(f"s_mov_b32 s{sStamp}, s{sTm}")
        nst[0] = 1
    srd(rX, pX, 1280)
    srd(rWS, pWS, WS_REC)
    srd(rDBG, pDBG, 256)
    a(f"s_mul_i32 s{sT0}, s{sM}, {80*12288}")
    a(f"s_mul_i32 s{sT2}, s{sH}, 384")
    a(f"s_add_u32 s{sT0}, s{sT0}, s{sT2}")
    srd(rWQ, pWQ, 79 * 12288 + 384, addlo=sT0)
    vXS = vU + 8
    vXL = vU + 14
    for i in range(5):
        a(f"buffer_load_dword v{vXS+i}, v{vXA}, {sr(rX,4)}, 0 offen offset:{256*i}")
    for b in range(5):
        a(f"buffer_load_dwordx2 {vr(vXL+2*b,2)}, v{vXB}, {sr(rX,4)}, 0 offen offset:{32*b}")
    a(f"s_lshl_b32 s{sRow}, s{sRow}, 10")
    lw3, lwq_done = "L_w3", "L_wq_done"
    a(f"s_cmp_eq_u32 s{sW}, 3")
    a(f"s_cbranch_scc1 {lw3}")
    c("waves 0..2: wq slice (80 rows x 384 B) -> LDS WGT")

    def wq_group(sidx):
        a(f"s_mul_i32 s{sT0}, s{sidx}, 3072")
        a(f"s_add_u32 m0, s{sT0}, {WGT}")
        a(f"s_mul_i32 s{sT0}, s{sidx}, {8*12288}")
        for b in range(3):
            a(f"buffer_load_dwordx4 v{vWQ+b}, {sr(rWQ,4)}, s{sT0} offen offset:{1024*b} {qflags} lds")
    a(f"s_mov_b32 s{sT1}, s{sW}")
    for k in range(3):
        wq_group(sT1)
        a(f"s_add_u32 s{sT1}, s{sT1}, 3")
    a(f"s_cmp_lg_u32 s{sW}, 0")
    a(f"s_cbranch_scc1 {lwq_done}")
    wq_group(sT1)
    a(f"s_branch {lwq_done}")
    lab(lw3)
    c("wave 3: mark this workgroup's hand-off slots empty, reset a ticket counter, then raise the flag")
    for k in range(4):
        a(f"v_mov_b32 v{vT+k}, -1")
    a(f"v_mov_b32 v{vT+4}, 0")
    exec_first(48)
    a(f"buffer_store_dwordx4 {vr(vT,4)}, v{vDMA}, {sr(rWS,4)}, s{sRow} offen offset:{QP} sc1")
    exec_first(49)
    a(f"s_add_u32 s{sT0}, s{sRow}, {OP}")
    a(f"buffer_store_dwordx4 {vr(vT,4)}, v{vDMA}, {sr(rWS,4)}, s{sT0} offen sc1")
    a(f"s_cmp_ge_u32 s{sR}, 20")
    a("s_cbranch_scc1 L_clr_ffn")
    exec_first(8)
    a(f"s_mul_i32 s{sT0}, s{sM}, 2560")
    a(f"s_lshl_b32 s{sT1}, s{sR}, 7")
    a(f"s_add_u32 s{sT0}, s{sT0}, s{sT1}")
    a(f"s_add_u32 s{sT0}, s{sT0}, {YP}")
    a(f"buffer_store_dwordx4 {vr(vT,4)}, v{vDMA}, {sr(rWS,4)}, s{sT0} offen sc1")
    a("s_branch L_clr_ct")
    lab("L_clr_ffn")
    exec_all()
    a(f"s_mul_i32 s{sT0}, s{sF}, 2560")
    a(f"s_add_u32 s{sT0}, s{sT0}, {FP}")
    a(f"buffer_store_dwordx4 {vr(vT,4)}, v{vDMA}, {sr(rWS,4)}, s{sT0} offen sc1")
    a(f"buffer_store_dwordx4 {vr(vT,4)}, v{vDMA}, {sr(rWS,4)}, s{sT0} offen offset:1024 sc1")
    exec_first(32)
    a(f"buffer_store_dwordx4 {vr(vT,4)}, v{vDMA}, {sr(rWS,4)}, s{sT0} offen offset:2048 sc1")
    lab("L_clr_ct")
    exec_first(1)
    a(f"s_cmp_ge_u32 s{sM}, 4")
    a("s_cbranch_scc1 L_clr_flag")
    a(f"s_lshl_b32 s{sT0}, s{sH}, 2")
    a(f"s_add_u32 s{sT0}, s{sT0}, s{sM}")
    a(f"s_lshl_b32 s{sT0}, s{sT0}, 8")
    a(f"s_add_u32 s{sT0}, s{sT0}, {CT}")
    a(f"buffer_store_dword v{vT+4}, v{vDMA}, {sr(rWS,4)}, s{sT0} offen sc1")
    lab("L_clr_flag")
    a(f"v_mov_b32 v{vT+5}, 1")
    a("s_waitcnt vmcnt(0)")
    a(f"buffer_store_byte v{vT+5}, v{vDMA}, {sr(rDBG,4)}, s2 offen sc1")
    exec_all()
    lab(lwq_done)

    c("K / V descriptors and first chunk")
    a(f"s_mul_i32 s{sT1}, s{sH}, {HEAD_BYTES}")
    srd(rK, pK, HEAD_BYTES, addlo=sT1)
    srd(rV, pV, HEAD_BYTES, addlo=sT1)
    a(f"s_mul_i32 s{sT0}, s{sW}, {2*CB}")
    for j in range(3):
        a(f"s_add_u32 s{sMK+j}, s{sT0}, {RING + 4096*j}")
        a(f"s_add_u32 s{sMV+j}, s{sT0}, {RING + CB + 4096*j}")
    a(f"v_and_b32 v{vT}, 15, v{vLane}")
    a(f"v_mul_u32_u24 v{vT}, 384, v{vT}")
    a(f"v_lshl_add_u32 v{vT}, v{vG}, 4, v{vT}")
    a(f"v_add_u32 v{vKA}, s{sMK}, v{vT}")
    vTR0, vTR1 = vU + 5, vU + 6
    a(f"v_lshrrev_b32 v{vTR0}, 2, v{vLane}")
    a(f"v_and_b32 v{vTR1}, 3, v{vLane}")
    a(f"v_lshlrev_b32 v{vTR1}, 3, v{vTR1}")
    a(f"v_mul_u32_u24 v{vT}, 384, v{vTR0}")
    a(f"v_add_u32 v{vT}, v{vT}, v{vTR1}")
    a(f"v_add_u32 v{vVA}, s{sMV}, v{vT}")
    vWA = vU + 7
    a(f"v_add_u32 v{vWA}, {WGT}, v{vT}")
    nst_ = nstat if dyn else 32
    a(f"s_lshl_b32 s{sChunk}, s{sW}, 8")
    a(f"s_mul_i32 s{sT0}, s{sM}, {nst_}")
    a(f"s_add_u32 s{sChunk}, s{sChunk}, s{sT0}")
    a(f"s_mul_i32 s{sOff}, s{sChunk}, {CB}")
    issue_chunk(rK, sMK)
    issue_chunk(rV, sMV)
    a(f"s_lshl_b32 s{sT0}, s{sH}, 2")
    a(f"s_add_u32 s{sT0}, s{sT0}, s{sW}")
    a(f"s_lshl_b32 s{sT0}, s{sT0}, 8")
    a(f"s_add_u32 s{sT0}, s{sT0}, {CT}")
    a(f"v_mov_b32 v{vCa}, s{sT0}")
    a(f"s_mov_b32 s{sLog}, {LOG2E:#x}")
    a(f"s_mov_b32 s{sSc}, {SCALE:#x}")

    c("---------------- layernorm of x ----------------")
    a("s_waitcnt vmcnt(33)")
    vA0 = vE
    for i in range(5):
        unpack(vXS + i, vA0 + 2 * i, vA0 + 2 * i + 1)
    vMean, vVar, vRcp = vT, vT + 1, vT + 2
    a(f"v_add_f32 v{vMean}, v{vA0}, v{vA0+1}")
    for i in range(2, 10):
        a(f"v_add_f32 v{vMean}, v{vMean}, v{vA0+i}")
    allreduce("v_add_f32", [vMean], [vT + 3])
    a(f"v_mul_f32 v{vMean}, {R640:#x}, v{vMean}")
    for i in range(10):
        a(f"v_sub_f32 v{vA0+i}, v{vA0+i}, v{vMean}")
    a(f"v_mul_f32 v{vVar}, v{vA0}, v{vA0}")
    for i in range(1, 10):
        a(f"v_fmac_f32 v{vVar}, v{vA0+i}, v{vA0+i}")
    allreduce("v_add_f32", [vVar], [vT + 3])
    a(f"v_mul_f32 v{vVar}, {R640:#x}, v{vVar}")
    ln_finish(vMean, vVar, vRcp, vT + 3)
    for i in range(10):
        normalise_pair(vXL + i, vXL + i, vMean, vVar, vRcp, vT + 4)
    stamp()
    a("s_waitcnt vmcnt(24)")
    a("s_barrier")
    stamp()
    c("---------------- q partial: 80 rows x 3 column tiles per wave ----------------")
    a(f"s_mul_i32 s{sT0}, s{sW}, 96")
    a(f"v_add_u32 v{vWA}, s{sT0}, v{vWA}")
    for t in range(3):
        for b in range(5):
            a(f"ds_read_b64_tr_b16 {vr(vF + 12*t + 2*b, 2)}, v{vWA} offset:{b*6144 + t*32}")
    a("s_waitcnt lgkmcnt(0)")
    vD = vS
    for t in range(3):
        a(f"v_mfma_f32_16x16x32_bf16 {vr(vD+4*t,4)}, {vr(vF+12*t,4)}, {vr(vXL,4)}, 0")
    for t in range(3):
        a(f"v_mfma_f32_16x16x32_bf16 {vr(vD+4*t,4)}, {vr(vF+12*t+4,4)}, {vr(vXL+4,4)}, {vr(vD+4*t,4)}")
    nop(8)
    for t in range(3):
        a(f"v_mfma_f32_16x16x16_bf16 {vr(vD+4*t,4)}, {vr(vF+12*t+8,2)}, {vr(vXL+8,2)}, {vr(vD+4*t,4)}")
    a(f"s_mul_i32 s{sT0}, s{sW}, 192")
    a(f"s_add_u32 s{sT0}, s{sT0}, s{sRow}")
    a(f"v_lshlrev_b32 v{vT}, 4, v{vG}")
    nop(8)
    for r in range(12):
        a(f"v_min_u32 v{vD+r}, 0xfffffffe, v{vD+r}")
    exec_n0()
    for t in range(3):
        a(f"buffer_store_dwordx4 {vr(vD+4*t,4)}, v{vT}, {sr(rWS,4)}, s{sT0} offen offset:{QP + 64*t} sc1")
    exec_all()
    stamp()
    a(f"s_cmp_lg_u32 s{sW}, 3")
    a("s_cbranch_scc1 L_flags_ok")
    c("wave 3: wait until every workgroup has emptied its slots")
    exec_first(16)
    top = "L_flagpoll"
    a(f"s_mov_b32 s{sBound}, {bound}")
    lab(top)
    a(f"buffer_load_dwordx4 {vr(vT,4)}, v{vDMA}, {sr(rDBG,4)}, 0 offen sc1")
    a("s_waitcnt vmcnt(0)")
    a(f"v_and_b32 v{vT}, v{vT}, v{vT+1}")
    a(f"v_and_b32 v{vT+2}, v{vT+2}, v{vT+3}")
    a(f"v_and_b32 v{vT}, v{vT}, v{vT+2}")
    a(f"v_cmp_ne_u32 vcc, 0x01010101, v{vT}")
    nop(1)
    a("s_cbranch_vccz L_flags_seen")
    a("s_sleep 2")
    a(f"s_sub_u32 s{sBound}, s{sBound}, 1")
    a(f"s_cmp_lg_u32 s{sBound}, 0")
    a(f"s_cbranch_scc1 {top}")
    a("s_branch L_end")
    lab("L_flags_seen")
    exec_all()
    lab("L_flags_ok")
    a("s_barrier")
    stamp()
    c("---------------- gather the head's q partials: wave w sums columns 48w..48w+47 ----------------")
    a(f"s_lshl_b32 s{sT1}, s{sH}, 13")
    a(f"s_mul_i32 s{sT0}, s{sW}, 192")
    a(f"s_add_u32 s{sT1}, s{sT1}, s{sT0}")
    a(f"s_add_u32 s{sT2}, s{sT1}, 4096")
    a(f"v_lshlrev_b32 v{vT}, 2, v{vLane}")
    exec_first(48)

    def qloads():
        for m in range(8):
            so = sT1 if m < 4 else sT2
            a(f"buffer_load_dword v{vF+m}, v{vT}, {sr(rWS,4)}, s{so} offen offset:{QP + 1024*(m%4)} sc1")
    poll(qloads, range(vF, vF + 8), vT + 1)
    a(f"v_add_f32 v{vF}, v{vF}, v{vF+1}")
    for m in range(2, 8):
        a(f"v_add_f32 v{vF}, v{vF}, v{vF+m}")
    a(f"v_cvt_pk_bf16_f32 v{vF}, v{vF}, v{vF}")
    a(f"s_mul_i32 s{sT0}, s{sW}, 96")
    a(f"s_add_u32 s{sT0}, s{sT0}, {QV}")
    a(f"v_lshl_add_u32 v{vT}, v{vLane}, 1, s{sT0}")
    a(f"ds_write_b16 v{vT}, v{vF}")
    exec_all()
    a("s_waitcnt lgkmcnt(0)")
    a("s_barrier")
    a(f"v_lshlrev_b32 v{vT}, 4, v{vG}")
    for j in range(6):
        a(f"ds_read_b128 {vr(vQ+4*j,4)}, v{vT} offset:{QV + 64*j}")
    c("---------------- weights of the tail -> LDS WGT (12 loads per wave in both roles) ----------------")
    a(f"s_cmp_ge_u32 s{sR}, 20")
    a("s_cbranch_scc1 L_wffn")
    srd(rWA, pWO, 6144 * 1280)
    a(f"v_mul_u32_u24 v{vT+1}, 1280, v{vTR0}")
    a(f"v_lshl_add_u32 v{vT+1}, v{vTR1}, 1, v{vT+1}")
    a(f"s_lshl_b32 s{sT0}, s{sM}, 2")
    a(f"s_add_u32 s{sT0}, s{sT0}, s{sW}")
    a(f"s_mul_i32 s{sT0}, s{sT0}, {192*1280}")
    a(f"s_lshl_b32 s{sT1}, s{sR}, 6")
    a(f"s_add_u32 s{sT0}, s{sT0}, s{sT1}")
    a(f"s_mul_i32 s{sT2}, s{sW}, 12288")
    for i in range(12):
        if i % 4 == 0:
            a(f"s_add_u32 m0, s{sT2}, {WGT + 1024*i}")
        a(f"s_add_u32 s{sT1}, s{sT0}, {20480*i - 1024*(i%4)}")
        a(f"buffer_load_dwordx4 v{vT+1}, {sr(rWA,4)}, s{sT1} offen offset:{1024*(i%4)} {wflags} lds")
    a("s_branch L_wdone")
    lab("L_wffn")
    srd(rWA, pW1, 640 * 3072)
    srd(rWB, pW2, 1536 * 1280)
    a(f"v_lshrrev_b32 v{vT+1}, 1, v{vLane}")
    a(f"v_mul_u32_u24 v{vT+1}, 3072, v{vT+1}")
    a(f"v_and_b32 v{vT+2}, 1, v{vLane}")
    a(f"v_lshl_add_u32 v{vT+1}, v{vT+2}, 4, v{vT+1}")
    a(f"s_mul_i32 s{sT0}, s{sW}, {160*3072}")
    a(f"s_lshl_b32 s{sT1}, s{sF}, 5")
    a(f"s_add_u32 s{sT0}, s{sT0}, s{sT1}")
    a(f"s_mul_i32 s{sT2}, s{sW}, 5120")
    for i in range(5):
        if i % 4 == 0:
            a(f"s_add_u32 m0, s{sT2}, {WGT + 1024*i}")
        a(f"s_add_u32 s{sT1}, s{sT0}, {32*3072*i - 1024*(i%4)}")
        a(f"buffer_load_dwordx4 v{vT+1}, {sr(rWA,4)}, s{sT1} offen offset:{1024*(i%4)} {wflags} lds")
    a(f"s_mul_i32 s{sT0}, s{sF}, 20480")
    a(f"s_add_u32 s{sT0}, s{sT0}, s{sT2}")
    for i in range(5):
        if i % 4 == 0:
            a(f"s_add_u32 m0, s{sT2}, {WGT + 20480 + 1024*i}")
            a(f"s_add_u32 s{sT1}, s{sT0}, {1024*i}")
        a(f"buffer_load_dwordx4 v{vDMA}, {sr(rWB,4)}, s{sT1} offen offset:{1024*(i%4)} {qflags} lds")
    c("x columns 160w + 4*lane (lanes < 40; others read zeros past the end or unused values)")
    a(f"s_mul_i32 s{sT0}, s{sW}, 320")
    a(f"v_lshlrev_b32 v{vT+1}, 3, v{vLane}")
    a(f"buffer_load_dwordx2 {vr(vXF,2)}, v{vT+1}, {sr(rX,4)}, s{sT0} offen")
    a(f"buffer_load_dwordx2 {vr(vXF,2)}, v{vT+1}, {sr(rX,4)}, s{sT0} offen")
    lab("L_wdone")
    c("---------------- streaming state ----------------")
    a(f"v_mov_b32 v{vML}, 0xff800000")
    a(f"v_mov_b32 v{vL}, 0")
    for r in range(48):
        a(f"v_mov_b32 v{vACC+r}, 0")
    a(f"s_mov_b32 s{sCnt}, {nst_ - 1}")
    stamp()
    a("s_waitcnt lgkmcnt(0)")

    def qk_phase():
        for u in range(2):
            for j in range(6):
                a(f"ds_read_b128 {vr(vF + 24*u + 4*j, 4)}, v{vKA} offset:{6144*u + 64*j}")
        for j in range(6):
            a(f"s_waitcnt lgkmcnt({11 - j})")
            cc = "0" if j == 0 else vr(vS, 4)
            a(f"v_mfma_f32_16x16x32_bf16 {vr(vS,4)}, {vr(vF+4*j,4)}, {vr(vQ+4*j,4)}, {cc}")
        for j in range(6):
            a(f"s_waitcnt lgkmcnt({5 - j})")
            cc = "0" if j == 0 else vr(vS + 4, 4)
            a(f"v_mfma_f32_16x16x32_bf16 {vr(vS+4,4)}, {vr(vF+24+4*j,4)}, {vr(vQ+4*j,4)}, {cc}")

    def softmax_phase():
        for k in range(4):
            a(f"v_cvt_pk_bf16_f32 v{vP+k}, v{vS+2*k}, v{vS+2*k+1}")
        for k in range(4):
            unpack(vP + k, vS + 2 * k, vS + 2 * k + 1)
        for k in range(8):
            a(f"v_mul_f32 v{vS+k}, s{sSc}, v{vS+k}")
        for k in range(4):
            a(f"v_cvt_pk_bf16_f32 v{vP+k}, v{vS+2*k}, v{vS+2*k+1}")
        for k in range(4):
            unpack(vP + k, vS + 2 * k, vS + 2 * k + 1)
        a(f"v_max3_f32 v{vT}, v{vS}, v{vS+1}, v{vS+2}")
        a(f"v_max3_f32 v{vT+1}, v{vS+3}, v{vS+4}, v{vS+5}")
        a(f"v_max3_f32 v{vT}, v{vT}, v{vS+6}, v{vS+7}")
        a(f"v_max_f32 v{vT}, v{vT}, v{vT+1}")
        xgroup("v_max_f32", [vT], [vT + 1])
        a(f"v_mul_f32 v{vT}, s{sLog}, v{vT}")
        a(f"v_cmp_gt_f32 vcc, v{vT}, v{vML}")
        skip = g.newlab("keep")
        nop(1)
        a(f"s_cbranch_vccz {skip}")
        a(f"v_sub_f32 v{vT+1}, v{vML}, v{vT}")
        a(f"v_exp_f32 v{vT+1}, v{vT+1}")
        a(f"v_mov_b32 v{vML}, v{vT}")
        a(f"v_mul_f32 v{vL}, v{vL}, v{vT+1}")
        for r in range(48):
            a(f"v_mul_f32 v{vACC+r}, v{vACC+r}, v{vT+1}")
        lab(skip)
        for k in range(8):
            a(f"v_fma_f32 v{vE+k}, v{vS+k}, s{sLog}, -v{vML}")
        for k in range(8):
            a(f"v_exp_f32 v{vE+k}, v{vE+k}")
        nop(1)
        for k in range(4):
            a(f"v_cvt_pk_bf16_f32 v{vP+k}, v{vE+2*k}, v{vE+2*k+1}")
        for k in range(4):
            a(f"v_add_f32 v{vE+k}, v{vE+k}, v{vE+4+k}")
        a(f"v_add_f32 v{vE}, v{vE}, v{vE+1}")
        a(f"v_add_f32 v{vE+2}, v{vE+2}, v{vE+3}")
        a(f"v_add_f32 v{vE}, v{vE}, v{vE+2}")
        a(f"v_add_f32 v{vL}, v{vL}, v{vE}")

    def pv_phase():
        for t in range(12):
            for u in range(2):
                a(f"ds_read_b64_tr_b16 {vr(vF + 4*t + 2*u, 2)}, v{vVA} offset:{6144*u + 32*t}")
            if t >= 6:
                tt = t - 6
                a(f"s_waitcnt lgkmcnt({2*(t - tt)})")
                a(f"v_mfma_f32_16x16x32_bf16 {vr(vACC+4*tt,4)}, {vr(vF+4*tt,4)}, {vr(vP,4)}, {vr(vACC+4*tt,4)}")
        for tt in range(6, 12):
            a(f"s_waitcnt lgkmcnt({2*(11 - tt)})")
            a(f"v_mfma_f32_16x16x32_bf16 {vr(vACC+4*tt,4)}, {vr(vF+4*tt,4)}, {vr(vP,4)}, {vr(vACC+4*tt,4)}")

    def ticket():
        a("s_mov_b64 exec, 1")
        a(f"v_mov_b32 v{vTk}, 1")
        a(f"buffer_atomic_add v{vTk}, v{vCa}, {sr(rWS,4)}, 0 offen sc0 sc1")
        exec_all()

    c("================ main loop: one 32-key chunk per trip ================")
    assert nst_ >= 2
    lab("L_static")
    a("s_waitcnt vmcnt(12)")
    qk_phase()
    a(f"s_add_u32 s{sOff}, s{sOff}, {CB}")
    issue_chunk(rK, sMK)
    softmax_phase()
    a("s_waitcnt vmcnt(12)")
    pv_phase()
    a(f"s_sub_u32 s{sCnt}, s{sCnt}, 1")
    a(f"s_cmp_eq_u32 s{sCnt}, 0")
    a("s_cbranch_scc1 L_static_last")
    issue_chunk(rV, sMV)
    a("s_branch L_static")
    lab("L_static_last")
    if dyn:
        ticket()
    issue_chunk(rV, sMV)
    stamp()
    if dyn:
        a(f"s_lshl_b32 s{sChunk}, s{sW}, 8")
        a(f"s_add_u32 s{sChunk}, s{sChunk}, {8*nst_}")
        lab("L_dyn")
        a("s_waitcnt vmcnt(12)")
        a(f"v_readfirstlane_b32 s{sT1}, v{vTk}")
        qk_phase()
        a(f"s_cmp_ge_u32 s{sT1}, {256 - 8*nst_}")
        a("s_cbranch_scc1 L_last")
        a(f"s_add_u32 s{sT1}, s{sT1}, s{sChunk}")
        a(f"s_mul_i32 s{sOff}, s{sT1}, {CB}")
        issue_chunk(rK, sMK)
        softmax_phase()
        a("s_waitcnt vmcnt(12)")
        pv_phase()
        ticket()
        issue_chunk(rV, sMV)
        if diag:
            a(f"s_add_u32 s{sCnt}, s{sCnt}, 1")
        a("s_branch L_dyn")
    else:
        a("s_waitcnt vmcnt(12)")
        qk_phase()
    lab("L_last")
    nop(8)
    softmax_phase()
    a("s_waitcnt vmcnt(0)")
    pv_phase()
    stamp()
    c("---------------- combine the four waves ----------------")
    xgroup("v_add_f32", [vL], [vT])
    a(f"s_lshl_b32 s{sT0}, s{sW}, 10")
    a(f"s_add_u32 s{sT0}, s{sT0}, {XO}")
    a(f"v_lshl_add_u32 v{vT}, v{vG}, 4, s{sT0}")
    a(f"v_mov_b32 v{vT+1}, s{sT0}")
    nop(4)
    exec_n0()
    a(f"ds_write_b64 v{vT+1}, {vr(vML,2)} offset:768")
    for t in range(12):
        a(f"ds_write_b128 v{vT}, {vr(vACC+4*t,4)} offset:{64*t}")
    exec_all()
    a("s_waitcnt lgkmcnt(0)")
    a("s_barrier")
    a(f"s_cmp_lg_u32 s{sW}, 0")
    a("s_cbranch_scc1 L_pub_done")
    a(f"v_mov_b32 v{vT}, 0")
    for w in range(4):
        a(f"ds_read_b64 {vr(vE+2*w,2)}, v{vT} offset:{XO + 1024*w + 768}")
    for w in range(4):
        a(f"ds_read_b128 {vr(vF+4*w,4)}, v{vDMA} offset:{XO + 1024*w}")
    a("s_waitcnt lgkmcnt(4)")
    a(f"v_max3_f32 v{vT}, v{vE}, v{vE+2}, v{vE+4}")
    a(f"v_max_f32 v{vT}, v{vT}, v{vE+6}")
    for w in range(4):
        a(f"v_sub_f32 v{vE+2*w}, v{vE+2*w}, v{vT}")
    for w in range(4):
        a(f"v_exp_f32 v{vE+2*w}, v{vE+2*w}")
    nop(1)
    a(f"v_mul_f32 v{vT+1}, v{vE}, v{vE+1}")
    for w in range(1, 4):
        a(f"v_fmac_f32 v{vT+1}, v{vE+2*w}, v{vE+2*w+1}")
    a("s_waitcnt lgkmcnt(0)")
    for r in range(4):
        a(f"v_mul_f32 v{vS+r}, v{vE}, v{vF+r}")
    for w in range(1, 4):
        for r in range(4):
            a(f"v_fmac_f32 v{vS+r}, v{vE+2*w}, v{vF+4*w+r}")
    a(f"s_bfm_b64 exec, 1, 48")
    a(f"v_mov_b32 v{vS}, v{vT}")
    a(f"v_mov_b32 v{vS+1}, v{vT+1}")
    a(f"v_mov_b32 v{vS+2}, 0")
    a(f"v_mov_b32 v{vS+3}, 0")
    exec_first(49)
    for r in range(4):
        a(f"v_min_u32 v{vS+r}, 0xfffffffe, v{vS+r}")
    a(f"s_add_u32 s{sT0}, s{sRow}, {OP}")
    a(f"buffer_store_dwordx4 {vr(vS,4)}, v{vDMA}, {sr(rWS,4)}, s{sT0} offen sc1")
    exec_all()
    lab("L_pub_done")
    a(f"v_lshrrev_b32 v{vT+2}, 2, v{vLane}")
    a(f"v_and_b32 v{vT+3}, 3, v{vLane}")
    a(f"v_lshlrev_b32 v{vT+3}, 3, v{vT+3}")
    a(f"s_cmp_ge_u32 s{sR}, 20")
    a("s_cbranch_scc1 L_ffn")

    c("================ output projection role: heads 4m..4m+3, columns 32r..32r+31 ================")
    vWf = vACC
    a(f"s_mul_i32 s{sT0}, s{sW}, 12288")
    a(f"s_add_u32 s{sT0}, s{sT0}, {WGT}")
    a(f"v_lshl_add_u32 v{vT}, v{vT+2}, 6, v{vT+3}")
    a(f"v_add_u32 v{vT}, s{sT0}, v{vT}")
    for t in range(2):
        for b in range(12):
            a(f"ds_read_b64_tr_b16 {vr(vWf + 24*t + 2*b, 2)}, v{vT} offset:{1024*b + 32*t}")
            if (12 * t + b) % 12 == 11:
                a("s_waitcnt lgkmcnt(0)")
    a(f"s_lshl_b32 s{sT1}, s{sM}, 2")
    a(f"s_add_u32 s{sT1}, s{sT1}, s{sW}")
    a(f"s_lshl_b32 s{sT1}, s{sT1}, 13")
    a(f"s_add_u32 s{sT1}, s{sT1}, {OP}")
    a(f"s_add_u32 s{sT2}, s{sT1}, 4096")
    a(f"v_mov_b32 v{vT+4}, 768")
    vO, vMLs = vF, vF + 32
    exec_first(48)

    def aloads():
        for m in range(8):
            so = sT1 if m < 4 else sT2
            a(f"buffer_load_dwordx2 {vr(vMLs+2*m,2)}, v{vT+4}, {sr(rWS,4)}, s{so} offen offset:{1024*(m%4)} sc1")
            a(f"buffer_load_dwordx4 {vr(vO+4*m,4)}, v{vDMA}, {sr(rWS,4)}, s{so} offen offset:{1024*(m%4)} sc1")
    poll(aloads, range(vF, vF + 48), vT + 5)
    stamp()
    a(f"v_max3_f32 v{vT}, v{vMLs}, v{vMLs+2}, v{vMLs+4}")
    a(f"v_max3_f32 v{vT+1}, v{vMLs+6}, v{vMLs+8}, v{vMLs+10}")
    a(f"v_max3_f32 v{vT}, v{vT}, v{vMLs+12}, v{vMLs+14}")
    a(f"v_max_f32 v{vT}, v{vT}, v{vT+1}")
    for m in range(8):
        a(f"v_sub_f32 v{vMLs+2*m}, v{vMLs+2*m}, v{vT}")
    for m in range(8):
        a(f"v_exp_f32 v{vMLs+2*m}, v{vMLs+2*m}")
    nop(1)
    a(f"v_mul_f32 v{vT+1}, v{vMLs}, v{vMLs+1}")
    for m in range(1, 8):
        a(f"v_fmac_f32 v{vT+1}, v{vMLs+2*m}, v{vMLs+2*m+1}")
    a(f"v_rcp_f32 v{vT+1}, v{vT+1}")
    for r in range(4):
        a(f"v_mul_f32 v{vS+r}, v{vMLs}, v{vO+r}")
    for m in range(1, 8):
        for r in range(4):
            a(f"v_fmac_f32 v{vS+r}, v{vMLs+2*m}, v{vO+4*m+r}")
    for r in range(4):
        a(f"v_mul_f32 v{vS+r}, v{vS+r}, v{vT+1}")
    a(f"v_cvt_pk_bf16_f32 v{vS}, v{vS}, v{vS+1}")
    a(f"v_cvt_pk_bf16_f32 v{vS+1}, v{vS+2}, v{vS+3}")
    a(f"s_lshl_b32 s{sT0}, s{sW}, 9")
    a(f"s_add_u32 s{sT0}, s{sT0}, {OV}")
    a(f"v_lshl_add_u32 v{vT}, v{vLane}, 3, s{sT0}")
    a(f"ds_write_b64 v{vT}, {vr(vS,2)}")
    exec_all()
    a(f"v_lshl_add_u32 v{vT}, v{vG}, 3, s{sT0}")
    a("s_waitcnt lgkmcnt(0)")
    for b in range(12):
        a(f"ds_read_b64 {vr(vQ+2*b,2)}, v{vT} offset:{32*b}")
    for j in range(6):
        a(f"s_waitcnt lgkmcnt({10 - 2*j})")
        for t in range(2):
            cc = "0" if j == 0 else vr(vS + 4 * t, 4)
            a(f"v_mfma_f32_16x16x32_bf16 {vr(vS+4*t,4)}, {vr(vWf+24*t+4*j,4)}, {vr(vQ+4*j,4)}, {cc}")
    a(f"s_lshl_b32 s{sT0}, s{sW}, 7")
    a(f"s_add_u32 s{sT0}, s{sT0}, {XY}")
    a(f"v_lshl_add_u32 v{vT}, v{vG}, 4, s{sT0}")
    nop(6)
    exec_n0()
    for t in range(2):
        a(f"ds_write_b128 v{vT}, {vr(vS+4*t,4)} offset:{64*t}")
    exec_all()
    a("s_waitcnt lgkmcnt(0)")
    a("s_barrier")
    a(f"s_cmp_lg_u32 s{sW}, 0")
    a("s_cbranch_scc1 L_fin")
    exec_first(8)
    for w in range(4):
        a(f"ds_read_b128 {vr(vF+4*w,4)}, v{vDMA} offset:{XY + 128*w}")
    a(f"s_mul_i32 s{sT0}, s{sM}, 2560")
    a(f"s_lshl_b32 s{sT1}, s{sR}, 7")
    a(f"s_add_u32 s{sT0}, s{sT0}, s{sT1}")
    a(f"s_add_u32 s{sT0}, s{sT0}, {YP}")
    a("s_waitcnt lgkmcnt(0)")
    for r in range(4):
        a(f"v_add_f32 v{vF+r}, v{vF+r}, v{vF+4+r}")
        a(f"v_add_f32 v{vF+8+r}, v{vF+8+r}, v{vF+12+r}")
    for r in range(4):
        a(f"v_add_f32 v{vF+r}, v{vF+r}, v{vF+8+r}")
    for r in range(4):
        a(f"v_min_u32 v{vF+r}, 0xfffffffe, v{vF+r}")
    a(f"buffer_store_dwordx4 {vr(vF,4)}, v{vDMA}, {sr(rWS,4)}, s{sT0} offen sc1")
    exec_all()
    a("s_branch L_fin")

    c("================ FFN role: hidden columns 16f..16f+15 ================")
    lab("L_ffn")
    vW1, vW2 = vACC, vACC + 20
    a(f"s_mul_i32 s{sT0}, s{sW}, 5120")
    a(f"s_add_u32 s{sT0}, s{sT0}, {WGT}")
    a(f"v_lshl_add_u32 v{vT}, v{vLane}, 3, s{sT0}")
    for b in range(10):
        a(f"ds_read_b64_tr_b16 {vr(vW1+2*b,2)}, v{vT} offset:{512*b}")
    a(f"v_mul_u32_u24 v{vT+1}, 1280, v{vT+2}")
    a(f"s_mul_i32 s{sT0}, s{sW}, 320")
    a(f"s_add_u32 s{sT0}, s{sT0}, {WGT + 20480}")
    a(f"v_add3_u32 v{vT+1}, v{vT+1}, v{vT+3}, s{sT0}")
    a("s_waitcnt lgkmcnt(0)")
    for t in range(10):
        a(f"ds_read_b64_tr_b16 {vr(vW2+2*t,2)}, v{vT+1} offset:{32*t}")
    a(f"s_mul_i32 s{sT1}, s{sW}, 640")
    a(f"s_add_u32 s{sT1}, s{sT1}, {YP}")
    for k in range(1, 4):
        a(f"s_add_u32 s{sEx if k == 3 else sT1 + k}, s{sT1}, {5120*k}")
    ybase = [sT1, sT2, sT3, sEx]
    a(f"v_mov_b32 v{vS+4}, 0")
    a(f"v_mov_b32 v{vS+5}, 0")
    a("s_waitcnt lgkmcnt(0)")
    exec_first(40)

    def bloads():
        for m in range(8):
            a(f"buffer_load_dwordx4 {vr(vF+4*m,4)}, v{vDMA}, {sr(rWS,4)}, s{ybase[m//2]} offen offset:{2560*(m%2)} sc1")
    poll(bloads, range(vF, vF + 32), vT + 5)
    nst[0] = 8
    stamp()
    for m in range(1, 8):
        for r in range(4):
            a(f"v_add_f32 v{vF+r}, v{vF+r}, v{vF+4*m+r}")
    a(f"v_cvt_pk_bf16_f32 v{vF+4}, v{vF}, v{vF+1}")
    a(f"v_cvt_pk_bf16_f32 v{vF+5}, v{vF+2}, v{vF+3}")
    unpack(vF + 4, vF, vF + 1)
    unpack(vF + 5, vF + 2, vF + 3)
    unpack(vXF, vF + 4, vF + 5)
    unpack(vXF + 1, vF + 6, vF + 7)
    for r in range(4):
        a(f"v_add_f32 v{vF+r}, v{vF+r}, v{vF+4+r}")
    vH = vP
    a(f"v_cvt_pk_bf16_f32 v{vH}, v{vF}, v{vF+1}")
    a(f"v_cvt_pk_bf16_f32 v{vH+1}, v{vF+2}, v{vF+3}")
    a(f"s_mul_i32 s{sT0}, s{sW}, 320")
    a(f"v_lshl_add_u32 v{vT+4}, v{vLane}, 3, s{sT0}")
    a(f"ds_write_b64 v{vT+4}, {vr(vH,2)} offset:{HV}")
    unpack(vH, vF, vF + 1)
    unpack(vH + 1, vF + 2, vF + 3)
    nop(1)
    a(f"v_readfirstlane_b32 s{sT1}, v{vF}")
    nop(2)
    for r in range(4):
        a(f"v_subrev_f32 v{vF+r}, s{sT1}, v{vF+r}")
    a(f"v_add_f32 v{vS+4}, v{vF}, v{vF+1}")
    a(f"v_mul_f32 v{vS+5}, v{vF}, v{vF}")
    a(f"v_add_f32 v{vS+4}, v{vS+4}, v{vF+2}")
    a(f"v_fmac_f32 v{vS+5}, v{vF+1}, v{vF+1}")
    a(f"v_add_f32 v{vS+4}, v{vS+4}, v{vF+3}")
    a(f"v_fmac_f32 v{vS+5}, v{vF+2}, v{vF+2}")
    a(f"v_fmac_f32 v{vS+5}, v{vF+3}, v{vF+3}")
    exec_all()
    allreduce("v_add_f32", [vS + 4, vS + 5], [vT, vT + 1])
    a(f"v_mul_f32 v{vT}, {R160:#x}, v{vS+4}")
    a(f"v_fma_f32 v{vS+5}, -v{vT}, v{vS+4}, v{vS+5}")
    a(f"v_add_f32 v{vS+4}, s{sT1}, v{vT}")
    a(f"s_lshl_b32 s{sT2}, s{sW}, 3")
    a(f"v_mov_b32 v{vT}, s{sT2}")
    a(f"ds_write_b64 v{vT}, {vr(vS+4,2)} offset:{XS}")
    a(f"v_mov_b32 v{vT}, 0")
    a("s_waitcnt lgkmcnt(0)")
    a("s_barrier")
    a(f"ds_read_b128 {vr(vE,4)}, v{vT} offset:{XS}")
    a(f"ds_read_b128 {vr(vE+4,4)}, v{vT} offset:{XS+16}")
    a("s_waitcnt lgkmcnt(0)")
    a(f"v_add_f32 v{vMean}, v{vE}, v{vE+2}")
    a(f"v_add_f32 v{vT+3}, v{vE+4}, v{vE+6}")
    a(f"v_add_f32 v{vMean}, v{vMean}, v{vT+3}")
    a(f"v_mul_f32 v{vMean}, 0.25, v{vMean}") if False else a(f"v_mul_f32 v{vMean}, 0x3e800000, v{vMean}")
    a(f"v_add_f32 v{vVar}, v{vE+1}, v{vE+3}")
    a(f"v_add_f32 v{vT+3}, v{vE+5}, v{vE+7}")
    a(f"v_add_f32 v{vVar}, v{vVar}, v{vT+3}")
    for w in range(4):
        a(f"v_sub_f32 v{vE+2*w}, v{vE+2*w}, v{vMean}")
    a(f"v_mul_f32 v{vT+3}, v{vE}, v{vE}")
    for w in range(1, 4):
        a(f"v_fmac_f32 v{vT+3}, v{vE+2*w}, v{vE+2*w}")
    a(f"v_mul_f32 v{vVar}, {R640:#x}, v{vVar}")
    a(f"v_fmac_f32 v{vVar}, 0x3e800000, v{vT+3}")
    a(f"v_max_f32 v{vVar}, 0, v{vVar}")
    ln_finish(vMean, vVar, vRcp, vT + 3)
    normalise_pair(vH, vH + 2, vMean, vVar, vRcp, vE)
    normalise_pair(vH + 1, vH + 3, vMean, vVar, vRcp, vE + 4)
    exec_first(40)
    a(f"ds_write_b64 v{vT+4}, {vr(vH+2,2)} offset:{XN}")
    exec_all()
    a(f"v_lshl_add_u32 v{vT+5}, v{vG}, 3, s{sT0}")
    a("s_waitcnt lgkmcnt(0)")
    for b in range(10):
        a(f"ds_read_b64 {vr(vQ+2*b,2)}, v{vT+5} offset:{XN + 32*b}")
    for j in range(5):
        a(f"s_waitcnt lgkmcnt({8 - 2*j})")
        cc = "0" if j == 0 else vr(vS, 4)
        a(f"v_mfma_f32_16x16x32_bf16 {vr(vS,4)}, {vr(vW1+4*j,4)}, {vr(vQ+4*j,4)}, {cc}")
    a(f"s_lshl_b32 s{sT2}, s{sW}, 6")
    a(f"v_lshlrev_b32 v{vT+6}, 4, v{vG}")
    a(f"v_add_u32 v{vT+5}, s{sT2}, v{vT+6}")
    a(f"v_and_b32 v{vT+7}, 15, v{vLane}")
    nop(5)
    exec_n0()
    a(f"ds_write_b128 v{vT+5}, {vr(vS,4)} offset:{XH}")
    exec_all()
    a("s_waitcnt lgkmcnt(0)")
    a("s_barrier")
    for w in range(4):
        a(f"ds_read_b128 {vr(vF+4*w,4)}, v{vT+6} offset:{XH + 64*w}")
    a("s_waitcnt lgkmcnt(0)")
    for r in range(4):
        a(f"v_add_f32 v{vF+r}, v{vF+r}, v{vF+4+r}")
        a(f"v_add_f32 v{vF+8+r}, v{vF+8+r}, v{vF+12+r}")
    for r in range(4):
        a(f"v_add_f32 v{vF+r}, v{vF+r}, v{vF+8+r}")
    for r in range(4):
        a(f"v_max_f32 v{vF+r}, 0, v{vF+r}")
    a(f"v_cvt_pk_bf16_f32 v{vF+4}, v{vF}, v{vF+1}")
    a(f"v_cvt_pk_bf16_f32 v{vF+5}, v{vF+2}, v{vF+3}")
    c("tile t of w2 lands in result column n = t: operand is hidden where n == t, else 0")
    for t in range(10):
        a(f"v_cmp_eq_u32 vcc, {t}, v{vT+7}")
        nop(2)
        a(f"v_cndmask_b32 v{vQ+2*t}, 0, v{vF+4}, vcc")
        a(f"v_cndmask_b32 v{vQ+2*t+1}, 0, v{vF+5}, vcc")
    nop(2)
    for t in range(10):
        cc = "0" if t == 0 else vr(vS, 4)
        a(f"v_mfma_f32_16x16x16_bf16 {vr(vS,4)}, {vr(vW2+2*t,2)}, {vr(vQ+2*t,2)}, {cc}")
    a(f"v_lshl_add_u32 v{vT+5}, v{vT+7}, 6, v{vT+6}")
    a(f"s_mul_i32 s{sT1}, s{sF}, 2560")
    a(f"s_mul_i32 s{sT2}, s{sW}, 640")
    a(f"s_add_u32 s{sT1}, s{sT1}, s{sT2}")
    a(f"s_add_u32 s{sT1}, s{sT1}, {FP}")
    nop(4)
    for r in range(4):
        a(f"v_min_u32 v{vS+r}, 0xfffffffe, v{vS+r}")
    a("s_mov_b32 exec_lo, 0x03ff03ff")
    a("s_mov_b32 exec_hi, 0x03ff03ff")
    a(f"buffer_store_dwordx4 {vr(vS,4)}, v{vT+5}, {sr(rWS,4)}, s{sT1} offen sc1")
    exec_all()
    c("---------------- final reduction: workgroups with e = 3m + (r-20) < 20, r < 23 ----------------")
    a(f"s_cmp_ge_u32 s{sR}, 23")
    a("s_cbranch_scc1 L_fin")
    a(f"s_mul_i32 s{sF}, s{sM}, 3")
    a(f"s_add_u32 s{sF}, s{sF}, s{sR}")
    a(f"s_sub_u32 s{sF}, s{sF}, 20")
    a(f"s_cmp_ge_u32 s{sF}, 20")
    a("s_cbranch_scc1 L_fin")
    srd(rOUT, pOUT, 1280)
    a(f"v_lshrrev_b32 v{vT}, 3, v{vLane}")
    a(f"v_mul_u32_u24 v{vT}, 2560, v{vT}")
    a(f"v_and_b32 v{vT+1}, 7, v{vLane}")
    a(f"v_lshl_add_u32 v{vT}, v{vT+1}, 4, v{vT}")
    a(f"s_mul_i32 s{sT1}, s{sW}, {24*2560}")
    a(f"s_lshl_b32 s{sT2}, s{sF}, 7")
    a(f"s_add_u32 s{sT1}, s{sT1}, s{sT2}")
    a(f"s_add_u32 s{sT1}, s{sT1}, {FP}")
    a(f"s_add_u32 s{sT2}, s{sT1}, {8*2560}")
    a(f"s_add_u32 s{sT3}, s{sT1}, {16*2560}")

    def cloads():
        for k, so in enumerate((sT1, sT2, sT3)):
            a(f"buffer_load_dwordx4 {vr(vF+4*k,4)}, v{vT}, {sr(rWS,4)}, s{so} offen sc1")
    poll(cloads, range(vF, vF + 12), vT + 5)
    for r in range(4):
        a(f"v_add_f32 v{vF+r}, v{vF+r}, v{vF+4+r}")
    for r in range(4):
        a(f"v_add_f32 v{vF+r}, v{vF+r}, v{vF+8+r}")
    nop(1)
    for r in range(4):
        a(f"v_add_f32_dpp v{vF+r}, v{vF+r}, v{vF+r} row_ror:8 row_mask:0xf bank_mask:0xf")
    xgroup("v_add_f32", [vF, vF + 1, vF + 2, vF + 3], [vE, vE + 1, vE + 2, vE + 3])
    a(f"s_lshl_b32 s{sT0}, s{sW}, 7")
    a(f"v_add_u32 v{vT}, s{sT0}, v{vDMA}")
    exec_first(8)
    a(f"ds_write_b128 v{vT}, {vr(vF,4)} offset:{XF}")
    exec_all()
    a("s_waitcnt lgkmcnt(0)")
    a("s_barrier")
    a(f"s_cmp_lg_u32 s{sW}, 0")
    a("s_cbranch_scc1 L_fin")
    exec_first(8)
    a(f"s_lshl_b32 s{sT0}, s{sF}, 6")
    a(f"v_lshl_add_u32 v{vT}, v{vLane}, 3, s{sT0}")
    for w in range(4):
        a(f"ds_read_b128 {vr(vF+4*w,4)}, v{vDMA} offset:{XF + 128*w}")
    a(f"ds_read_b64 {vr(vE,2)}, v{vT} offset:{HV}")
    a("s_waitcnt lgkmcnt(0)")
    for r in range(4):
        a(f"v_add_f32 v{vF+r}, v{vF+r}, v{vF+4+r}")
        a(f"v_add_f32 v{vF+8+r}, v{vF+8+r}, v{vF+12+r}")
    for r in range(4):
        a(f"v_add_f32 v{vF+r}, v{vF+r}, v{vF+8+r}")
    a(f"v_cvt_pk_bf16_f32 v{vF+4}, v{vF}, v{vF+1}")
    a(f"v_cvt_pk_bf16_f32 v{vF+5}, v{vF+2}, v{vF+3}")
    unpack(vF + 4, vF, vF + 1)
    unpack(vF + 5, vF + 2, vF + 3)
    unpack(vE, vF + 4, vF + 5)
    unpack(vE + 1, vF + 6, vF + 7)
    for r in range(4):
        a(f"v_add_f32 v{vF+r}, v{vF+r}, v{vF+4+r}")
    a(f"v_cvt_pk_bf16_f32 v{vF+4}, v{vF}, v{vF+1}")
    a(f"v_cvt_pk_bf16_f32 v{vF+5}, v{vF+2}, v{vF+3}")
    a(f"buffer_store_dwordx2 {vr(vF+4,2)}, v{vT}, {sr(rOUT,4)}, 0 offen")
    exec_all()
    lab("L_fin")
    if diag:
        a("s_waitcnt vmcnt(0)")
        nst[0] = 9
        stamp()
        a("s_getreg_b32 s3, hwreg(HW_REG_XCC_ID)")
        a(f"v_mov_b32 v{vT}, 0")
        for i in range(10):
            a(f"v_writelane_b32 v{vT}, s{sStamp+i}, {i}")
        a(f"v_writelane_b32 v{vT}, s3, 10")
        a(f"v_writelane_b32 v{vT}, s{sCnt}, 11")
        a(f"s_lshl_b32 s{sT0}, s2, 2")
        a(f"s_add_u32 s{sT0}, s{sT0}, s{sW}")
        a(f"s_lshl_b32 s{sT0}, s{sT0}, 6")
        a(f"s_add_u32 s{sT0}, s{sT0}, {ST}")
        a(f"v_lshlrev_b32 v{vT+1}, 2, v{vLane}")
        exec_first(16)
        a(f"buffer_store_dword v{vT}, v{vT+1}, {sr(rWS,4)}, s{sT0} offen")
    lab("L_end")
    a("s_endpgm")

    out = [HEADER + f"; @launch grid=(256,1,1) block=(256,1,1) lds={LDS_BYTES}",
           '.amdgcn_target "amdgcn-amd-amdhsa--gfx950"', ".text", f".globl {name}", ".p2align 8",
           f".type {name},@function", f"{name}:"]
    out += g.L
    out += ['.section .rodata,"a"', ".p2align 6", f".amdhsa_kernel {name}",
            f"  .amdhsa_next_free_vgpr {NV}", "  .amdhsa_next_free_sgpr 102", f"  .amdhsa_accum_offset {NV}",
            "  .amdhsa_group_segment_fixed_size 0", "  .amdhsa_kernarg_size 88", "  .amdhsa_user_sgpr_count 2",
            "  .amdhsa_user_sgpr_kernarg_segment_ptr 1", "  .amdhsa_system_sgpr_workgroup_id_x 1",
            "  .amdhsa_float_denorm_mode_32 3",
            ".end_amdhsa_kernel"]
    return "\n".join(out) + "\n"


if __name__ == "__main__":
    kw = json.loads(sys.argv[1]) if len(sys.argv) > 1 else {}
    sys.stdout.write(gen(**kw))
```

```python
import sys, json

KNAME = "sequential_preLN__mha_block_cached__dense_activation_relu__decode_kernel"

HEADER = """; Kernarg layout for this problem (88 bytes, ptrs only, base s[0:1]):
"""

QP = 0x000000
OP = 0x040000
YP = 0x080000
FP = 0x090000
CT = 0x0D0000
ST = 0x100000
WS_REC = 0x200000

MISC = 0
WGT = 0x3000
RING = 0xF000
QV = MISC
XO = MISC + 0x200
OV = MISC + 0x1200
XY = MISC + 0x1A00
HV = MISC + 0x1C00
XS = MISC + 0x2200
XN = MISC + 0x2300
XH = MISC + 0x2900
XF = MISC + 0x2A00
LDS_BYTES = RING + 0x18000

SCALE = 0x3d93cd3a
LOG2E = 0x3fb8aa3b
EPS = 0x3727c5ac
R640 = 0x3acccccd
R160 = 0x3bcccccd
HEAD_BYTES = 12582912
CB = 12288


class G:
    def __init__(self):
        self.L = []
        self.nlabel = 0

    def a(self, s):
        self.L.append("  " + s)

    def lab(self, s):
        self.L.append(s + ":")

    def c(self, s):
        self.L.append("  ; " + s)

    def newlab(self, p):
        self.nlabel += 1
        return f"L_{p}{self.nlabel}"

    def nop(self, n):
        while n > 0:
            k = min(n, 16)
            self.a(f"s_nop {k-1}")
            n -= k


def vr(b, n=1):
    return f"v{b}" if n == 1 else f"v[{b}:{b+n-1}]"


def sr(b, n=1):
    return f"s{b}" if n == 1 else f"s[{b}:{b+n-1}]"


def gen(name=KNAME, kvflags="nt", wflags="", qflags="nt", nstat=24, dyn=1, rot=1, diag=0, bound=1 << 20,
        sleep=1, dbgspan=0, perturb=0):
    g = G()
    a, lab, c, nop = g.a, g.lab, g.c, g.nop
    pX, pK, pV, pWQ, pWO, pW1, pW2, pOUT, pDBG, pWS = 4, 6, 8, 10, 12, 16, 18, 20, 22, 24
    rK, rV, rWS, rWQ, rX, rDBG, rWA, rWB, rOUT = 28, 32, 36, 40, 44, 48, 52, 56, 60
    sW, sH, sM, sR, sRow, sRole, sF = 64, 65, 66, 67, 68, 69, 70
    sT0, sT1, sT2, sT3 = 71, 72, 73, 74
    sMK, sMV = 75, 78
    sOff, sCnt, sBound, sChunk = 81, 82, 83, 84
    sEx = 86
    sLog, sSc = 88, 89
    sStamp = 90
    sTm = 100
    vLane, vDMA, vKA, vVA, vG, vT = 1, 2, 3, 4, 5, 6
    vML, vL, vTk, vCa = 16, 17, 18, 19
    vXF = 20
    vS = 24
    vP = 32
    vE = 36
    vQ = 44
    vF = 68
    vACC = 116
    vU = 164
    vWF = 212
    NV = 216

    vSt = 22
    global STAMPS
    STAMPS = []

    def stamp(nm):
        if not diag:
            return
        if nm not in STAMPS:
            STAMPS.append(nm)
        i = STAMPS.index(nm)
        assert i < 30
        a(f"s_memrealtime {sr(sTm,2)}")
        a("s_waitcnt lgkmcnt(0)")
        a(f"v_writelane_b32 v{vSt}, s{sTm}, {i}")

    def srd(d, p, n, addlo=None):
        if addlo is None:
            a(f"s_mov_b32 s{d}, s{p}")
            a(f"s_and_b32 s{d+1}, s{p+1}, 0xffff")
        else:
            a(f"s_add_u32 s{d}, s{p}, s{addlo}")
            a(f"s_addc_u32 s{d+1}, s{p+1}, 0")
            a(f"s_and_b32 s{d+1}, s{d+1}, 0xffff")
        a(f"s_mov_b32 s{d+2}, {n}")
        a(f"s_mov_b32 s{d+3}, 0x20000")

    def exec_first(n):
        a(f"s_bfm_b64 exec, {n}, 0")

    def exec_all():
        a("s_mov_b64 exec, -1")

    def exec_n0():
        a("s_mov_b32 exec_lo, 0x00010001")
        a("s_mov_b32 exec_hi, 0x00010001")

    def allreduce(op, regs, tmps):
        pad = max(0, 2 - (len(regs) - 1))
        nop(2)
        for rr in (8, 4, 2, 1):
            for r in regs:
                a(f"{op}_dpp v{r}, v{r}, v{r} row_ror:{rr} row_mask:0xf bank_mask:0xf")
            nop(pad)
        xgroup(op, regs, tmps)

    def xgroup(op, regs, tmps):
        for sw in ("v_permlane16_swap_b32", "v_permlane32_swap_b32"):
            for r, t in zip(regs, tmps):
                a(f"v_mov_b32 v{t}, v{r}")
            nop(2)
            for r, t in zip(regs, tmps):
                a(f"{sw} v{r}, v{t}")
            for r, t in zip(regs, tmps):
                a(f"{op} v{r}, v{r}, v{t}")

    def unpack(src, lo, hi):
        a(f"v_lshlrev_b32 v{lo}, 16, v{src}")
        a(f"v_and_b32 v{hi}, 0xffff0000, v{src}")

    def round_bf16(r, t):
        a(f"v_cvt_pk_bf16_f32 v{t}, v{r}, v{r}")
        a(f"v_and_b32 v{r}, 0xffff0000, v{t}")

    def ln_finish(vMean, vVar, vRcp, t):
        round_bf16(vMean, t)
        round_bf16(vVar, t)
        a(f"v_add_f32 v{vVar}, {EPS:#x}, v{vVar}")
        round_bf16(vVar, t)
        a(f"v_sqrt_f32 v{vVar}, v{vVar}")
        nop(1)
        round_bf16(vVar, t)
        a(f"v_rcp_f32 v{vRcp}, v{vVar}")
        nop(1)

    def normalise_pair(src, dst, vMean, vDen, vRcp, t):
        unpack(src, t, t + 1)
        a(f"v_sub_f32 v{t}, v{t}, v{vMean}")
        a(f"v_sub_f32 v{t+1}, v{t+1}, v{vMean}")
        a(f"v_cvt_pk_bf16_f32 v{dst}, v{t}, v{t+1}")
        unpack(dst, t, t + 1)
        for k in (0, 1):
            a(f"v_mul_f32 v{t+2+k}, v{t+k}, v{vRcp}")
        for k in (0, 1):
            a(f"v_fma_f32 v{t+k}, -v{t+2+k}, v{vDen}, v{t+k}")
        for k in (0, 1):
            a(f"v_fma_f32 v{t+2+k}, v{t+k}, v{vRcp}, v{t+2+k}")
        a(f"v_cvt_pk_bf16_f32 v{dst}, v{t+2}, v{t+3}")

    def any_marker(regs, t):
        regs = list(regs)
        a(f"v_max3_u32 v{t}, v{regs[0]}, v{regs[1]}, v{regs[2]}")
        regs = regs[3:]
        while len(regs) >= 2:
            a(f"v_max3_u32 v{t}, v{t}, v{regs[0]}, v{regs[1]}")
            regs = regs[2:]
        if regs:
            a(f"v_max_u32 v{t}, v{t}, v{regs[0]}")
        a(f"v_cmp_eq_u32 vcc, -1, v{t}")

    def poll(loads, regs, t, pre_wait=0):
        top, done = g.newlab("poll"), g.newlab("got")
        a(f"s_mov_b32 s{sBound}, {bound}")
        lab(top)
        loads()
        a("s_waitcnt vmcnt(0)")
        any_marker(regs, t)
        nop(1)
        a(f"s_cbranch_vccz {done}")
        if sleep:
            a(f"s_sleep {sleep}")
        a(f"s_sub_u32 s{sBound}, s{sBound}, 1")
        a(f"s_cmp_lg_u32 s{sBound}, 0")
        a(f"s_cbranch_scc1 {top}")
        a("s_branch L_end")
        lab(done)

    def issue_chunk(r, m0base):
        for j in range(3):
            a(f"s_mov_b32 m0, s{m0base+j}")
            if j == 0:
                a(f"s_mov_b32 s{sT0}, s{sOff}")
            else:
                a(f"s_add_u32 s{sT0}, s{sOff}, {4096*j}")
            for k in range(4):
                a(f"buffer_load_dwordx4 v{vDMA}, {sr(r,4)}, s{sT0} offen offset:{1024*k} {kvflags} lds")

    c("---------------- entry ----------------")
    a("s_cmp_ge_u32 s2, 256")
    a("s_cbranch_scc1 L_end")
    if diag:
        a(f"s_memrealtime {sr(sTm,2)}")
    if dbgspan:
        a("s_memrealtime s[90:91]")
    a("s_load_dwordx16 s[4:19], s[0:1], 0")
    a("s_load_dwordx4 s[20:23], s[0:1], 64")
    a("s_load_dwordx2 s[24:25], s[0:1], 80")
    a(f"v_lshrrev_b32 v{vT}, 6, v0")
    a(f"v_and_b32 v{vLane}, 63, v0")
    a(f"v_readfirstlane_b32 s{sW}, v{vT}")
    a(f"v_lshlrev_b32 v{vDMA}, 4, v{vLane}")
    a(f"v_lshrrev_b32 v{vG}, 4, v{vLane}")
    a(f"s_and_b32 s{sM}, s2, 7")
    a(f"s_lshr_b32 s{sR}, s2, 3")
    a(f"s_mul_i32 s{sT0}, s{sM}, {rot}")
    a(f"s_add_u32 s{sH}, s{sR}, s{sT0}")
    a(f"s_and_b32 s{sH}, s{sH}, 31")
    a(f"s_lshl_b32 s{sRow}, s{sH}, 3")
    a(f"s_add_u32 s{sRow}, s{sRow}, s{sM}")
    a(f"s_mul_i32 s{sF}, s{sM}, 12")
    a(f"s_add_u32 s{sF}, s{sF}, s{sR}")
    a(f"s_sub_u32 s{sF}, s{sF}, 20")
    vWQ = vU
    for b in range(3):
        a(f"v_add_u32 v{vT}, {64*b}, v{vLane}")
        a(f"v_mul_u32_u24 v{vT}, 2731, v{vT}")
        a(f"v_lshrrev_b32 v{vT}, 16, v{vT}")
        a(f"v_mul_u32_u24 v{vT}, 11904, v{vT}")
        a(f"v_add_u32 v{vWQ+b}, v{vT}, v{vDMA}")
    vXA, vXB = vU + 3, vU + 4
    a(f"v_lshlrev_b32 v{vXA}, 2, v{vLane}")
    a(f"s_mul_i32 s{sT1}, s{sM}, 160")
    a(f"v_lshl_add_u32 v{vXB}, v{vG}, 3, s{sT1}")
    a("s_waitcnt lgkmcnt(0)")
    if diag:
        a(f"v_mov_b32 v{vSt}, 0")
        a(f"v_writelane_b32 v{vSt}, s{sTm}, 0")
        STAMPS.append("entry")
    stamp("karg")
    srd(rX, pX, 1280)
    srd(rWS, pWS, WS_REC)
    srd(rDBG, pDBG, 256)
    a(f"s_mul_i32 s{sT0}, s{sM}, {80*12288}")
    a(f"s_mul_i32 s{sT2}, s{sH}, 384")
    a(f"s_add_u32 s{sT0}, s{sT0}, s{sT2}")
    srd(rWQ, pWQ, 79 * 12288 + 384, addlo=sT0)
    vXS = vU + 8
    vXL = vU + 14
    for i in range(5):
        a(f"buffer_load_dword v{vXS+i}, v{vXA}, {sr(rX,4)}, 0 offen offset:{256*i}")
    for b in range(5):
        a(f"buffer_load_dwordx2 {vr(vXL+2*b,2)}, v{vXB}, {sr(rX,4)}, 0 offen offset:{32*b}")
    a(f"s_lshl_b32 s{sRow}, s{sRow}, 10")
    lw3, lwq_done = "L_w3", "L_wq_done"
    a(f"s_cmp_eq_u32 s{sW}, 3")
    a(f"s_cbranch_scc1 {lw3}")
    c("waves 0..2: wq slice (80 rows x 384 B) -> LDS WGT")

    def wq_group(sidx):
        a(f"s_mul_i32 s{sT0}, s{sidx}, 3072")
        a(f"s_add_u32 m0, s{sT0}, {WGT}")
        a(f"s_mul_i32 s{sT0}, s{sidx}, {8*12288}")
        for b in range(3):
            a(f"buffer_load_dwordx4 v{vWQ+b}, {sr(rWQ,4)}, s{sT0} offen offset:{1024*b} {qflags} lds")
    a(f"s_mov_b32 s{sT1}, s{sW}")
    for k in range(3):
        wq_group(sT1)
        a(f"s_add_u32 s{sT1}, s{sT1}, 3")
    a(f"s_cmp_lg_u32 s{sW}, 0")
    a(f"s_cbranch_scc1 {lwq_done}")
    wq_group(sT1)
    a(f"s_branch {lwq_done}")
    lab(lw3)
    c("wave 3: mark this workgroup's hand-off slots empty, reset a ticket counter, then raise the flag")
    for k in range(4):
        a(f"v_mov_b32 v{vT+k}, -1")
    a(f"v_mov_b32 v{vT+4}, 0")
    exec_first(48)
    a(f"buffer_store_dwordx4 {vr(vT,4)}, v{vDMA}, {sr(rWS,4)}, s{sRow} offen offset:{QP} sc1")
    exec_first(49)
    a(f"s_add_u32 s{sT0}, s{sRow}, {OP}")
    a(f"buffer_store_dwordx4 {vr(vT,4)}, v{vDMA}, {sr(rWS,4)}, s{sT0} offen sc1")
    a(f"s_cmp_ge_u32 s{sR}, 20")
    a("s_cbranch_scc1 L_clr_ffn")
    exec_first(8)
    a(f"s_mul_i32 s{sT0}, s{sM}, 2560")
    a(f"s_lshl_b32 s{sT1}, s{sR}, 7")
    a(f"s_add_u32 s{sT0}, s{sT0}, s{sT1}")
    a(f"s_add_u32 s{sT0}, s{sT0}, {YP}")
    a(f"buffer_store_dwordx4 {vr(vT,4)}, v{vDMA}, {sr(rWS,4)}, s{sT0} offen sc1")
    a("s_branch L_clr_ct")
    lab("L_clr_ffn")
    exec_all()
    a(f"s_mul_i32 s{sT0}, s{sF}, 2560")
    a(f"s_add_u32 s{sT0}, s{sT0}, {FP}")
    a(f"buffer_store_dwordx4 {vr(vT,4)}, v{vDMA}, {sr(rWS,4)}, s{sT0} offen sc1")
    a(f"buffer_store_dwordx4 {vr(vT,4)}, v{vDMA}, {sr(rWS,4)}, s{sT0} offen offset:1024 sc1")
    exec_first(32)
    a(f"buffer_store_dwordx4 {vr(vT,4)}, v{vDMA}, {sr(rWS,4)}, s{sT0} offen offset:2048 sc1")
    lab("L_clr_ct")
    exec_first(1)
    a(f"s_cmp_ge_u32 s{sM}, 4")
    a("s_cbranch_scc1 L_clr_flag")
    a(f"s_lshl_b32 s{sT0}, s{sH}, 2")
    a(f"s_add_u32 s{sT0}, s{sT0}, s{sM}")
    a(f"s_lshl_b32 s{sT0}, s{sT0}, 8")
    a(f"s_add_u32 s{sT0}, s{sT0}, {CT}")
    a(f"buffer_store_dword v{vT+4}, v{vDMA}, {sr(rWS,4)}, s{sT0} offen sc1")
    lab("L_clr_flag")
    a(f"v_mov_b32 v{vT+5}, 1")
    a("s_waitcnt vmcnt(0)")
    a(f"buffer_store_byte v{vT+5}, v{vDMA}, {sr(rDBG,4)}, s2 offen sc1")
    exec_all()
    lab(lwq_done)

    stamp("wqiss")
    c("K / V descriptors and first chunk")
    a(f"s_mul_i32 s{sT1}, s{sH}, {HEAD_BYTES}")
    srd(rK, pK, HEAD_BYTES, addlo=sT1)
    srd(rV, pV, HEAD_BYTES, addlo=sT1)
    a(f"s_mul_i32 s{sT0}, s{sW}, {2*CB}")
    for j in range(3):
        a(f"s_add_u32 s{sMK+j}, s{sT0}, {RING + 4096*j}")
        a(f"s_add_u32 s{sMV+j}, s{sT0}, {RING + CB + 4096*j}")
    a(f"v_and_b32 v{vT}, 15, v{vLane}")
    a(f"v_mul_u32_u24 v{vT}, 384, v{vT}")
    a(f"v_lshl_add_u32 v{vT}, v{vG}, 4, v{vT}")
    a(f"v_add_u32 v{vKA}, s{sMK}, v{vT}")
    vTR0, vTR1 = vU + 5, vU + 6
    a(f"v_lshrrev_b32 v{vTR0}, 2, v{vLane}")
    a(f"v_and_b32 v{vTR1}, 3, v{vLane}")
    a(f"v_lshlrev_b32 v{vTR1}, 3, v{vTR1}")
    a(f"v_mul_u32_u24 v{vT}, 384, v{vTR0}")
    a(f"v_add_u32 v{vT}, v{vT}, v{vTR1}")
    a(f"v_add_u32 v{vVA}, s{sMV}, v{vT}")
    vWA = vU + 7
    a(f"v_add_u32 v{vWA}, {WGT}, v{vT}")
    nst_ = nstat if dyn else 32
    a(f"s_lshl_b32 s{sChunk}, s{sW}, 8")
    a(f"s_mul_i32 s{sT0}, s{sM}, {nst_}")
    a(f"s_add_u32 s{sChunk}, s{sChunk}, s{sT0}")
    a(f"s_mul_i32 s{sOff}, s{sChunk}, {CB}")
    issue_chunk(rK, sMK)
    stamp("k0iss")
    issue_chunk(rV, sMV)
    stamp("v0iss")
    a(f"s_lshl_b32 s{sT0}, s{sH}, 2")
    a(f"s_add_u32 s{sT0}, s{sT0}, s{sW}")
    a(f"s_lshl_b32 s{sT0}, s{sT0}, 8")
    a(f"s_add_u32 s{sT0}, s{sT0}, {CT}")
    a(f"v_mov_b32 v{vCa}, s{sT0}")
    a(f"s_mov_b32 s{sLog}, {LOG2E:#x}")
    a(f"s_mov_b32 s{sSc}, {SCALE:#x}")

    c("---------------- layernorm of x ----------------")
    a("s_waitcnt vmcnt(33)")
    stamp("xland")
    vA0 = vE
    for i in range(5):
        unpack(vXS + i, vA0 + 2 * i, vA0 + 2 * i + 1)
    vMean, vVar, vRcp = vT, vT + 1, vT + 2
    a(f"v_add_f32 v{vMean}, v{vA0}, v{vA0+1}")
    for i in range(2, 10):
        a(f"v_add_f32 v{vMean}, v{vMean}, v{vA0+i}")
    allreduce("v_add_f32", [vMean], [vT + 3])
    a(f"v_mul_f32 v{vMean}, {R640:#x}, v{vMean}")
    for i in range(10):
        a(f"v_sub_f32 v{vA0+i}, v{vA0+i}, v{vMean}")
    a(f"v_mul_f32 v{vVar}, v{vA0}, v{vA0}")
    for i in range(1, 10):
        a(f"v_fmac_f32 v{vVar}, v{vA0+i}, v{vA0+i}")
    allreduce("v_add_f32", [vVar], [vT + 3])
    a(f"v_mul_f32 v{vVar}, {R640:#x}, v{vVar}")
    ln_finish(vMean, vVar, vRcp, vT + 3)
    for i in range(10):
        normalise_pair(vXL + i, vXL + i, vMean, vVar, vRcp, vT + 4)
    stamp("ln")
    a("s_waitcnt vmcnt(24)")
    a("s_barrier")
    stamp("wq")
    c("---------------- q partial: 80 rows x 3 column tiles per wave ----------------")
    a(f"s_mul_i32 s{sT0}, s{sW}, 96")
    a(f"v_add_u32 v{vWA}, s{sT0}, v{vWA}")
    for t in range(3):
        for b in range(5):
            a(f"ds_read_b64_tr_b16 {vr(vF + 12*t + 2*b, 2)}, v{vWA} offset:{b*6144 + t*32}")
    a("s_waitcnt lgkmcnt(0)")
    vD = vS
    for t in range(3):
        a(f"v_mfma_f32_16x16x32_bf16 {vr(vD+4*t,4)}, {vr(vF+12*t,4)}, {vr(vXL,4)}, 0")
    for t in range(3):
        a(f"v_mfma_f32_16x16x32_bf16 {vr(vD+4*t,4)}, {vr(vF+12*t+4,4)}, {vr(vXL+4,4)}, {vr(vD+4*t,4)}")
    nop(8)
    for t in range(3):
        a(f"v_mfma_f32_16x16x16_bf16 {vr(vD+4*t,4)}, {vr(vF+12*t+8,2)}, {vr(vXL+8,2)}, {vr(vD+4*t,4)}")
    a(f"s_mul_i32 s{sT0}, s{sW}, 192")
    a(f"s_add_u32 s{sT0}, s{sT0}, s{sRow}")
    a(f"v_lshlrev_b32 v{vT}, 4, v{vG}")
    nop(8)
    for r in range(12):
        a(f"v_min_u32 v{vD+r}, 0xfffffffe, v{vD+r}")
    exec_n0()
    for t in range(3):
        a(f"buffer_store_dwordx4 {vr(vD+4*t,4)}, v{vT}, {sr(rWS,4)}, s{sT0} offen offset:{QP + 64*t} sc1")
    exec_all()
    stamp("qpub")
    a(f"s_cmp_lg_u32 s{sW}, 3")
    a("s_cbranch_scc1 L_flags_ok")
    c("wave 3: wait until every workgroup has emptied its slots")
    exec_first(16)
    top = "L_flagpoll"
    a(f"s_mov_b32 s{sBound}, {bound}")
    lab(top)
    a(f"buffer_load_dwordx4 {vr(vT,4)}, v{vDMA}, {sr(rDBG,4)}, 0 offen sc1")
    a("s_waitcnt vmcnt(0)")
    a(f"v_and_b32 v{vT}, v{vT}, v{vT+1}")
    a(f"v_and_b32 v{vT+2}, v{vT+2}, v{vT+3}")
    a(f"v_and_b32 v{vT}, v{vT}, v{vT+2}")
    a(f"v_cmp_ne_u32 vcc, 0x01010101, v{vT}")
    nop(1)
    a("s_cbranch_vccz L_flags_seen")
    a("s_sleep 2")
    a(f"s_sub_u32 s{sBound}, s{sBound}, 1")
    a(f"s_cmp_lg_u32 s{sBound}, 0")
    a(f"s_cbranch_scc1 {top}")
    a("s_branch L_end")
    lab("L_flags_seen")
    exec_all()
    lab("L_flags_ok")
    a("s_barrier")
    stamp("flags")
    c("---------------- gather the head's q partials: wave w sums columns 48w..48w+47 ----------------")
    a(f"s_lshl_b32 s{sT1}, s{sH}, 13")
    a(f"s_mul_i32 s{sT0}, s{sW}, 192")
    a(f"s_add_u32 s{sT1}, s{sT1}, s{sT0}")
    a(f"s_add_u32 s{sT2}, s{sT1}, 4096")
    a(f"v_lshlrev_b32 v{vT}, 2, v{vLane}")
    exec_first(48)

    def qloads():
        for m in range(8):
            so = sT1 if m < 4 else sT2
            a(f"buffer_load_dword v{vF+m}, v{vT}, {sr(rWS,4)}, s{so} offen offset:{QP + 1024*(m%4)} sc1")
    poll(qloads, range(vF, vF + 8), vT + 1)
    stamp("qgot")
    a(f"v_add_f32 v{vF}, v{vF}, v{vF+1}")
    for m in range(2, 8):
        a(f"v_add_f32 v{vF}, v{vF}, v{vF+m}")
    a(f"v_cvt_pk_bf16_f32 v{vF}, v{vF}, v{vF}")
    a(f"s_mul_i32 s{sT0}, s{sW}, 96")
    a(f"s_add_u32 s{sT0}, s{sT0}, {QV}")
    a(f"v_lshl_add_u32 v{vT}, v{vLane}, 1, s{sT0}")
    a(f"ds_write_b16 v{vT}, v{vF}")
    exec_all()
    a("s_waitcnt lgkmcnt(0)")
    a("s_barrier")
    a(f"v_lshlrev_b32 v{vT}, 4, v{vG}")
    for j in range(6):
        a(f"ds_read_b128 {vr(vQ+4*j,4)}, v{vT} offset:{QV + 64*j}")
    c("---------------- weights of the tail -> LDS WGT (12 loads per wave in both roles) ----------------")
    a(f"s_cmp_ge_u32 s{sR}, 20")
    a("s_cbranch_scc1 L_wffn")
    srd(rWA, pWO, 6144 * 1280)
    a(f"v_mul_u32_u24 v{vT+1}, 1280, v{vTR0}")
    a(f"v_lshl_add_u32 v{vT+1}, v{vTR1}, 1, v{vT+1}")
    a(f"s_lshl_b32 s{sT0}, s{sM}, 2")
    a(f"s_add_u32 s{sT0}, s{sT0}, s{sW}")
    a(f"s_mul_i32 s{sT0}, s{sT0}, {192*1280}")
    a(f"s_lshl_b32 s{sT1}, s{sR}, 6")
    a(f"s_add_u32 s{sT0}, s{sT0}, s{sT1}")
    a(f"s_mul_i32 s{sT2}, s{sW}, 12288")
    for i in range(12):
        if i % 4 == 0:
            a(f"s_add_u32 m0, s{sT2}, {WGT + 1024*i}")
        a(f"s_add_u32 s{sT1}, s{sT0}, {20480*i - 1024*(i%4)}")
        a(f"buffer_load_dwordx4 v{vT+1}, {sr(rWA,4)}, s{sT1} offen offset:{1024*(i%4)} {wflags} lds")
    a("s_branch L_wdone")
    lab("L_wffn")
    srd(rWA, pW1, 640 * 3072)
    srd(rWB, pW2, 1536 * 1280)
    a(f"v_lshrrev_b32 v{vT+1}, 1, v{vLane}")
    a(f"v_mul_u32_u24 v{vT+1}, 3072, v{vT+1}")
    a(f"v_and_b32 v{vT+2}, 1, v{vLane}")
    a(f"v_lshl_add_u32 v{vT+1}, v{vT+2}, 4, v{vT+1}")
    a(f"s_mul_i32 s{sT0}, s{sW}, {160*3072}")
    a(f"s_lshl_b32 s{sT1}, s{sF}, 5")
    a(f"s_add_u32 s{sT0}, s{sT0}, s{sT1}")
    a(f"s_mul_i32 s{sT2}, s{sW}, 5120")
    for i in range(5):
        if i % 4 == 0:
            a(f"s_add_u32 m0, s{sT2}, {WGT + 1024*i}")
        a(f"s_add_u32 s{sT1}, s{sT0}, {32*3072*i - 1024*(i%4)}")
        a(f"buffer_load_dwordx4 v{vT+1}, {sr(rWA,4)}, s{sT1} offen offset:{1024*(i%4)} {wflags} lds")
    a(f"s_mul_i32 s{sT0}, s{sF}, 20480")
    a(f"s_add_u32 s{sT0}, s{sT0}, s{sT2}")
    for i in range(5):
        if i % 4 == 0:
            a(f"s_add_u32 m0, s{sT2}, {WGT + 20480 + 1024*i}")
            a(f"s_add_u32 s{sT1}, s{sT0}, {1024*i}")
        a(f"buffer_load_dwordx4 v{vDMA}, {sr(rWB,4)}, s{sT1} offen offset:{1024*(i%4)} {qflags} lds")
    c("x columns 160w + 4*lane (lanes < 40; others read zeros past the end or unused values)")
    a(f"s_mul_i32 s{sT0}, s{sW}, 320")
    a(f"v_lshlrev_b32 v{vT+1}, 3, v{vLane}")
    a(f"buffer_load_dwordx2 {vr(vXF,2)}, v{vT+1}, {sr(rX,4)}, s{sT0} offen")
    a(f"buffer_load_dwordx2 {vr(vXF,2)}, v{vT+1}, {sr(rX,4)}, s{sT0} offen")
    lab("L_wdone")
    c("---------------- streaming state ----------------")
    a(f"v_mov_b32 v{vML}, 0xff800000")
    a(f"v_mov_b32 v{vL}, 0")
    for r in range(48):
        a(f"v_mov_b32 v{vACC+r}, 0")
    a(f"s_mov_b32 s{sCnt}, {nst_ - 1}")
    stamp("qrdy")
    if dbgspan:
        a("s_memrealtime s[92:93]")
    a("s_waitcnt lgkmcnt(0)")

    def qk_phase():
        for u in range(2):
            for j in range(6):
                a(f"ds_read_b128 {vr(vF + 24*u + 4*j, 4)}, v{vKA} offset:{6144*u + 64*j}")
        for j in range(6):
            a(f"s_waitcnt lgkmcnt({11 - j})")
            cc = "0" if j == 0 else vr(vS, 4)
            a(f"v_mfma_f32_16x16x32_bf16 {vr(vS,4)}, {vr(vF+4*j,4)}, {vr(vQ+4*j,4)}, {cc}")
        for j in range(6):
            a(f"s_waitcnt lgkmcnt({5 - j})")
            cc = "0" if j == 0 else vr(vS + 4, 4)
            a(f"v_mfma_f32_16x16x32_bf16 {vr(vS+4,4)}, {vr(vF+24+4*j,4)}, {vr(vQ+4*j,4)}, {cc}")

    def softmax_phase():
        for k in range(4):
            a(f"v_cvt_pk_bf16_f32 v{vP+k}, v{vS+2*k}, v{vS+2*k+1}")
        for k in range(4):
            unpack(vP + k, vS + 2 * k, vS + 2 * k + 1)
        for k in range(8):
            a(f"v_mul_f32 v{vS+k}, s{sSc}, v{vS+k}")
        for k in range(4):
            a(f"v_cvt_pk_bf16_f32 v{vP+k}, v{vS+2*k}, v{vS+2*k+1}")
        for k in range(4):
            unpack(vP + k, vS + 2 * k, vS + 2 * k + 1)
        a(f"v_max3_f32 v{vT}, v{vS}, v{vS+1}, v{vS+2}")
        a(f"v_max3_f32 v{vT+1}, v{vS+3}, v{vS+4}, v{vS+5}")
        a(f"v_max3_f32 v{vT}, v{vT}, v{vS+6}, v{vS+7}")
        a(f"v_max_f32 v{vT}, v{vT}, v{vT+1}")
        xgroup("v_max_f32", [vT], [vT + 1])
        a(f"v_mul_f32 v{vT}, s{sLog}, v{vT}")
        a(f"v_cmp_gt_f32 vcc, v{vT}, v{vML}")
        skip = g.newlab("keep")
        nop(1)
        a(f"s_cbranch_vccz {skip}")
        a(f"v_sub_f32 v{vT+1}, v{vML}, v{vT}")
        a(f"v_exp_f32 v{vT+1}, v{vT+1}")
        a(f"v_mov_b32 v{vML}, v{vT}")
        a(f"v_mul_f32 v{vL}, v{vL}, v{vT+1}")
        for r in range(48):
            a(f"v_mul_f32 v{vACC+r}, v{vACC+r}, v{vT+1}")
        lab(skip)
        for k in range(8):
            a(f"v_fma_f32 v{vE+k}, v{vS+k}, s{sLog}, -v{vML}")
        for k in range(8):
            a(f"v_exp_f32 v{vE+k}, v{vE+k}")
        nop(1)
        for k in range(4):
            a(f"v_cvt_pk_bf16_f32 v{vP+k}, v{vE+2*k}, v{vE+2*k+1}")
        for k in range(4):
            a(f"v_add_f32 v{vE+k}, v{vE+k}, v{vE+4+k}")
        a(f"v_add_f32 v{vE}, v{vE}, v{vE+1}")
        a(f"v_add_f32 v{vE+2}, v{vE+2}, v{vE+3}")
        a(f"v_add_f32 v{vE}, v{vE}, v{vE+2}")
        a(f"v_add_f32 v{vL}, v{vL}, v{vE}")

    def pv_phase():
        for t in range(12):
            for u in range(2):
                a(f"ds_read_b64_tr_b16 {vr(vF + 4*t + 2*u, 2)}, v{vVA} offset:{6144*u + 32*t}")
            if t >= 6:
                tt = t - 6
                a(f"s_waitcnt lgkmcnt({2*(t - tt)})")
                a(f"v_mfma_f32_16x16x32_bf16 {vr(vACC+4*tt,4)}, {vr(vF+4*tt,4)}, {vr(vP,4)}, {vr(vACC+4*tt,4)}")
        for tt in range(6, 12):
            a(f"s_waitcnt lgkmcnt({2*(11 - tt)})")
            a(f"v_mfma_f32_16x16x32_bf16 {vr(vACC+4*tt,4)}, {vr(vF+4*tt,4)}, {vr(vP,4)}, {vr(vACC+4*tt,4)}")

    def ticket():
        a("s_mov_b64 exec, 1")
        a(f"v_mov_b32 v{vTk}, 1")
        a(f"buffer_atomic_add v{vTk}, v{vCa}, {sr(rWS,4)}, 0 offen sc0 sc1")
        exec_all()

    c("================ main loop: one 32-key chunk per trip ================")
    assert nst_ >= 2
    lab("L_static")
    a("s_waitcnt vmcnt(12)")
    qk_phase()
    a(f"s_add_u32 s{sOff}, s{sOff}, {CB}")
    issue_chunk(rK, sMK)
    softmax_phase()
    a("s_waitcnt vmcnt(12)")
    pv_phase()
    a(f"s_sub_u32 s{sCnt}, s{sCnt}, 1")
    a(f"s_cmp_eq_u32 s{sCnt}, 0")
    a("s_cbranch_scc1 L_static_last")
    issue_chunk(rV, sMV)
    a("s_branch L_static")
    lab("L_static_last")
    if dyn:
        ticket()
    issue_chunk(rV, sMV)
    stamp("static")
    if dyn:
        a(f"s_lshl_b32 s{sChunk}, s{sW}, 8")
        a(f"s_add_u32 s{sChunk}, s{sChunk}, {8*nst_}")
        lab("L_dyn")
        a("s_waitcnt vmcnt(12)")
        a(f"v_readfirstlane_b32 s{sT1}, v{vTk}")
        qk_phase()
        a(f"s_cmp_ge_u32 s{sT1}, {256 - 8*nst_}")
        a("s_cbranch_scc1 L_last")
        a(f"s_add_u32 s{sT1}, s{sT1}, s{sChunk}")
        a(f"s_mul_i32 s{sOff}, s{sT1}, {CB}")
        issue_chunk(rK, sMK)
        softmax_phase()
        a("s_waitcnt vmcnt(12)")
        pv_phase()
        ticket()
        issue_chunk(rV, sMV)
        if diag:
            a(f"s_add_u32 s{sCnt}, s{sCnt}, 1")
        a("s_branch L_dyn")
    else:
        a("s_waitcnt vmcnt(12)")
        qk_phase()
    lab("L_last")
    nop(8)
    softmax_phase()
    a("s_waitcnt vmcnt(0)")
    pv_phase()
    stamp("stream")
    if dbgspan:
        a("s_memrealtime s[94:95]")
        a("s_waitcnt lgkmcnt(0)")
        a(f"v_mov_b32 v{vE}, s90")
        a(f"v_mov_b32 v{vE+1}, s92")
        a(f"v_mov_b32 v{vE+2}, s94")
        a(f"v_mov_b32 v{vE+3}, 0")
        a(f"s_lshl_b32 s{sT0}, s2, 2")
        a(f"s_add_u32 s{sT0}, s{sT0}, s{sW}")
        a(f"s_lshl_b32 s{sT0}, s{sT0}, 4")
        a(f"s_add_u32 s{sT0}, s{sT0}, {ST}")
        exec_first(1)
        a(f"buffer_store_dwordx4 {vr(vE,4)}, v{vDMA}, {sr(rWS,4)}, s{sT0} offen sc1")
        exec_all()
        a("s_waitcnt vmcnt(0)")
    c("---------------- combine the four waves ----------------")
    xgroup("v_add_f32", [vL], [vT])
    a(f"s_lshl_b32 s{sT0}, s{sW}, 10")
    a(f"s_add_u32 s{sT0}, s{sT0}, {XO}")
    a(f"v_lshl_add_u32 v{vT}, v{vG}, 4, s{sT0}")
    a(f"v_mov_b32 v{vT+1}, s{sT0}")
    nop(4)
    exec_n0()
    a(f"ds_write_b64 v{vT+1}, {vr(vML,2)} offset:768")
    for t in range(12):
        a(f"ds_write_b128 v{vT}, {vr(vACC+4*t,4)} offset:{64*t}")
    exec_all()
    a("s_waitcnt lgkmcnt(0)")
    a("s_barrier")
    a(f"s_cmp_lg_u32 s{sW}, 0")
    a("s_cbranch_scc1 L_pub_done")
    a(f"v_mov_b32 v{vT}, 0")
    for w in range(4):
        a(f"ds_read_b64 {vr(vE+2*w,2)}, v{vT} offset:{XO + 1024*w + 768}")
    for w in range(4):
        a(f"ds_read_b128 {vr(vF+4*w,4)}, v{vDMA} offset:{XO + 1024*w}")
    a("s_waitcnt lgkmcnt(4)")
    a(f"v_max3_f32 v{vT}, v{vE}, v{vE+2}, v{vE+4}")
    a(f"v_max_f32 v{vT}, v{vT}, v{vE+6}")
    for w in range(4):
        a(f"v_sub_f32 v{vE+2*w}, v{vE+2*w}, v{vT}")
    for w in range(4):
        a(f"v_exp_f32 v{vE+2*w}, v{vE+2*w}")
    nop(1)
    a(f"v_mul_f32 v{vT+1}, v{vE}, v{vE+1}")
    for w in range(1, 4):
        a(f"v_fmac_f32 v{vT+1}, v{vE+2*w}, v{vE+2*w+1}")
    a("s_waitcnt lgkmcnt(0)")
    for r in range(4):
        a(f"v_mul_f32 v{vS+r}, v{vE}, v{vF+r}")
    for w in range(1, 4):
        for r in range(4):
            a(f"v_fmac_f32 v{vS+r}, v{vE+2*w}, v{vF+4*w+r}")
    a(f"s_bfm_b64 exec, 1, 48")
    a(f"v_mov_b32 v{vS}, v{vT}")
    a(f"v_mov_b32 v{vS+1}, v{vT+1}")
    a(f"v_mov_b32 v{vS+2}, 0")
    a(f"v_mov_b32 v{vS+3}, 0")
    exec_first(49)
    for r in range(4):
        a(f"v_min_u32 v{vS+r}, 0xfffffffe, v{vS+r}")
    a(f"s_add_u32 s{sT0}, s{sRow}, {OP}")
    a(f"buffer_store_dwordx4 {vr(vS,4)}, v{vDMA}, {sr(rWS,4)}, s{sT0} offen sc1")
    exec_all()
    lab("L_pub_done")
    stamp("opub")
    a(f"v_lshrrev_b32 v{vT+2}, 2, v{vLane}")
    a(f"v_and_b32 v{vT+3}, 3, v{vLane}")
    a(f"v_lshlrev_b32 v{vT+3}, 3, v{vT+3}")
    a(f"s_cmp_ge_u32 s{sR}, 20")
    a("s_cbranch_scc1 L_ffn")

    c("================ output projection role: heads 4m..4m+3, columns 32r..32r+31 ================")
    vWf = vACC
    a(f"s_mul_i32 s{sT0}, s{sW}, 12288")
    a(f"s_add_u32 s{sT0}, s{sT0}, {WGT}")
    a(f"v_lshl_add_u32 v{vT}, v{vT+2}, 6, v{vT+3}")
    a(f"v_add_u32 v{vT}, s{sT0}, v{vT}")
    for t in range(2):
        for b in range(12):
            a(f"ds_read_b64_tr_b16 {vr(vWf + 24*t + 2*b, 2)}, v{vT} offset:{1024*b + 32*t}")
            if (12 * t + b) % 12 == 11:
                a("s_waitcnt lgkmcnt(0)")
    a(f"s_lshl_b32 s{sT1}, s{sM}, 2")
    a(f"s_add_u32 s{sT1}, s{sT1}, s{sW}")
    a(f"s_lshl_b32 s{sT1}, s{sT1}, 13")
    a(f"s_add_u32 s{sT1}, s{sT1}, {OP}")
    a(f"s_add_u32 s{sT2}, s{sT1}, 4096")
    a(f"v_mov_b32 v{vT+4}, 768")
    vO, vMLs = vF, vF + 32
    exec_first(48)

    def aloads():
        for m in range(8):
            so = sT1 if m < 4 else sT2
            a(f"buffer_load_dwordx2 {vr(vMLs+2*m,2)}, v{vT+4}, {sr(rWS,4)}, s{so} offen offset:{1024*(m%4)} sc1")
            a(f"buffer_load_dwordx4 {vr(vO+4*m,4)}, v{vDMA}, {sr(rWS,4)}, s{so} offen offset:{1024*(m%4)} sc1")
    poll(aloads, range(vF, vF + 48), vT + 5)
    stamp("hopA")
    a(f"v_max3_f32 v{vT}, v{vMLs}, v{vMLs+2}, v{vMLs+4}")
    a(f"v_max3_f32 v{vT+1}, v{vMLs+6}, v{vMLs+8}, v{vMLs+10}")
    a(f"v_max3_f32 v{vT}, v{vT}, v{vMLs+12}, v{vMLs+14}")
    a(f"v_max_f32 v{vT}, v{vT}, v{vT+1}")
    for m in range(8):
        a(f"v_sub_f32 v{vMLs+2*m}, v{vMLs+2*m}, v{vT}")
    for m in range(8):
        a(f"v_exp_f32 v{vMLs+2*m}, v{vMLs+2*m}")
    nop(1)
    a(f"v_mul_f32 v{vT+1}, v{vMLs}, v{vMLs+1}")
    for m in range(1, 8):
        a(f"v_fmac_f32 v{vT+1}, v{vMLs+2*m}, v{vMLs+2*m+1}")
    a(f"v_rcp_f32 v{vT+1}, v{vT+1}")
    for r in range(4):
        a(f"v_mul_f32 v{vS+r}, v{vMLs}, v{vO+r}")
    for m in range(1, 8):
        for r in range(4):
            a(f"v_fmac_f32 v{vS+r}, v{vMLs+2*m}, v{vO+4*m+r}")
    for r in range(4):
        a(f"v_mul_f32 v{vS+r}, v{vS+r}, v{vT+1}")
    a(f"v_cvt_pk_bf16_f32 v{vS}, v{vS}, v{vS+1}")
    a(f"v_cvt_pk_bf16_f32 v{vS+1}, v{vS+2}, v{vS+3}")
    a(f"s_lshl_b32 s{sT0}, s{sW}, 9")
    a(f"s_add_u32 s{sT0}, s{sT0}, {OV}")
    a(f"v_lshl_add_u32 v{vT}, v{vLane}, 3, s{sT0}")
    a(f"ds_write_b64 v{vT}, {vr(vS,2)}")
    exec_all()
    a(f"v_lshl_add_u32 v{vT}, v{vG}, 3, s{sT0}")
    a("s_waitcnt lgkmcnt(0)")
    for b in range(12):
        a(f"ds_read_b64 {vr(vQ+2*b,2)}, v{vT} offset:{32*b}")
    for j in range(6):
        a(f"s_waitcnt lgkmcnt({10 - 2*j})")
        for t in range(2):
            cc = "0" if j == 0 else vr(vS + 4 * t, 4)
            a(f"v_mfma_f32_16x16x32_bf16 {vr(vS+4*t,4)}, {vr(vWf+24*t+4*j,4)}, {vr(vQ+4*j,4)}, {cc}")
    a(f"s_lshl_b32 s{sT0}, s{sW}, 7")
    a(f"s_add_u32 s{sT0}, s{sT0}, {XY}")
    a(f"v_lshl_add_u32 v{vT}, v{vG}, 4, s{sT0}")
    nop(6)
    exec_n0()
    for t in range(2):
        a(f"ds_write_b128 v{vT}, {vr(vS+4*t,4)} offset:{64*t}")
    exec_all()
    a("s_waitcnt lgkmcnt(0)")
    a("s_barrier")
    a(f"s_cmp_lg_u32 s{sW}, 0")
    a("s_cbranch_scc1 L_fin")
    exec_first(8)
    for w in range(4):
        a(f"ds_read_b128 {vr(vF+4*w,4)}, v{vDMA} offset:{XY + 128*w}")
    a(f"s_mul_i32 s{sT0}, s{sM}, 2560")
    a(f"s_lshl_b32 s{sT1}, s{sR}, 7")
    a(f"s_add_u32 s{sT0}, s{sT0}, s{sT1}")
    a(f"s_add_u32 s{sT0}, s{sT0}, {YP}")
    a("s_waitcnt lgkmcnt(0)")
    for r in range(4):
        a(f"v_add_f32 v{vF+r}, v{vF+r}, v{vF+4+r}")
        a(f"v_add_f32 v{vF+8+r}, v{vF+8+r}, v{vF+12+r}")
    for r in range(4):
        a(f"v_add_f32 v{vF+r}, v{vF+r}, v{vF+8+r}")
    for r in range(4):
        a(f"v_min_u32 v{vF+r}, 0xfffffffe, v{vF+r}")
    a(f"buffer_store_dwordx4 {vr(vF,4)}, v{vDMA}, {sr(rWS,4)}, s{sT0} offen sc1")
    exec_all()
    a("s_branch L_fin")

    c("================ FFN role: hidden columns 16f..16f+15 ================")
    lab("L_ffn")
    vW1, vW2 = vACC, vACC + 20
    a(f"s_mul_i32 s{sT0}, s{sW}, 5120")
    a(f"s_add_u32 s{sT0}, s{sT0}, {WGT}")
    a(f"v_lshl_add_u32 v{vT}, v{vLane}, 3, s{sT0}")
    for b in range(10):
        a(f"ds_read_b64_tr_b16 {vr(vW1+2*b,2)}, v{vT} offset:{512*b}")
    a(f"v_mul_u32_u24 v{vT+1}, 1280, v{vT+2}")
    a(f"s_mul_i32 s{sT0}, s{sW}, 320")
    a(f"s_add_u32 s{sT0}, s{sT0}, {WGT + 20480}")
    a(f"v_add3_u32 v{vT+1}, v{vT+1}, v{vT+3}, s{sT0}")
    a("s_waitcnt lgkmcnt(0)")
    for t in range(10):
        a(f"ds_read_b64_tr_b16 {vr(vW2+2*t,2)}, v{vT+1} offset:{32*t}")
    a(f"s_mul_i32 s{sT1}, s{sW}, 640")
    a(f"s_add_u32 s{sT1}, s{sT1}, {YP}")
    for k in range(1, 4):
        a(f"s_add_u32 s{sEx if k == 3 else sT1 + k}, s{sT1}, {5120*k}")
    ybase = [sT1, sT2, sT3, sEx]
    a(f"v_mov_b32 v{vS+4}, 0")
    a(f"v_mov_b32 v{vS+5}, 0")
    a("s_waitcnt lgkmcnt(0)")
    exec_first(40)

    def bloads():
        for m in range(8):
            a(f"buffer_load_dwordx4 {vr(vF+4*m,4)}, v{vDMA}, {sr(rWS,4)}, s{ybase[m//2]} offen offset:{2560*(m%2)} sc1")
    poll(bloads, range(vF, vF + 32), vT + 5)
    stamp("hopB")
    for m in range(1, 8):
        for r in range(4):
            a(f"v_add_f32 v{vF+r}, v{vF+r}, v{vF+4*m+r}")
    a(f"v_cvt_pk_bf16_f32 v{vF+4}, v{vF}, v{vF+1}")
    a(f"v_cvt_pk_bf16_f32 v{vF+5}, v{vF+2}, v{vF+3}")
    unpack(vF + 4, vF, vF + 1)
    unpack(vF + 5, vF + 2, vF + 3)
    unpack(vXF, vF + 4, vF + 5)
    unpack(vXF + 1, vF + 6, vF + 7)
    for r in range(4):
        a(f"v_add_f32 v{vF+r}, v{vF+r}, v{vF+4+r}")
    vH = vP
    a(f"v_cvt_pk_bf16_f32 v{vH}, v{vF}, v{vF+1}")
    a(f"v_cvt_pk_bf16_f32 v{vH+1}, v{vF+2}, v{vF+3}")
    a(f"s_mul_i32 s{sT0}, s{sW}, 320")
    a(f"v_lshl_add_u32 v{vT+4}, v{vLane}, 3, s{sT0}")
    a(f"ds_write_b64 v{vT+4}, {vr(vH,2)} offset:{HV}")
    unpack(vH, vF, vF + 1)
    unpack(vH + 1, vF + 2, vF + 3)
    nop(1)
    a(f"v_readfirstlane_b32 s{sT1}, v{vF}")
    nop(2)
    for r in range(4):
        a(f"v_subrev_f32 v{vF+r}, s{sT1}, v{vF+r}")
    a(f"v_add_f32 v{vS+4}, v{vF}, v{vF+1}")
    a(f"v_mul_f32 v{vS+5}, v{vF}, v{vF}")
    a(f"v_add_f32 v{vS+4}, v{vS+4}, v{vF+2}")
    a(f"v_fmac_f32 v{vS+5}, v{vF+1}, v{vF+1}")
    a(f"v_add_f32 v{vS+4}, v{vS+4}, v{vF+3}")
    a(f"v_fmac_f32 v{vS+5}, v{vF+2}, v{vF+2}")
    a(f"v_fmac_f32 v{vS+5}, v{vF+3}, v{vF+3}")
    exec_all()
    allreduce("v_add_f32", [vS + 4, vS + 5], [vT, vT + 1])
    a(f"v_mul_f32 v{vT}, {R160:#x}, v{vS+4}")
    a(f"v_fma_f32 v{vS+5}, -v{vT}, v{vS+4}, v{vS+5}")
    a(f"v_add_f32 v{vS+4}, s{sT1}, v{vT}")
    a(f"s_lshl_b32 s{sT2}, s{sW}, 3")
    a(f"v_mov_b32 v{vT}, s{sT2}")
    a(f"ds_write_b64 v{vT}, {vr(vS+4,2)} offset:{XS}")
    a(f"v_mov_b32 v{vT}, 0")
    a("s_waitcnt lgkmcnt(0)")
    a("s_barrier")
    a(f"ds_read_b128 {vr(vE,4)}, v{vT} offset:{XS}")
    a(f"ds_read_b128 {vr(vE+4,4)}, v{vT} offset:{XS+16}")
    a("s_waitcnt lgkmcnt(0)")
    a(f"v_add_f32 v{vMean}, v{vE}, v{vE+2}")
    a(f"v_add_f32 v{vT+3}, v{vE+4}, v{vE+6}")
    a(f"v_add_f32 v{vMean}, v{vMean}, v{vT+3}")
    a(f"v_mul_f32 v{vMean}, 0.25, v{vMean}") if False else a(f"v_mul_f32 v{vMean}, 0x3e800000, v{vMean}")
    a(f"v_add_f32 v{vVar}, v{vE+1}, v{vE+3}")
    a(f"v_add_f32 v{vT+3}, v{vE+5}, v{vE+7}")
    a(f"v_add_f32 v{vVar}, v{vVar}, v{vT+3}")
    for w in range(4):
        a(f"v_sub_f32 v{vE+2*w}, v{vE+2*w}, v{vMean}")
    a(f"v_mul_f32 v{vT+3}, v{vE}, v{vE}")
    for w in range(1, 4):
        a(f"v_fmac_f32 v{vT+3}, v{vE+2*w}, v{vE+2*w}")
    a(f"v_mul_f32 v{vVar}, {R640:#x}, v{vVar}")
    a(f"v_fmac_f32 v{vVar}, 0x3e800000, v{vT+3}")
    a(f"v_max_f32 v{vVar}, 0, v{vVar}")
    ln_finish(vMean, vVar, vRcp, vT + 3)
    normalise_pair(vH, vH + 2, vMean, vVar, vRcp, vE)
    normalise_pair(vH + 1, vH + 3, vMean, vVar, vRcp, vE + 4)
    exec_first(40)
    a(f"ds_write_b64 v{vT+4}, {vr(vH+2,2)} offset:{XN}")
    exec_all()
    a(f"v_lshl_add_u32 v{vT+5}, v{vG}, 3, s{sT0}")
    a("s_waitcnt lgkmcnt(0)")
    for b in range(10):
        a(f"ds_read_b64 {vr(vQ+2*b,2)}, v{vT+5} offset:{XN + 32*b}")
    for j in range(5):
        a(f"s_waitcnt lgkmcnt({8 - 2*j})")
        cc = "0" if j == 0 else vr(vS, 4)
        a(f"v_mfma_f32_16x16x32_bf16 {vr(vS,4)}, {vr(vW1+4*j,4)}, {vr(vQ+4*j,4)}, {cc}")
    a(f"s_lshl_b32 s{sT2}, s{sW}, 6")
    a(f"v_lshlrev_b32 v{vT+6}, 4, v{vG}")
    a(f"v_add_u32 v{vT+5}, s{sT2}, v{vT+6}")
    a(f"v_and_b32 v{vT+7}, 15, v{vLane}")
    nop(5)
    exec_n0()
    a(f"ds_write_b128 v{vT+5}, {vr(vS,4)} offset:{XH}")
    exec_all()
    a("s_waitcnt lgkmcnt(0)")
    a("s_barrier")
    for w in range(4):
        a(f"ds_read_b128 {vr(vF+4*w,4)}, v{vT+6} offset:{XH + 64*w}")
    a("s_waitcnt lgkmcnt(0)")
    for r in range(4):
        a(f"v_add_f32 v{vF+r}, v{vF+r}, v{vF+4+r}")
        a(f"v_add_f32 v{vF+8+r}, v{vF+8+r}, v{vF+12+r}")
    for r in range(4):
        a(f"v_add_f32 v{vF+r}, v{vF+r}, v{vF+8+r}")
    for r in range(4):
        a(f"v_max_f32 v{vF+r}, 0, v{vF+r}")
    a(f"v_cvt_pk_bf16_f32 v{vF+4}, v{vF}, v{vF+1}")
    a(f"v_cvt_pk_bf16_f32 v{vF+5}, v{vF+2}, v{vF+3}")
    c("tile t of w2 lands in result column n = t: operand is hidden where n == t, else 0")
    for t in range(10):
        a(f"v_cmp_eq_u32 vcc, {t}, v{vT+7}")
        nop(2)
        a(f"v_cndmask_b32 v{vQ+2*t}, 0, v{vF+4}, vcc")
        a(f"v_cndmask_b32 v{vQ+2*t+1}, 0, v{vF+5}, vcc")
    nop(2)
    for t in range(10):
        cc = "0" if t == 0 else vr(vS, 4)
        a(f"v_mfma_f32_16x16x16_bf16 {vr(vS,4)}, {vr(vW2+2*t,2)}, {vr(vQ+2*t,2)}, {cc}")
    a(f"v_lshl_add_u32 v{vT+5}, v{vT+7}, 6, v{vT+6}")
    a(f"s_mul_i32 s{sT1}, s{sF}, 2560")
    a(f"s_mul_i32 s{sT2}, s{sW}, 640")
    a(f"s_add_u32 s{sT1}, s{sT1}, s{sT2}")
    a(f"s_add_u32 s{sT1}, s{sT1}, {FP}")
    nop(4)
    for r in range(4):
        a(f"v_min_u32 v{vS+r}, 0xfffffffe, v{vS+r}")
    a("s_mov_b32 exec_lo, 0x03ff03ff")
    a("s_mov_b32 exec_hi, 0x03ff03ff")
    a(f"buffer_store_dwordx4 {vr(vS,4)}, v{vT+5}, {sr(rWS,4)}, s{sT1} offen sc1")
    exec_all()
    c("---------------- final reduction: workgroups with e = 3m + (r-20) < 20, r < 23 ----------------")
    a(f"s_cmp_ge_u32 s{sR}, 23")
    a("s_cbranch_scc1 L_fin")
    a(f"s_mul_i32 s{sF}, s{sM}, 3")
    a(f"s_add_u32 s{sF}, s{sF}, s{sR}")
    a(f"s_sub_u32 s{sF}, s{sF}, 20")
    a(f"s_cmp_ge_u32 s{sF}, 20")
    a("s_cbranch_scc1 L_fin")
    srd(rOUT, pOUT, 1280)
    a(f"v_lshrrev_b32 v{vT}, 3, v{vLane}")
    a(f"v_mul_u32_u24 v{vT}, 2560, v{vT}")
    a(f"v_and_b32 v{vT+1}, 7, v{vLane}")
    a(f"v_lshl_add_u32 v{vT}, v{vT+1}, 4, v{vT}")
    a(f"s_mul_i32 s{sT1}, s{sW}, {24*2560}")
    a(f"s_lshl_b32 s{sT2}, s{sF}, 7")
    a(f"s_add_u32 s{sT1}, s{sT1}, s{sT2}")
    a(f"s_add_u32 s{sT1}, s{sT1}, {FP}")
    a(f"s_add_u32 s{sT2}, s{sT1}, {8*2560}")
    a(f"s_add_u32 s{sT3}, s{sT1}, {16*2560}")

    def cloads():
        for k, so in enumerate((sT1, sT2, sT3)):
            a(f"buffer_load_dwordx4 {vr(vF+4*k,4)}, v{vT}, {sr(rWS,4)}, s{so} offen sc1")
    stamp("fpub")
    poll(cloads, range(vF, vF + 12), vT + 5)
    stamp("hopC")
    for r in range(4):
        a(f"v_add_f32 v{vF+r}, v{vF+r}, v{vF+4+r}")
    for r in range(4):
        a(f"v_add_f32 v{vF+r}, v{vF+r}, v{vF+8+r}")
    nop(1)
    for r in range(4):
        a(f"v_add_f32_dpp v{vF+r}, v{vF+r}, v{vF+r} row_ror:8 row_mask:0xf bank_mask:0xf")
    xgroup("v_add_f32", [vF, vF + 1, vF + 2, vF + 3], [vE, vE + 1, vE + 2, vE + 3])
    a(f"s_lshl_b32 s{sT0}, s{sW}, 7")
    a(f"v_add_u32 v{vT}, s{sT0}, v{vDMA}")
    exec_first(8)
    a(f"ds_write_b128 v{vT}, {vr(vF,4)} offset:{XF}")
    exec_all()
    a("s_waitcnt lgkmcnt(0)")
    a("s_barrier")
    a(f"s_cmp_lg_u32 s{sW}, 0")
    a("s_cbranch_scc1 L_fin")
    exec_first(8)
    a(f"s_lshl_b32 s{sT0}, s{sF}, 6")
    a(f"v_lshl_add_u32 v{vT}, v{vLane}, 3, s{sT0}")
    for w in range(4):
        a(f"ds_read_b128 {vr(vF+4*w,4)}, v{vDMA} offset:{XF + 128*w}")
    a(f"ds_read_b64 {vr(vE,2)}, v{vT} offset:{HV}")
    a("s_waitcnt lgkmcnt(0)")
    for r in range(4):
        a(f"v_add_f32 v{vF+r}, v{vF+r}, v{vF+4+r}")
        a(f"v_add_f32 v{vF+8+r}, v{vF+8+r}, v{vF+12+r}")
    for r in range(4):
        a(f"v_add_f32 v{vF+r}, v{vF+r}, v{vF+8+r}")
    a(f"v_cvt_pk_bf16_f32 v{vF+4}, v{vF}, v{vF+1}")
    a(f"v_cvt_pk_bf16_f32 v{vF+5}, v{vF+2}, v{vF+3}")
    unpack(vF + 4, vF, vF + 1)
    unpack(vF + 5, vF + 2, vF + 3)
    unpack(vE, vF + 4, vF + 5)
    unpack(vE + 1, vF + 6, vF + 7)
    for r in range(4):
        a(f"v_add_f32 v{vF+r}, v{vF+r}, v{vF+4+r}")
    if perturb:
        a(f"s_cmp_eq_u32 s{sF}, 0")
        a(f"s_cselect_b32 s{sT0}, {perturb:#x}, 0")
        a(f"v_add_f32 v{vF}, s{sT0}, v{vF}")
    a(f"v_cvt_pk_bf16_f32 v{vF+4}, v{vF}, v{vF+1}")
    a(f"v_cvt_pk_bf16_f32 v{vF+5}, v{vF+2}, v{vF+3}")
    a(f"buffer_store_dwordx2 {vr(vF+4,2)}, v{vT}, {sr(rOUT,4)}, 0 offen")
    exec_all()
    if dbgspan:
        a(f"s_cmp_lg_u32 s{sF}, 0")
        a("s_cbranch_scc1 L_fin")
        a("s_waitcnt vmcnt(0)")
        a("s_memrealtime s[96:97]")
        for k in range(16):
            a(f"s_mov_b32 s{sT0}, {ST + 1024*k}")
            a(f"buffer_load_dwordx4 {vr(vACC+4*(k%12) if k < 12 else vF + 4*(k-12),4)}, v{vDMA}, {sr(rWS,4)}, s{sT0} offen sc1")
        a("s_waitcnt vmcnt(0) lgkmcnt(0)")
        regs = [vACC + 4*k for k in range(12)] + [vF + 4*k for k in range(4)]
        a(f"v_mov_b32 v{vE}, v{regs[0]}")
        a(f"v_mov_b32 v{vE+1}, v{regs[0]}")
        a(f"v_mov_b32 v{vE+2}, v{regs[0]+1}")
        a(f"v_mov_b32 v{vE+3}, v{regs[0]+2}")
        a(f"v_mov_b32 v{vE+4}, v{regs[0]+2}")
        for r in regs[1:]:
            a(f"v_min_u32 v{vE}, v{vE}, v{r}")
            a(f"v_max_u32 v{vE+1}, v{vE+1}, v{r}")
            a(f"v_max_u32 v{vE+2}, v{vE+2}, v{r+1}")
            a(f"v_min_u32 v{vE+3}, v{vE+3}, v{r+2}")
            a(f"v_max_u32 v{vE+4}, v{vE+4}, v{r+2}")
        allreduce("v_min_u32", [vE, vE+3], [vT, vT+1])
        allreduce("v_max_u32", [vE+1, vE+2, vE+4], [vT, vT+1, vT+2])
        a(f"v_mov_b32 v{vE+5}, s96")
        for k in range(1, 6):
            a(f"v_sub_u32 v{vE+k}, v{vE+k}, v{vE}")
        exec_first(1)
        a(f"buffer_store_dwordx4 {vr(vE+2,4)}, v{vDMA}, {sr(rDBG,4)}, 0 offen")
        a(f"buffer_store_dword v{vE+1}, v{vDMA}, {sr(rDBG,4)}, 0 offen offset:16")
        exec_all()
    lab("L_fin")
    if diag:
        a("s_waitcnt vmcnt(0)")
        stamp("end")
        a("s_getreg_b32 s3, hwreg(HW_REG_XCC_ID)")
        a(f"v_writelane_b32 v{vSt}, s3, 30")
        a(f"v_writelane_b32 v{vSt}, s{sCnt}, 31")
        a(f"s_lshl_b32 s{sT0}, s2, 2")
        a(f"s_add_u32 s{sT0}, s{sT0}, s{sW}")
        a(f"s_lshl_b32 s{sT0}, s{sT0}, 7")
        a(f"s_add_u32 s{sT0}, s{sT0}, {ST}")
        a(f"v_lshlrev_b32 v{vT+1}, 2, v{vLane}")
        exec_first(32)
        a(f"buffer_store_dword v{vSt}, v{vT+1}, {sr(rWS,4)}, s{sT0} offen")
    lab("L_end")
    a("s_endpgm")

    out = [HEADER + f"; @launch grid=(256,1,1) block=(256,1,1) lds={LDS_BYTES}",
           '.amdgcn_target "amdgcn-amd-amdhsa--gfx950"', ".text", f".globl {name}", ".p2align 8",
           f".type {name},@function", f"{name}:"]
    out += g.L
    out += ['.section .rodata,"a"', ".p2align 6", f".amdhsa_kernel {name}",
            f"  .amdhsa_next_free_vgpr {NV}", "  .amdhsa_next_free_sgpr 102", f"  .amdhsa_accum_offset {NV}",
            "  .amdhsa_group_segment_fixed_size 0", "  .amdhsa_kernarg_size 88", "  .amdhsa_user_sgpr_count 2",
            "  .amdhsa_user_sgpr_kernarg_segment_ptr 1", "  .amdhsa_system_sgpr_workgroup_id_x 1",
            "  .amdhsa_float_denorm_mode_32 3",
            ".end_amdhsa_kernel"]
    return "\n".join(out) + "\n"


if __name__ == "__main__":
    kw = json.loads(sys.argv[1]) if len(sys.argv) > 1 else {}
    sys.stdout.write(gen(**kw))
```

```python
import sys, json

KNAME = "sequential_preLN__mha_block_cached__dense_activation_relu__decode_kernel"

HEADER = """; Kernarg layout for this problem (88 bytes, ptrs only, base s[0:1]):
"""

QP = 0x000000
OP = 0x040000
YP = 0x080000
FP = 0x090000
CT = 0x0D0000
ST = 0x100000
WS_REC = 0x200000

MISC = 0
WGT = 0x3000
RING = 0xF000
QV = MISC
XO = MISC + 0x200
OV = MISC + 0x1200
XY = MISC + 0x1A00
HV = MISC + 0x1C00
XS = MISC + 0x2200
XN = MISC + 0x2300
XH = MISC + 0x2900
XF = MISC + 0x2A00
LDS_BYTES = RING + 0x18000

SCALE = 0x3d93cd3a
LOG2E = 0x3fb8aa3b
EPS = 0x3727c5ac
R640 = 0x3acccccd
R160 = 0x3bcccccd
HEAD_BYTES = 12582912
CB = 12288


class G:
    def __init__(self):
        self.L = []
        self.nlabel = 0

    def a(self, s):
        self.L.append("  " + s)

    def lab(self, s):
        self.L.append(s + ":")

    def c(self, s):
        self.L.append("  ; " + s)

    def newlab(self, p):
        self.nlabel += 1
        return f"L_{p}{self.nlabel}"

    def nop(self, n):
        while n > 0:
            k = min(n, 16)
            self.a(f"s_nop {k-1}")
            n -= k


def vr(b, n=1):
    return f"v{b}" if n == 1 else f"v[{b}:{b+n-1}]"


def sr(b, n=1):
    return f"s{b}" if n == 1 else f"s[{b}:{b+n-1}]"


def gen(name=KNAME, kvflags="nt", wflags="", qflags="nt", sched=(24,4,2,1,1), hstag=3, rot=1, aflags='sc0 sc1', diag=0, bound=1 << 20,
        sleep=1, dbgspan=0, perturb=0):
    g = G()
    a, lab, c, nop = g.a, g.lab, g.c, g.nop
    pX, pK, pV, pWQ, pWO, pW1, pW2, pOUT, pDBG, pWS = 4, 6, 8, 10, 12, 16, 18, 20, 22, 24
    rK, rV, rWS, rWQ, rX, rDBG, rWA, rWB, rOUT = 28, 32, 36, 40, 44, 48, 52, 56, 60
    sW, sH, sM, sR, sRow, sRole, sF = 64, 65, 66, 67, 68, 69, 70
    sT0, sT1, sT2, sT3 = 71, 72, 73, 74
    sMK, sMV = 75, 78
    sOff, sCnt, sBound, sChunk = 81, 82, 83, 84
    sEx = 86
    sLog, sSc = 88, 89
    sStamp = 90
    sTm = 100
    vLane, vDMA, vKA, vVA, vG, vT = 1, 2, 3, 4, 5, 6
    vML, vL, vTk, vCa = 16, 17, 18, 19
    vXF = 20
    vS = 24
    vP = 32
    vE = 36
    vQ = 44
    vF = 68
    vACC = 116
    vU = 164
    vWF = 212
    NV = 216

    vSt = 22
    global STAMPS
    STAMPS = []

    def stamp(nm):
        if not diag or (diag == 2 and nm not in ("stream", "end")):
            return
        if nm not in STAMPS:
            STAMPS.append(nm)
        i = STAMPS.index(nm)
        assert i < 30
        a(f"s_memrealtime {sr(sTm,2)}")
        a("s_waitcnt lgkmcnt(0)")
        a(f"v_writelane_b32 v{vSt}, s{sTm}, {i}")

    def srd(d, p, n, addlo=None):
        if addlo is None:
            a(f"s_mov_b32 s{d}, s{p}")
            a(f"s_and_b32 s{d+1}, s{p+1}, 0xffff")
        else:
            a(f"s_add_u32 s{d}, s{p}, s{addlo}")
            a(f"s_addc_u32 s{d+1}, s{p+1}, 0")
            a(f"s_and_b32 s{d+1}, s{d+1}, 0xffff")
        a(f"s_mov_b32 s{d+2}, {n}")
        a(f"s_mov_b32 s{d+3}, 0x20000")

    def exec_first(n):
        a(f"s_bfm_b64 exec, {n}, 0")

    def exec_all():
        a("s_mov_b64 exec, -1")

    def exec_n0():
        a("s_mov_b32 exec_lo, 0x00010001")
        a("s_mov_b32 exec_hi, 0x00010001")

    def allreduce(op, regs, tmps):
        pad = max(0, 2 - (len(regs) - 1))
        nop(2)
        for rr in (8, 4, 2, 1):
            for r in regs:
                a(f"{op}_dpp v{r}, v{r}, v{r} row_ror:{rr} row_mask:0xf bank_mask:0xf")
            nop(pad)
        xgroup(op, regs, tmps)

    def xgroup(op, regs, tmps):
        for sw in ("v_permlane16_swap_b32", "v_permlane32_swap_b32"):
            for r, t in zip(regs, tmps):
                a(f"v_mov_b32 v{t}, v{r}")
            nop(2)
            for r, t in zip(regs, tmps):
                a(f"{sw} v{r}, v{t}")
            for r, t in zip(regs, tmps):
                a(f"{op} v{r}, v{r}, v{t}")

    def unpack(src, lo, hi):
        a(f"v_lshlrev_b32 v{lo}, 16, v{src}")
        a(f"v_and_b32 v{hi}, 0xffff0000, v{src}")

    def round_bf16(r, t):
        a(f"v_cvt_pk_bf16_f32 v{t}, v{r}, v{r}")
        a(f"v_and_b32 v{r}, 0xffff0000, v{t}")

    def ln_finish(vMean, vVar, vRcp, t):
        round_bf16(vMean, t)
        round_bf16(vVar, t)
        a(f"v_add_f32 v{vVar}, {EPS:#x}, v{vVar}")
        round_bf16(vVar, t)
        a(f"v_sqrt_f32 v{vVar}, v{vVar}")
        nop(1)
        round_bf16(vVar, t)
        a(f"v_rcp_f32 v{vRcp}, v{vVar}")
        nop(1)

    def normalise_pair(src, dst, vMean, vDen, vRcp, t):
        unpack(src, t, t + 1)
        a(f"v_sub_f32 v{t}, v{t}, v{vMean}")
        a(f"v_sub_f32 v{t+1}, v{t+1}, v{vMean}")
        a(f"v_cvt_pk_bf16_f32 v{dst}, v{t}, v{t+1}")
        unpack(dst, t, t + 1)
        for k in (0, 1):
            a(f"v_mul_f32 v{t+2+k}, v{t+k}, v{vRcp}")
        for k in (0, 1):
            a(f"v_fma_f32 v{t+k}, -v{t+2+k}, v{vDen}, v{t+k}")
        for k in (0, 1):
            a(f"v_fma_f32 v{t+2+k}, v{t+k}, v{vRcp}, v{t+2+k}")
        a(f"v_cvt_pk_bf16_f32 v{dst}, v{t+2}, v{t+3}")

    def any_marker(regs, t):
        regs = list(regs)
        a(f"v_max3_u32 v{t}, v{regs[0]}, v{regs[1]}, v{regs[2]}")
        regs = regs[3:]
        while len(regs) >= 2:
            a(f"v_max3_u32 v{t}, v{t}, v{regs[0]}, v{regs[1]}")
            regs = regs[2:]
        if regs:
            a(f"v_max_u32 v{t}, v{t}, v{regs[0]}")
        a(f"v_cmp_eq_u32 vcc, -1, v{t}")

    def poll(loads, regs, t, pre_wait=0):
        top, done = g.newlab("poll"), g.newlab("got")
        a(f"s_mov_b32 s{sBound}, {bound}")
        lab(top)
        loads()
        a("s_waitcnt vmcnt(0)")
        any_marker(regs, t)
        nop(1)
        a(f"s_cbranch_vccz {done}")
        if sleep:
            a(f"s_sleep {sleep}")
        a(f"s_sub_u32 s{sBound}, s{sBound}, 1")
        a(f"s_cmp_lg_u32 s{sBound}, 0")
        a(f"s_cbranch_scc1 {top}")
        a("s_branch L_end")
        lab(done)

    def issue_chunk(r, m0base):
        for j in range(3):
            a(f"s_mov_b32 m0, s{m0base+j}")
            if j == 0:
                a(f"s_mov_b32 s{sT0}, s{sOff}")
            else:
                a(f"s_add_u32 s{sT0}, s{sOff}, {4096*j}")
            for k in range(4):
                a(f"buffer_load_dwordx4 v{vDMA}, {sr(r,4)}, s{sT0} offen offset:{1024*k} {kvflags} lds")

    c("---------------- entry ----------------")
    a("s_cmp_ge_u32 s2, 256")
    a("s_cbranch_scc1 L_end")
    if diag:
        a(f"s_memrealtime {sr(sTm,2)}")
    if dbgspan:
        a("s_memrealtime s[96:97]")
    a("s_load_dwordx16 s[4:19], s[0:1], 0")
    a("s_load_dwordx4 s[20:23], s[0:1], 64")
    a("s_load_dwordx2 s[24:25], s[0:1], 80")
    a(f"v_lshrrev_b32 v{vT}, 6, v0")
    a(f"v_and_b32 v{vLane}, 63, v0")
    a(f"v_readfirstlane_b32 s{sW}, v{vT}")
    a(f"v_lshlrev_b32 v{vDMA}, 4, v{vLane}")
    a(f"v_lshrrev_b32 v{vG}, 4, v{vLane}")
    a(f"s_and_b32 s{sM}, s2, 7")
    a(f"s_lshr_b32 s{sR}, s2, 3")
    a(f"s_mul_i32 s{sT0}, s{sM}, {rot}")
    a(f"s_add_u32 s{sH}, s{sR}, s{sT0}")
    a(f"s_and_b32 s{sH}, s{sH}, 31")
    a(f"s_lshl_b32 s{sRow}, s{sH}, 3")
    a(f"s_add_u32 s{sRow}, s{sRow}, s{sM}")
    a(f"s_mul_i32 s{sF}, s{sM}, 12")
    a(f"s_add_u32 s{sF}, s{sF}, s{sR}")
    a(f"s_sub_u32 s{sF}, s{sF}, 20")
    vWQ = vU
    for b in range(3):
        a(f"v_add_u32 v{vT}, {64*b}, v{vLane}")
        a(f"v_mul_u32_u24 v{vT}, 2731, v{vT}")
        a(f"v_lshrrev_b32 v{vT}, 16, v{vT}")
        a(f"v_mul_u32_u24 v{vT}, 11904, v{vT}")
        a(f"v_add_u32 v{vWQ+b}, v{vT}, v{vDMA}")
    vXA, vXB = vU + 3, vU + 4
    a(f"v_lshlrev_b32 v{vXA}, 2, v{vLane}")
    a(f"s_mul_i32 s{sT1}, s{sM}, 160")
    a(f"v_lshl_add_u32 v{vXB}, v{vG}, 3, s{sT1}")
    a("s_waitcnt lgkmcnt(0)")
    if diag:
        a(f"v_mov_b32 v{vSt}, 0")
        a(f"v_writelane_b32 v{vSt}, s{sTm}, 0")
        STAMPS.append("entry")
    stamp("karg")
    srd(rX, pX, 1280)
    srd(rWS, pWS, WS_REC)
    srd(rDBG, pDBG, 256)
    a(f"s_mul_i32 s{sT0}, s{sM}, {80*12288}")
    a(f"s_mul_i32 s{sT2}, s{sH}, 384")
    a(f"s_add_u32 s{sT0}, s{sT0}, s{sT2}")
    srd(rWQ, pWQ, 79 * 12288 + 384, addlo=sT0)
    vXS = vU + 8
    vXL = vU + 14
    for i in range(5):
        a(f"buffer_load_dword v{vXS+i}, v{vXA}, {sr(rX,4)}, 0 offen offset:{256*i}")
    for b in range(5):
        a(f"buffer_load_dwordx2 {vr(vXL+2*b,2)}, v{vXB}, {sr(rX,4)}, 0 offen offset:{32*b}")
    a(f"s_lshl_b32 s{sRow}, s{sRow}, 10")
    lw3, lwq_done = "L_w3", "L_wq_done"
    a(f"s_cmp_eq_u32 s{sW}, 3")
    a(f"s_cbranch_scc1 {lw3}")
    c("waves 0..2: wq slice (80 rows x 384 B) -> LDS WGT")

    def wq_group(sidx):
        a(f"s_mul_i32 s{sT0}, s{sidx}, 3072")
        a(f"s_add_u32 m0, s{sT0}, {WGT}")
        a(f"s_mul_i32 s{sT0}, s{sidx}, {8*12288}")
        for b in range(3):
            a(f"buffer_load_dwordx4 v{vWQ+b}, {sr(rWQ,4)}, s{sT0} offen offset:{1024*b} {qflags} lds")
    a(f"s_mov_b32 s{sT1}, s{sW}")
    for k in range(3):
        wq_group(sT1)
        a(f"s_add_u32 s{sT1}, s{sT1}, 3")
    a(f"s_cmp_lg_u32 s{sW}, 0")
    a(f"s_cbranch_scc1 {lwq_done}")
    wq_group(sT1)
    a(f"s_branch {lwq_done}")
    lab(lw3)
    c("wave 3: mark this workgroup's hand-off slots empty, reset a ticket counter, then raise the flag")
    for k in range(4):
        a(f"v_mov_b32 v{vT+k}, -1")
    a(f"v_mov_b32 v{vT+4}, 0")
    exec_first(48)
    a(f"buffer_store_dwordx4 {vr(vT,4)}, v{vDMA}, {sr(rWS,4)}, s{sRow} offen offset:{QP} sc1")
    exec_first(49)
    a(f"s_add_u32 s{sT0}, s{sRow}, {OP}")
    a(f"buffer_store_dwordx4 {vr(vT,4)}, v{vDMA}, {sr(rWS,4)}, s{sT0} offen sc1")
    a(f"s_cmp_ge_u32 s{sR}, 20")
    a("s_cbranch_scc1 L_clr_ffn")
    exec_first(8)
    a(f"s_mul_i32 s{sT0}, s{sM}, 2560")
    a(f"s_lshl_b32 s{sT1}, s{sR}, 7")
    a(f"s_add_u32 s{sT0}, s{sT0}, s{sT1}")
    a(f"s_add_u32 s{sT0}, s{sT0}, {YP}")
    a(f"buffer_store_dwordx4 {vr(vT,4)}, v{vDMA}, {sr(rWS,4)}, s{sT0} offen sc1")
    a("s_branch L_clr_ct")
    lab("L_clr_ffn")
    exec_all()
    a(f"s_mul_i32 s{sT0}, s{sF}, 2560")
    a(f"s_add_u32 s{sT0}, s{sT0}, {FP}")
    a(f"buffer_store_dwordx4 {vr(vT,4)}, v{vDMA}, {sr(rWS,4)}, s{sT0} offen sc1")
    a(f"buffer_store_dwordx4 {vr(vT,4)}, v{vDMA}, {sr(rWS,4)}, s{sT0} offen offset:1024 sc1")
    exec_first(32)
    a(f"buffer_store_dwordx4 {vr(vT,4)}, v{vDMA}, {sr(rWS,4)}, s{sT0} offen offset:2048 sc1")
    lab("L_clr_ct")
    exec_first(1)
    a(f"s_cmp_ge_u32 s{sM}, 4")
    a("s_cbranch_scc1 L_clr_flag")
    a(f"s_lshl_b32 s{sT0}, s{sH}, 2")
    a(f"s_add_u32 s{sT0}, s{sT0}, s{sM}")
    a(f"s_lshl_b32 s{sT0}, s{sT0}, 8")
    a(f"s_add_u32 s{sT0}, s{sT0}, {CT}")
    a(f"buffer_store_dword v{vT+4}, v{vDMA}, {sr(rWS,4)}, s{sT0} offen sc1")
    lab("L_clr_flag")
    a(f"v_mov_b32 v{vT+5}, 1")
    a("s_waitcnt vmcnt(0)")
    a(f"buffer_store_byte v{vT+5}, v{vDMA}, {sr(rDBG,4)}, s2 offen sc1")
    exec_all()
    lab(lwq_done)

    stamp("wqiss")
    c("K / V descriptors and first chunk")
    a(f"s_mul_i32 s{sT1}, s{sH}, {HEAD_BYTES}")
    srd(rK, pK, HEAD_BYTES, addlo=sT1)
    srd(rV, pV, HEAD_BYTES, addlo=sT1)
    a(f"s_mul_i32 s{sT0}, s{sW}, {2*CB}")
    for j in range(3):
        a(f"s_add_u32 s{sMK+j}, s{sT0}, {RING + 4096*j}")
        a(f"s_add_u32 s{sMV+j}, s{sT0}, {RING + CB + 4096*j}")
    a(f"v_and_b32 v{vT}, 15, v{vLane}")
    a(f"v_mul_u32_u24 v{vT}, 384, v{vT}")
    a(f"v_lshl_add_u32 v{vT}, v{vG}, 4, v{vT}")
    a(f"v_add_u32 v{vKA}, s{sMK}, v{vT}")
    vTR0, vTR1 = vU + 5, vU + 6
    a(f"v_lshrrev_b32 v{vTR0}, 2, v{vLane}")
    a(f"v_and_b32 v{vTR1}, 3, v{vLane}")
    a(f"v_lshlrev_b32 v{vTR1}, 3, v{vTR1}")
    a(f"v_mul_u32_u24 v{vT}, 384, v{vTR0}")
    a(f"v_add_u32 v{vT}, v{vT}, v{vTR1}")
    a(f"v_add_u32 v{vVA}, s{sMV}, v{vT}")
    vWA = vU + 7
    a(f"v_add_u32 v{vWA}, {WGT}, v{vT}")
    assert sum(sched) == 32 and len(sched) <= 9
    sRnd, sLeft, sJW, sHs = 84, 85, 90, 91
    sTabS, sTabN = 92, 94
    acc_, ts_, tn_ = sched[0], 0, 0
    for i_, n_ in enumerate(sched[1:]):
        ts_ |= acc_ << (8 * i_); tn_ |= n_ << (8 * i_); acc_ += n_
    nblk = len(sched) - 1
    a(f"s_mov_b32 s{sTabS}, {ts_ & 0xffffffff:#x}")
    a(f"s_mov_b32 s{sTabS+1}, {ts_ >> 32:#x}")
    a(f"s_mov_b32 s{sTabN}, {tn_ & 0xffffffff:#x}")
    a(f"s_mov_b32 s{sTabN+1}, {tn_ >> 32:#x}")
    a(f"s_mul_i32 s{sHs}, s{sH}, {hstag}")
    a(f"s_lshl_b32 s{sJW}, s{sM}, 2")
    a(f"s_add_u32 s{sJW}, s{sJW}, s{sW}")
    a(f"s_mul_i32 s{sJW}, s{sJW}, {CB}")
    a(f"s_mov_b32 s{sRnd}, 0")
    a(f"s_mov_b32 s{sLeft}, {sched[0]}")

    def next_off():
        a(f"s_add_u32 s{sOff}, s{sRnd}, s{sHs}")
        a(f"s_and_b32 s{sOff}, s{sOff}, 31")
        a(f"s_mul_i32 s{sOff}, s{sOff}, {32*CB}")
        a(f"s_add_u32 s{sOff}, s{sOff}, s{sJW}")
        a(f"s_add_u32 s{sRnd}, s{sRnd}, 1")
        a(f"s_sub_u32 s{sLeft}, s{sLeft}, 1")
    next_off()
    issue_chunk(rK, sMK)
    stamp("k0iss")
    issue_chunk(rV, sMV)
    stamp("v0iss")
    a(f"s_lshl_b32 s{sT0}, s{sH}, 2")
    a(f"s_add_u32 s{sT0}, s{sT0}, s{sW}")
    a(f"s_lshl_b32 s{sT0}, s{sT0}, 8")
    a(f"s_add_u32 s{sT0}, s{sT0}, {CT}")
    a(f"v_mov_b32 v{vCa}, s{sT0}")
    a(f"s_mov_b32 s{sLog}, {LOG2E:#x}")
    a(f"s_mov_b32 s{sSc}, {SCALE:#x}")

    c("---------------- layernorm of x ----------------")
    a("s_waitcnt vmcnt(33)")
    stamp("xland")
    vA0 = vE
    for i in range(5):
        unpack(vXS + i, vA0 + 2 * i, vA0 + 2 * i + 1)
    vMean, vVar, vRcp = vT, vT + 1, vT + 2
    a(f"v_add_f32 v{vMean}, v{vA0}, v{vA0+1}")
    for i in range(2, 10):
        a(f"v_add_f32 v{vMean}, v{vMean}, v{vA0+i}")
    allreduce("v_add_f32", [vMean], [vT + 3])
    a(f"v_mul_f32 v{vMean}, {R640:#x}, v{vMean}")
    for i in range(10):
        a(f"v_sub_f32 v{vA0+i}, v{vA0+i}, v{vMean}")
    a(f"v_mul_f32 v{vVar}, v{vA0}, v{vA0}")
    for i in range(1, 10):
        a(f"v_fmac_f32 v{vVar}, v{vA0+i}, v{vA0+i}")
    allreduce("v_add_f32", [vVar], [vT + 3])
    a(f"v_mul_f32 v{vVar}, {R640:#x}, v{vVar}")
    ln_finish(vMean, vVar, vRcp, vT + 3)
    for i in range(10):
        normalise_pair(vXL + i, vXL + i, vMean, vVar, vRcp, vT + 4)
    stamp("ln")
    a("s_waitcnt vmcnt(24)")
    a("s_barrier")
    stamp("wq")
    c("---------------- q partial: 80 rows x 3 column tiles per wave ----------------")
    a(f"s_mul_i32 s{sT0}, s{sW}, 96")
    a(f"v_add_u32 v{vWA}, s{sT0}, v{vWA}")
    for t in range(3):
        for b in range(5):
            a(f"ds_read_b64_tr_b16 {vr(vF + 12*t + 2*b, 2)}, v{vWA} offset:{b*6144 + t*32}")
    a("s_waitcnt lgkmcnt(0)")
    vD = vS
    for t in range(3):
        a(f"v_mfma_f32_16x16x32_bf16 {vr(vD+4*t,4)}, {vr(vF+12*t,4)}, {vr(vXL,4)}, 0")
    for t in range(3):
        a(f"v_mfma_f32_16x16x32_bf16 {vr(vD+4*t,4)}, {vr(vF+12*t+4,4)}, {vr(vXL+4,4)}, {vr(vD+4*t,4)}")
    nop(8)
    for t in range(3):
        a(f"v_mfma_f32_16x16x16_bf16 {vr(vD+4*t,4)}, {vr(vF+12*t+8,2)}, {vr(vXL+8,2)}, {vr(vD+4*t,4)}")
    a(f"s_mul_i32 s{sT0}, s{sW}, 192")
    a(f"s_add_u32 s{sT0}, s{sT0}, s{sRow}")
    a(f"v_lshlrev_b32 v{vT}, 4, v{vG}")
    nop(8)
    for r in range(12):
        a(f"v_min_u32 v{vD+r}, 0xfffffffe, v{vD+r}")
    exec_n0()
    for t in range(3):
        a(f"buffer_store_dwordx4 {vr(vD+4*t,4)}, v{vT}, {sr(rWS,4)}, s{sT0} offen offset:{QP + 64*t} sc1")
    exec_all()
    stamp("qpub")
    a(f"s_cmp_lg_u32 s{sW}, 3")
    a("s_cbranch_scc1 L_flags_ok")
    c("wave 3: wait until every workgroup has emptied its slots")
    exec_first(16)
    top = "L_flagpoll"
    a(f"s_mov_b32 s{sBound}, {bound}")
    lab(top)
    a(f"buffer_load_dwordx4 {vr(vT,4)}, v{vDMA}, {sr(rDBG,4)}, 0 offen sc1")
    a("s_waitcnt vmcnt(0)")
    a(f"v_and_b32 v{vT}, v{vT}, v{vT+1}")
    a(f"v_and_b32 v{vT+2}, v{vT+2}, v{vT+3}")
    a(f"v_and_b32 v{vT}, v{vT}, v{vT+2}")
    a(f"v_cmp_ne_u32 vcc, 0x01010101, v{vT}")
    nop(1)
    a("s_cbranch_vccz L_flags_seen")
    a("s_sleep 2")
    a(f"s_sub_u32 s{sBound}, s{sBound}, 1")
    a(f"s_cmp_lg_u32 s{sBound}, 0")
    a(f"s_cbranch_scc1 {top}")
    a("s_branch L_end")
    lab("L_flags_seen")
    exec_all()
    lab("L_flags_ok")
    a("s_barrier")
    stamp("flags")
    c("---------------- gather the head's q partials: wave w sums columns 48w..48w+47 ----------------")
    a(f"s_lshl_b32 s{sT1}, s{sH}, 13")
    a(f"s_mul_i32 s{sT0}, s{sW}, 192")
    a(f"s_add_u32 s{sT1}, s{sT1}, s{sT0}")
    a(f"s_add_u32 s{sT2}, s{sT1}, 4096")
    a(f"v_lshlrev_b32 v{vT}, 2, v{vLane}")
    exec_first(48)

    def qloads():
        for m in range(8):
            so = sT1 if m < 4 else sT2
            a(f"buffer_load_dword v{vF+m}, v{vT}, {sr(rWS,4)}, s{so} offen offset:{QP + 1024*(m%4)} sc1")
    poll(qloads, range(vF, vF + 8), vT + 1)
    stamp("qgot")
    a(f"v_add_f32 v{vF}, v{vF}, v{vF+1}")
    for m in range(2, 8):
        a(f"v_add_f32 v{vF}, v{vF}, v{vF+m}")
    a(f"v_cvt_pk_bf16_f32 v{vF}, v{vF}, v{vF}")
    a(f"s_mul_i32 s{sT0}, s{sW}, 96")
    a(f"s_add_u32 s{sT0}, s{sT0}, {QV}")
    a(f"v_lshl_add_u32 v{vT}, v{vLane}, 1, s{sT0}")
    a(f"ds_write_b16 v{vT}, v{vF}")
    exec_all()
    a("s_waitcnt lgkmcnt(0)")
    a("s_barrier")
    a(f"v_lshlrev_b32 v{vT}, 4, v{vG}")
    for j in range(6):
        a(f"ds_read_b128 {vr(vQ+4*j,4)}, v{vT} offset:{QV + 64*j}")
    c("---------------- weights of the tail -> LDS WGT (12 loads per wave in both roles) ----------------")
    a(f"s_cmp_ge_u32 s{sR}, 20")
    a("s_cbranch_scc1 L_wffn")
    srd(rWA, pWO, 6144 * 1280)
    a(f"v_mul_u32_u24 v{vT+1}, 1280, v{vTR0}")
    a(f"v_lshl_add_u32 v{vT+1}, v{vTR1}, 1, v{vT+1}")
    a(f"s_lshl_b32 s{sT0}, s{sM}, 2")
    a(f"s_add_u32 s{sT0}, s{sT0}, s{sW}")
    a(f"s_mul_i32 s{sT0}, s{sT0}, {192*1280}")
    a(f"s_lshl_b32 s{sT1}, s{sR}, 6")
    a(f"s_add_u32 s{sT0}, s{sT0}, s{sT1}")
    a(f"s_mul_i32 s{sT2}, s{sW}, 12288")
    for i in range(12):
        if i % 4 == 0:
            a(f"s_add_u32 m0, s{sT2}, {WGT + 1024*i}")
        a(f"s_add_u32 s{sT1}, s{sT0}, {20480*i - 1024*(i%4)}")
        a(f"buffer_load_dwordx4 v{vT+1}, {sr(rWA,4)}, s{sT1} offen offset:{1024*(i%4)} {wflags} lds")
    a("s_branch L_wdone")
    lab("L_wffn")
    srd(rWA, pW1, 640 * 3072)
    srd(rWB, pW2, 1536 * 1280)
    a(f"v_lshrrev_b32 v{vT+1}, 1, v{vLane}")
    a(f"v_mul_u32_u24 v{vT+1}, 3072, v{vT+1}")
    a(f"v_and_b32 v{vT+2}, 1, v{vLane}")
    a(f"v_lshl_add_u32 v{vT+1}, v{vT+2}, 4, v{vT+1}")
    a(f"s_mul_i32 s{sT0}, s{sW}, {160*3072}")
    a(f"s_lshl_b32 s{sT1}, s{sF}, 5")
    a(f"s_add_u32 s{sT0}, s{sT0}, s{sT1}")
    a(f"s_mul_i32 s{sT2}, s{sW}, 5120")
    for i in range(5):
        if i % 4 == 0:
            a(f"s_add_u32 m0, s{sT2}, {WGT + 1024*i}")
        a(f"s_add_u32 s{sT1}, s{sT0}, {32*3072*i - 1024*(i%4)}")
        a(f"buffer_load_dwordx4 v{vT+1}, {sr(rWA,4)}, s{sT1} offen offset:{1024*(i%4)} {wflags} lds")
    a(f"s_mul_i32 s{sT0}, s{sF}, 20480")
    a(f"s_add_u32 s{sT0}, s{sT0}, s{sT2}")
    for i in range(5):
        if i % 4 == 0:
            a(f"s_add_u32 m0, s{sT2}, {WGT + 20480 + 1024*i}")
            a(f"s_add_u32 s{sT1}, s{sT0}, {1024*i}")
        a(f"buffer_load_dwordx4 v{vDMA}, {sr(rWB,4)}, s{sT1} offen offset:{1024*(i%4)} {qflags} lds")
    c("x columns 160w + 4*lane (lanes < 40; others read zeros past the end or unused values)")
    a(f"s_mul_i32 s{sT0}, s{sW}, 320")
    a(f"v_lshlrev_b32 v{vT+1}, 3, v{vLane}")
    a(f"buffer_load_dwordx2 {vr(vXF,2)}, v{vT+1}, {sr(rX,4)}, s{sT0} offen")
    a(f"buffer_load_dwordx2 {vr(vXF,2)}, v{vT+1}, {sr(rX,4)}, s{sT0} offen")
    lab("L_wdone")
    c("---------------- streaming state ----------------")
    a(f"v_mov_b32 v{vML}, 0xff800000")
    a(f"v_mov_b32 v{vL}, 0")
    for r in range(48):
        a(f"v_mov_b32 v{vACC+r}, 0")
    a(f"s_mov_b32 s{sCnt}, 0")
    stamp("qrdy")
    if dbgspan:
        a("s_memrealtime s[98:99]")
    a("s_waitcnt lgkmcnt(0)")

    def qk_phase():
        for u in range(2):
            for j in range(6):
                a(f"ds_read_b128 {vr(vF + 24*u + 4*j, 4)}, v{vKA} offset:{6144*u + 64*j}")
        for j in range(6):
            a(f"s_waitcnt lgkmcnt({11 - j})")
            cc = "0" if j == 0 else vr(vS, 4)
            a(f"v_mfma_f32_16x16x32_bf16 {vr(vS,4)}, {vr(vF+4*j,4)}, {vr(vQ+4*j,4)}, {cc}")
        for j in range(6):
            a(f"s_waitcnt lgkmcnt({5 - j})")
            cc = "0" if j == 0 else vr(vS + 4, 4)
            a(f"v_mfma_f32_16x16x32_bf16 {vr(vS+4,4)}, {vr(vF+24+4*j,4)}, {vr(vQ+4*j,4)}, {cc}")

    def softmax_phase():
        for k in range(4):
            a(f"v_cvt_pk_bf16_f32 v{vP+k}, v{vS+2*k}, v{vS+2*k+1}")
        for k in range(4):
            unpack(vP + k, vS + 2 * k, vS + 2 * k + 1)
        for k in range(8):
            a(f"v_mul_f32 v{vS+k}, s{sSc}, v{vS+k}")
        for k in range(4):
            a(f"v_cvt_pk_bf16_f32 v{vP+k}, v{vS+2*k}, v{vS+2*k+1}")
        for k in range(4):
            unpack(vP + k, vS + 2 * k, vS + 2 * k + 1)
        a(f"v_max3_f32 v{vT}, v{vS}, v{vS+1}, v{vS+2}")
        a(f"v_max3_f32 v{vT+1}, v{vS+3}, v{vS+4}, v{vS+5}")
        a(f"v_max3_f32 v{vT}, v{vT}, v{vS+6}, v{vS+7}")
        a(f"v_max_f32 v{vT}, v{vT}, v{vT+1}")
        xgroup("v_max_f32", [vT], [vT + 1])
        a(f"v_mul_f32 v{vT}, s{sLog}, v{vT}")
        a(f"v_cmp_gt_f32 vcc, v{vT}, v{vML}")
        skip = g.newlab("keep")
        nop(1)
        a(f"s_cbranch_vccz {skip}")
        a(f"v_sub_f32 v{vT+1}, v{vML}, v{vT}")
        a(f"v_exp_f32 v{vT+1}, v{vT+1}")
        a(f"v_mov_b32 v{vML}, v{vT}")
        a(f"v_mul_f32 v{vL}, v{vL}, v{vT+1}")
        for r in range(48):
            a(f"v_mul_f32 v{vACC+r}, v{vACC+r}, v{vT+1}")
        lab(skip)
        for k in range(8):
            a(f"v_fma_f32 v{vE+k}, v{vS+k}, s{sLog}, -v{vML}")
        for k in range(8):
            a(f"v_exp_f32 v{vE+k}, v{vE+k}")
        nop(1)
        for k in range(4):
            a(f"v_cvt_pk_bf16_f32 v{vP+k}, v{vE+2*k}, v{vE+2*k+1}")
        for k in range(4):
            a(f"v_add_f32 v{vE+k}, v{vE+k}, v{vE+4+k}")
        a(f"v_add_f32 v{vE}, v{vE}, v{vE+1}")
        a(f"v_add_f32 v{vE+2}, v{vE+2}, v{vE+3}")
        a(f"v_add_f32 v{vE}, v{vE}, v{vE+2}")
        a(f"v_add_f32 v{vL}, v{vL}, v{vE}")

    def pv_phase():
        for t in range(12):
            for u in range(2):
                a(f"ds_read_b64_tr_b16 {vr(vF + 4*t + 2*u, 2)}, v{vVA} offset:{6144*u + 32*t}")
            if t >= 6:
                tt = t - 6
                a(f"s_waitcnt lgkmcnt({2*(t - tt)})")
                a(f"v_mfma_f32_16x16x32_bf16 {vr(vACC+4*tt,4)}, {vr(vF+4*tt,4)}, {vr(vP,4)}, {vr(vACC+4*tt,4)}")
        for tt in range(6, 12):
            a(f"s_waitcnt lgkmcnt({2*(11 - tt)})")
            a(f"v_mfma_f32_16x16x32_bf16 {vr(vACC+4*tt,4)}, {vr(vF+4*tt,4)}, {vr(vP,4)}, {vr(vACC+4*tt,4)}")

    def ticket():
        a("s_mov_b64 exec, 1")
        a(f"v_mov_b32 v{vTk}, 1")
        a(f"buffer_atomic_add v{vTk}, v{vCa}, {sr(rWS,4)}, 0 offen {aflags}")
        exec_all()

    c("================ main loop: one 32-key chunk per trip ================")
    assert sched[0] >= 2
    lab("L_loop")
    a("s_waitcnt vmcnt(12)")
    qk_phase()
    a(f"s_cmp_lg_u32 s{sLeft}, 0")
    a("s_cbranch_scc1 L_have")
    if nblk:
        a(f"v_readfirstlane_b32 s{sT1}, v{vTk}")
        nop(1)
        a(f"s_cmp_ge_u32 s{sT1}, {8*nblk}")
        a("s_cbranch_scc1 L_last")
        a(f"s_and_b32 s{sJW}, s{sT1}, 7")
        a(f"s_lshl_b32 s{sJW}, s{sJW}, 2")
        a(f"s_add_u32 s{sJW}, s{sJW}, s{sW}")
        a(f"s_mul_i32 s{sJW}, s{sJW}, {CB}")
        a(f"s_and_b32 s{sT1}, s{sT1}, 0xf8")
        a(f"s_lshr_b64 {sr(sEx,2)}, {sr(sTabS,2)}, s{sT1}")
        a(f"s_and_b32 s{sRnd}, s{sEx}, 0xff")
        a(f"s_lshr_b64 {sr(sEx,2)}, {sr(sTabN,2)}, s{sT1}")
        a(f"s_and_b32 s{sLeft}, s{sEx}, 0xff")
    else:
        a("s_branch L_last")
    lab("L_have")
    next_off()
    issue_chunk(rK, sMK)
    softmax_phase()
    a("s_waitcnt vmcnt(12)")
    pv_phase()
    if nblk:
        a(f"s_cmp_lg_u32 s{sLeft}, 0")
        a("s_cbranch_scc1 L_notk")
        ticket()
        lab("L_notk")
    issue_chunk(rV, sMV)
    if diag:
        a(f"s_add_u32 s{sCnt}, s{sCnt}, 1")
    a("s_branch L_loop")
    lab("L_last")
    nop(8)
    softmax_phase()
    a("s_waitcnt vmcnt(0)")
    pv_phase()
    stamp("stream")
    if dbgspan:
        a("s_memrealtime s[100:101]")
        a("s_waitcnt lgkmcnt(0)")
        a(f"v_mov_b32 v{vE}, s96")
        a(f"v_mov_b32 v{vE+1}, s98")
        a(f"v_mov_b32 v{vE+2}, s100")
        a(f"v_mov_b32 v{vE+3}, 0")
        a(f"s_lshl_b32 s{sT0}, s2, 2")
        a(f"s_add_u32 s{sT0}, s{sT0}, s{sW}")
        a(f"s_lshl_b32 s{sT0}, s{sT0}, 4")
        a(f"s_add_u32 s{sT0}, s{sT0}, {ST}")
        exec_first(1)
        a(f"buffer_store_dwordx4 {vr(vE,4)}, v{vDMA}, {sr(rWS,4)}, s{sT0} offen sc1")
        exec_all()
        a("s_waitcnt vmcnt(0)")
    c("---------------- combine the four waves ----------------")
    xgroup("v_add_f32", [vL], [vT])
    a(f"s_lshl_b32 s{sT0}, s{sW}, 10")
    a(f"s_add_u32 s{sT0}, s{sT0}, {XO}")
    a(f"v_lshl_add_u32 v{vT}, v{vG}, 4, s{sT0}")
    a(f"v_mov_b32 v{vT+1}, s{sT0}")
    nop(4)
    exec_n0()
    a(f"ds_write_b64 v{vT+1}, {vr(vML,2)} offset:768")
    for t in range(12):
        a(f"ds_write_b128 v{vT}, {vr(vACC+4*t,4)} offset:{64*t}")
    exec_all()
    a("s_waitcnt lgkmcnt(0)")
    a("s_barrier")
    a(f"s_cmp_lg_u32 s{sW}, 0")
    a("s_cbranch_scc1 L_pub_done")
    a(f"v_mov_b32 v{vT}, 0")
    for w in range(4):
        a(f"ds_read_b64 {vr(vE+2*w,2)}, v{vT} offset:{XO + 1024*w + 768}")
    for w in range(4):
        a(f"ds_read_b128 {vr(vF+4*w,4)}, v{vDMA} offset:{XO + 1024*w}")
    a("s_waitcnt lgkmcnt(4)")
    a(f"v_max3_f32 v{vT}, v{vE}, v{vE+2}, v{vE+4}")
    a(f"v_max_f32 v{vT}, v{vT}, v{vE+6}")
    for w in range(4):
        a(f"v_sub_f32 v{vE+2*w}, v{vE+2*w}, v{vT}")
    for w in range(4):
        a(f"v_exp_f32 v{vE+2*w}, v{vE+2*w}")
    nop(1)
    a(f"v_mul_f32 v{vT+1}, v{vE}, v{vE+1}")
    for w in range(1, 4):
        a(f"v_fmac_f32 v{vT+1}, v{vE+2*w}, v{vE+2*w+1}")
    a("s_waitcnt lgkmcnt(0)")
    for r in range(4):
        a(f"v_mul_f32 v{vS+r}, v{vE}, v{vF+r}")
    for w in range(1, 4):
        for r in range(4):
            a(f"v_fmac_f32 v{vS+r}, v{vE+2*w}, v{vF+4*w+r}")
    a(f"s_bfm_b64 exec, 1, 48")
    a(f"v_mov_b32 v{vS}, v{vT}")
    a(f"v_mov_b32 v{vS+1}, v{vT+1}")
    a(f"v_mov_b32 v{vS+2}, 0")
    a(f"v_mov_b32 v{vS+3}, 0")
    exec_first(49)
    for r in range(4):
        a(f"v_min_u32 v{vS+r}, 0xfffffffe, v{vS+r}")
    a(f"s_add_u32 s{sT0}, s{sRow}, {OP}")
    a(f"buffer_store_dwordx4 {vr(vS,4)}, v{vDMA}, {sr(rWS,4)}, s{sT0} offen sc1")
    exec_all()
    lab("L_pub_done")
    stamp("opub")
    a(f"v_lshrrev_b32 v{vT+2}, 2, v{vLane}")
    a(f"v_and_b32 v{vT+3}, 3, v{vLane}")
    a(f"v_lshlrev_b32 v{vT+3}, 3, v{vT+3}")
    a(f"s_cmp_ge_u32 s{sR}, 20")
    a("s_cbranch_scc1 L_ffn")

    c("================ output projection role: heads 4m..4m+3, columns 32r..32r+31 ================")
    vWf = vACC
    a(f"s_mul_i32 s{sT0}, s{sW}, 12288")
    a(f"s_add_u32 s{sT0}, s{sT0}, {WGT}")
    a(f"v_lshl_add_u32 v{vT}, v{vT+2}, 6, v{vT+3}")
    a(f"v_add_u32 v{vT}, s{sT0}, v{vT}")
    for t in range(2):
        for b in range(12):
            a(f"ds_read_b64_tr_b16 {vr(vWf + 24*t + 2*b, 2)}, v{vT} offset:{1024*b + 32*t}")
            if (12 * t + b) % 12 == 11:
                a("s_waitcnt lgkmcnt(0)")
    a(f"s_lshl_b32 s{sT1}, s{sM}, 2")
    a(f"s_add_u32 s{sT1}, s{sT1}, s{sW}")
    a(f"s_lshl_b32 s{sT1}, s{sT1}, 13")
    a(f"s_add_u32 s{sT1}, s{sT1}, {OP}")
    a(f"s_add_u32 s{sT2}, s{sT1}, 4096")
    a(f"v_mov_b32 v{vT+4}, 768")
    vO, vMLs = vF, vF + 32
    exec_first(48)

    def aloads():
        for m in range(8):
            so = sT1 if m < 4 else sT2
            a(f"buffer_load_dwordx2 {vr(vMLs+2*m,2)}, v{vT+4}, {sr(rWS,4)}, s{so} offen offset:{1024*(m%4)} sc1")
            a(f"buffer_load_dwordx4 {vr(vO+4*m,4)}, v{vDMA}, {sr(rWS,4)}, s{so} offen offset:{1024*(m%4)} sc1")
    poll(aloads, range(vF, vF + 48), vT + 5)
    stamp("hopA")
    a(f"v_max3_f32 v{vT}, v{vMLs}, v{vMLs+2}, v{vMLs+4}")
    a(f"v_max3_f32 v{vT+1}, v{vMLs+6}, v{vMLs+8}, v{vMLs+10}")
    a(f"v_max3_f32 v{vT}, v{vT}, v{vMLs+12}, v{vMLs+14}")
    a(f"v_max_f32 v{vT}, v{vT}, v{vT+1}")
    for m in range(8):
        a(f"v_sub_f32 v{vMLs+2*m}, v{vMLs+2*m}, v{vT}")
    for m in range(8):
        a(f"v_exp_f32 v{vMLs+2*m}, v{vMLs+2*m}")
    nop(1)
    a(f"v_mul_f32 v{vT+1}, v{vMLs}, v{vMLs+1}")
    for m in range(1, 8):
        a(f"v_fmac_f32 v{vT+1}, v{vMLs+2*m}, v{vMLs+2*m+1}")
    a(f"v_rcp_f32 v{vT+1}, v{vT+1}")
    for r in range(4):
        a(f"v_mul_f32 v{vS+r}, v{vMLs}, v{vO+r}")
    for m in range(1, 8):
        for r in range(4):
            a(f"v_fmac_f32 v{vS+r}, v{vMLs+2*m}, v{vO+4*m+r}")
    for r in range(4):
        a(f"v_mul_f32 v{vS+r}, v{vS+r}, v{vT+1}")
    a(f"v_cvt_pk_bf16_f32 v{vS}, v{vS}, v{vS+1}")
    a(f"v_cvt_pk_bf16_f32 v{vS+1}, v{vS+2}, v{vS+3}")
    a(f"s_lshl_b32 s{sT0}, s{sW}, 9")
    a(f"s_add_u32 s{sT0}, s{sT0}, {OV}")
    a(f"v_lshl_add_u32 v{vT}, v{vLane}, 3, s{sT0}")
    a(f"ds_write_b64 v{vT}, {vr(vS,2)}")
    exec_all()
    a(f"v_lshl_add_u32 v{vT}, v{vG}, 3, s{sT0}")
    a("s_waitcnt lgkmcnt(0)")
    for b in range(12):
        a(f"ds_read_b64 {vr(vQ+2*b,2)}, v{vT} offset:{32*b}")
    for j in range(6):
        a(f"s_waitcnt lgkmcnt({10 - 2*j})")
        for t in range(2):
            cc = "0" if j == 0 else vr(vS + 4 * t, 4)
            a(f"v_mfma_f32_16x16x32_bf16 {vr(vS+4*t,4)}, {vr(vWf+24*t+4*j,4)}, {vr(vQ+4*j,4)}, {cc}")
    a(f"s_lshl_b32 s{sT0}, s{sW}, 7")
    a(f"s_add_u32 s{sT0}, s{sT0}, {XY}")
    a(f"v_lshl_add_u32 v{vT}, v{vG}, 4, s{sT0}")
    nop(6)
    exec_n0()
    for t in range(2):
        a(f"ds_write_b128 v{vT}, {vr(vS+4*t,4)} offset:{64*t}")
    exec_all()
    a("s_waitcnt lgkmcnt(0)")
    a("s_barrier")
    a(f"s_cmp_lg_u32 s{sW}, 0")
    a("s_cbranch_scc1 L_fin")
    exec_first(8)
    for w in range(4):
        a(f"ds_read_b128 {vr(vF+4*w,4)}, v{vDMA} offset:{XY + 128*w}")
    a(f"s_mul_i32 s{sT0}, s{sM}, 2560")
    a(f"s_lshl_b32 s{sT1}, s{sR}, 7")
    a(f"s_add_u32 s{sT0}, s{sT0}, s{sT1}")
    a(f"s_add_u32 s{sT0}, s{sT0}, {YP}")
    a("s_waitcnt lgkmcnt(0)")
    for r in range(4):
        a(f"v_add_f32 v{vF+r}, v{vF+r}, v{vF+4+r}")
        a(f"v_add_f32 v{vF+8+r}, v{vF+8+r}, v{vF+12+r}")
    for r in range(4):
        a(f"v_add_f32 v{vF+r}, v{vF+r}, v{vF+8+r}")
    for r in range(4):
        a(f"v_min_u32 v{vF+r}, 0xfffffffe, v{vF+r}")
    a(f"buffer_store_dwordx4 {vr(vF,4)}, v{vDMA}, {sr(rWS,4)}, s{sT0} offen sc1")
    exec_all()
    a("s_branch L_fin")

    c("================ FFN role: hidden columns 16f..16f+15 ================")
    lab("L_ffn")
    vW1, vW2 = vACC, vACC + 20
    a(f"s_mul_i32 s{sT0}, s{sW}, 5120")
    a(f"s_add_u32 s{sT0}, s{sT0}, {WGT}")
    a(f"v_lshl_add_u32 v{vT}, v{vLane}, 3, s{sT0}")
    for b in range(10):
        a(f"ds_read_b64_tr_b16 {vr(vW1+2*b,2)}, v{vT} offset:{512*b}")
    a(f"v_mul_u32_u24 v{vT+1}, 1280, v{vT+2}")
    a(f"s_mul_i32 s{sT0}, s{sW}, 320")
    a(f"s_add_u32 s{sT0}, s{sT0}, {WGT + 20480}")
    a(f"v_add3_u32 v{vT+1}, v{vT+1}, v{vT+3}, s{sT0}")
    a("s_waitcnt lgkmcnt(0)")
    for t in range(10):
        a(f"ds_read_b64_tr_b16 {vr(vW2+2*t,2)}, v{vT+1} offset:{32*t}")
    a(f"s_mul_i32 s{sT1}, s{sW}, 640")
    a(f"s_add_u32 s{sT1}, s{sT1}, {YP}")
    for k in range(1, 4):
        a(f"s_add_u32 s{sEx if k == 3 else sT1 + k}, s{sT1}, {5120*k}")
    ybase = [sT1, sT2, sT3, sEx]
    a(f"v_mov_b32 v{vS+4}, 0")
    a(f"v_mov_b32 v{vS+5}, 0")
    a("s_waitcnt lgkmcnt(0)")
    exec_first(40)

    def bloads():
        for m in range(8):
            a(f"buffer_load_dwordx4 {vr(vF+4*m,4)}, v{vDMA}, {sr(rWS,4)}, s{ybase[m//2]} offen offset:{2560*(m%2)} sc1")
    poll(bloads, range(vF, vF + 32), vT + 5)
    stamp("hopB")
    for m in range(1, 8):
        for r in range(4):
            a(f"v_add_f32 v{vF+r}, v{vF+r}, v{vF+4*m+r}")
    a(f"v_cvt_pk_bf16_f32 v{vF+4}, v{vF}, v{vF+1}")
    a(f"v_cvt_pk_bf16_f32 v{vF+5}, v{vF+2}, v{vF+3}")
    unpack(vF + 4, vF, vF + 1)
    unpack(vF + 5, vF + 2, vF + 3)
    unpack(vXF, vF + 4, vF + 5)
    unpack(vXF + 1, vF + 6, vF + 7)
    for r in range(4):
        a(f"v_add_f32 v{vF+r}, v{vF+r}, v{vF+4+r}")
    vH = vP
    a(f"v_cvt_pk_bf16_f32 v{vH}, v{vF}, v{vF+1}")
    a(f"v_cvt_pk_bf16_f32 v{vH+1}, v{vF+2}, v{vF+3}")
    a(f"s_mul_i32 s{sT0}, s{sW}, 320")
    a(f"v_lshl_add_u32 v{vT+4}, v{vLane}, 3, s{sT0}")
    a(f"ds_write_b64 v{vT+4}, {vr(vH,2)} offset:{HV}")
    unpack(vH, vF, vF + 1)
    unpack(vH + 1, vF + 2, vF + 3)
    nop(1)
    a(f"v_readfirstlane_b32 s{sT1}, v{vF}")
    nop(2)
    for r in range(4):
        a(f"v_subrev_f32 v{vF+r}, s{sT1}, v{vF+r}")
    a(f"v_add_f32 v{vS+4}, v{vF}, v{vF+1}")
    a(f"v_mul_f32 v{vS+5}, v{vF}, v{vF}")
    a(f"v_add_f32 v{vS+4}, v{vS+4}, v{vF+2}")
    a(f"v_fmac_f32 v{vS+5}, v{vF+1}, v{vF+1}")
    a(f"v_add_f32 v{vS+4}, v{vS+4}, v{vF+3}")
    a(f"v_fmac_f32 v{vS+5}, v{vF+2}, v{vF+2}")
    a(f"v_fmac_f32 v{vS+5}, v{vF+3}, v{vF+3}")
    exec_all()
    allreduce("v_add_f32", [vS + 4, vS + 5], [vT, vT + 1])
    a(f"v_mul_f32 v{vT}, {R160:#x}, v{vS+4}")
    a(f"v_fma_f32 v{vS+5}, -v{vT}, v{vS+4}, v{vS+5}")
    a(f"v_add_f32 v{vS+4}, s{sT1}, v{vT}")
    a(f"s_lshl_b32 s{sT2}, s{sW}, 3")
    a(f"v_mov_b32 v{vT}, s{sT2}")
    a(f"ds_write_b64 v{vT}, {vr(vS+4,2)} offset:{XS}")
    a(f"v_mov_b32 v{vT}, 0")
    a("s_waitcnt lgkmcnt(0)")
    a("s_barrier")
    a(f"ds_read_b128 {vr(vE,4)}, v{vT} offset:{XS}")
    a(f"ds_read_b128 {vr(vE+4,4)}, v{vT} offset:{XS+16}")
    a("s_waitcnt lgkmcnt(0)")
    a(f"v_add_f32 v{vMean}, v{vE}, v{vE+2}")
    a(f"v_add_f32 v{vT+3}, v{vE+4}, v{vE+6}")
    a(f"v_add_f32 v{vMean}, v{vMean}, v{vT+3}")
    a(f"v_mul_f32 v{vMean}, 0.25, v{vMean}") if False else a(f"v_mul_f32 v{vMean}, 0x3e800000, v{vMean}")
    a(f"v_add_f32 v{vVar}, v{vE+1}, v{vE+3}")
    a(f"v_add_f32 v{vT+3}, v{vE+5}, v{vE+7}")
    a(f"v_add_f32 v{vVar}, v{vVar}, v{vT+3}")
    for w in range(4):
        a(f"v_sub_f32 v{vE+2*w}, v{vE+2*w}, v{vMean}")
    a(f"v_mul_f32 v{vT+3}, v{vE}, v{vE}")
    for w in range(1, 4):
        a(f"v_fmac_f32 v{vT+3}, v{vE+2*w}, v{vE+2*w}")
    a(f"v_mul_f32 v{vVar}, {R640:#x}, v{vVar}")
    a(f"v_fmac_f32 v{vVar}, 0x3e800000, v{vT+3}")
    a(f"v_max_f32 v{vVar}, 0, v{vVar}")
    ln_finish(vMean, vVar, vRcp, vT + 3)
    normalise_pair(vH, vH + 2, vMean, vVar, vRcp, vE)
    normalise_pair(vH + 1, vH + 3, vMean, vVar, vRcp, vE + 4)
    exec_first(40)
    a(f"ds_write_b64 v{vT+4}, {vr(vH+2,2)} offset:{XN}")
    exec_all()
    a(f"v_lshl_add_u32 v{vT+5}, v{vG}, 3, s{sT0}")
    a("s_waitcnt lgkmcnt(0)")
    for b in range(10):
        a(f"ds_read_b64 {vr(vQ+2*b,2)}, v{vT+5} offset:{XN + 32*b}")
    for j in range(5):
        a(f"s_waitcnt lgkmcnt({8 - 2*j})")
        cc = "0" if j == 0 else vr(vS, 4)
        a(f"v_mfma_f32_16x16x32_bf16 {vr(vS,4)}, {vr(vW1+4*j,4)}, {vr(vQ+4*j,4)}, {cc}")
    a(f"s_lshl_b32 s{sT2}, s{sW}, 6")
    a(f"v_lshlrev_b32 v{vT+6}, 4, v{vG}")
    a(f"v_add_u32 v{vT+5}, s{sT2}, v{vT+6}")
    a(f"v_and_b32 v{vT+7}, 15, v{vLane}")
    nop(5)
    exec_n0()
    a(f"ds_write_b128 v{vT+5}, {vr(vS,4)} offset:{XH}")
    exec_all()
    a("s_waitcnt lgkmcnt(0)")
    a("s_barrier")
    for w in range(4):
        a(f"ds_read_b128 {vr(vF+4*w,4)}, v{vT+6} offset:{XH + 64*w}")
    a("s_waitcnt lgkmcnt(0)")
    for r in range(4):
        a(f"v_add_f32 v{vF+r}, v{vF+r}, v{vF+4+r}")
        a(f"v_add_f32 v{vF+8+r}, v{vF+8+r}, v{vF+12+r}")
    for r in range(4):
        a(f"v_add_f32 v{vF+r}, v{vF+r}, v{vF+8+r}")
    for r in range(4):
        a(f"v_max_f32 v{vF+r}, 0, v{vF+r}")
    a(f"v_cvt_pk_bf16_f32 v{vF+4}, v{vF}, v{vF+1}")
    a(f"v_cvt_pk_bf16_f32 v{vF+5}, v{vF+2}, v{vF+3}")
    c("tile t of w2 lands in result column n = t: operand is hidden where n == t, else 0")
    for t in range(10):
        a(f"v_cmp_eq_u32 vcc, {t}, v{vT+7}")
        nop(2)
        a(f"v_cndmask_b32 v{vQ+2*t}, 0, v{vF+4}, vcc")
        a(f"v_cndmask_b32 v{vQ+2*t+1}, 0, v{vF+5}, vcc")
    nop(2)
    for t in range(10):
        cc = "0" if t == 0 else vr(vS, 4)
        a(f"v_mfma_f32_16x16x16_bf16 {vr(vS,4)}, {vr(vW2+2*t,2)}, {vr(vQ+2*t,2)}, {cc}")
    a(f"v_lshl_add_u32 v{vT+5}, v{vT+7}, 6, v{vT+6}")
    a(f"s_mul_i32 s{sT1}, s{sF}, 2560")
    a(f"s_mul_i32 s{sT2}, s{sW}, 640")
    a(f"s_add_u32 s{sT1}, s{sT1}, s{sT2}")
    a(f"s_add_u32 s{sT1}, s{sT1}, {FP}")
    nop(4)
    for r in range(4):
        a(f"v_min_u32 v{vS+r}, 0xfffffffe, v{vS+r}")
    a("s_mov_b32 exec_lo, 0x03ff03ff")
    a("s_mov_b32 exec_hi, 0x03ff03ff")
    a(f"buffer_store_dwordx4 {vr(vS,4)}, v{vT+5}, {sr(rWS,4)}, s{sT1} offen sc1")
    exec_all()
    c("---------------- final reduction: workgroups with e = 3m + (r-20) < 20, r < 23 ----------------")
    a(f"s_cmp_ge_u32 s{sR}, 23")
    a("s_cbranch_scc1 L_fin")
    a(f"s_mul_i32 s{sF}, s{sM}, 3")
    a(f"s_add_u32 s{sF}, s{sF}, s{sR}")
    a(f"s_sub_u32 s{sF}, s{sF}, 20")
    a(f"s_cmp_ge_u32 s{sF}, 20")
    a("s_cbranch_scc1 L_fin")
    srd(rOUT, pOUT, 1280)
    a(f"v_lshrrev_b32 v{vT}, 3, v{vLane}")
    a(f"v_mul_u32_u24 v{vT}, 2560, v{vT}")
    a(f"v_and_b32 v{vT+1}, 7, v{vLane}")
    a(f"v_lshl_add_u32 v{vT}, v{vT+1}, 4, v{vT}")
    a(f"s_mul_i32 s{sT1}, s{sW}, {24*2560}")
    a(f"s_lshl_b32 s{sT2}, s{sF}, 7")
    a(f"s_add_u32 s{sT1}, s{sT1}, s{sT2}")
    a(f"s_add_u32 s{sT1}, s{sT1}, {FP}")
    a(f"s_add_u32 s{sT2}, s{sT1}, {8*2560}")
    a(f"s_add_u32 s{sT3}, s{sT1}, {16*2560}")

    def cloads():
        for k, so in enumerate((sT1, sT2, sT3)):
            a(f"buffer_load_dwordx4 {vr(vF+4*k,4)}, v{vT}, {sr(rWS,4)}, s{so} offen sc1")
    stamp("fpub")
    poll(cloads, range(vF, vF + 12), vT + 5)
    stamp("hopC")
    for r in range(4):
        a(f"v_add_f32 v{vF+r}, v{vF+r}, v{vF+4+r}")
    for r in range(4):
        a(f"v_add_f32 v{vF+r}, v{vF+r}, v{vF+8+r}")
    nop(1)
    for r in range(4):
        a(f"v_add_f32_dpp v{vF+r}, v{vF+r}, v{vF+r} row_ror:8 row_mask:0xf bank_mask:0xf")
    xgroup("v_add_f32", [vF, vF + 1, vF + 2, vF + 3], [vE, vE + 1, vE + 2, vE + 3])
    a(f"s_lshl_b32 s{sT0}, s{sW}, 7")
    a(f"v_add_u32 v{vT}, s{sT0}, v{vDMA}")
    exec_first(8)
    a(f"ds_write_b128 v{vT}, {vr(vF,4)} offset:{XF}")
    exec_all()
    a("s_waitcnt lgkmcnt(0)")
    a("s_barrier")
    a(f"s_cmp_lg_u32 s{sW}, 0")
    a("s_cbranch_scc1 L_fin")
    exec_first(8)
    a(f"s_lshl_b32 s{sT0}, s{sF}, 6")
    a(f"v_lshl_add_u32 v{vT}, v{vLane}, 3, s{sT0}")
    for w in range(4):
        a(f"ds_read_b128 {vr(vF+4*w,4)}, v{vDMA} offset:{XF + 128*w}")
    a(f"ds_read_b64 {vr(vE,2)}, v{vT} offset:{HV}")
    a("s_waitcnt lgkmcnt(0)")
    for r in range(4):
        a(f"v_add_f32 v{vF+r}, v{vF+r}, v{vF+4+r}")
        a(f"v_add_f32 v{vF+8+r}, v{vF+8+r}, v{vF+12+r}")
    for r in range(4):
        a(f"v_add_f32 v{vF+r}, v{vF+r}, v{vF+8+r}")
    a(f"v_cvt_pk_bf16_f32 v{vF+4}, v{vF}, v{vF+1}")
    a(f"v_cvt_pk_bf16_f32 v{vF+5}, v{vF+2}, v{vF+3}")
    unpack(vF + 4, vF, vF + 1)
    unpack(vF + 5, vF + 2, vF + 3)
    unpack(vE, vF + 4, vF + 5)
    unpack(vE + 1, vF + 6, vF + 7)
    for r in range(4):
        a(f"v_add_f32 v{vF+r}, v{vF+r}, v{vF+4+r}")
    if perturb:
        a(f"s_cmp_eq_u32 s{sF}, 0")
        a(f"s_cselect_b32 s{sT0}, {perturb:#x}, 0")
        a(f"v_add_f32 v{vF}, s{sT0}, v{vF}")
    a(f"v_cvt_pk_bf16_f32 v{vF+4}, v{vF}, v{vF+1}")
    a(f"v_cvt_pk_bf16_f32 v{vF+5}, v{vF+2}, v{vF+3}")
    a(f"buffer_store_dwordx2 {vr(vF+4,2)}, v{vT}, {sr(rOUT,4)}, 0 offen")
    exec_all()
    if dbgspan:
        a(f"s_cmp_lg_u32 s{sF}, 0")
        a("s_cbranch_scc1 L_fin")
        a("s_waitcnt vmcnt(0)")
        a("s_memrealtime s[96:97]")
        for k in range(16):
            a(f"s_mov_b32 s{sT0}, {ST + 1024*k}")
            a(f"buffer_load_dwordx4 {vr(vACC+4*(k%12) if k < 12 else vF + 4*(k-12),4)}, v{vDMA}, {sr(rWS,4)}, s{sT0} offen sc1")
        a("s_waitcnt vmcnt(0) lgkmcnt(0)")
        regs = [vACC + 4*k for k in range(12)] + [vF + 4*k for k in range(4)]
        a(f"v_mov_b32 v{vE}, v{regs[0]}")
        a(f"v_mov_b32 v{vE+1}, v{regs[0]}")
        a(f"v_mov_b32 v{vE+2}, v{regs[0]+1}")
        a(f"v_mov_b32 v{vE+3}, v{regs[0]+2}")
        a(f"v_mov_b32 v{vE+4}, v{regs[0]+2}")
        for r in regs[1:]:
            a(f"v_min_u32 v{vE}, v{vE}, v{r}")
            a(f"v_max_u32 v{vE+1}, v{vE+1}, v{r}")
            a(f"v_max_u32 v{vE+2}, v{vE+2}, v{r+1}")
            a(f"v_min_u32 v{vE+3}, v{vE+3}, v{r+2}")
            a(f"v_max_u32 v{vE+4}, v{vE+4}, v{r+2}")
        allreduce("v_min_u32", [vE, vE+3], [vT, vT+1])
        allreduce("v_max_u32", [vE+1, vE+2, vE+4], [vT, vT+1, vT+2])
        a(f"v_mov_b32 v{vE+5}, s96")
        for k in range(1, 6):
            a(f"v_sub_u32 v{vE+k}, v{vE+k}, v{vE}")
        exec_first(1)
        a(f"buffer_store_dwordx4 {vr(vE+2,4)}, v{vDMA}, {sr(rDBG,4)}, 0 offen")
        a(f"buffer_store_dword v{vE+1}, v{vDMA}, {sr(rDBG,4)}, 0 offen offset:16")
        exec_all()
    lab("L_fin")
    if diag:
        a("s_waitcnt vmcnt(0)")
        stamp("end")
        a("s_getreg_b32 s3, hwreg(HW_REG_XCC_ID)")
        a(f"v_writelane_b32 v{vSt}, s3, 30")
        a(f"v_writelane_b32 v{vSt}, s{sCnt}, 31")
        a(f"s_lshl_b32 s{sT0}, s2, 2")
        a(f"s_add_u32 s{sT0}, s{sT0}, s{sW}")
        a(f"s_lshl_b32 s{sT0}, s{sT0}, 7")
        a(f"s_add_u32 s{sT0}, s{sT0}, {ST}")
        a(f"v_lshlrev_b32 v{vT+1}, 2, v{vLane}")
        exec_first(32)
        a(f"buffer_store_dword v{vSt}, v{vT+1}, {sr(rWS,4)}, s{sT0} offen")
    lab("L_end")
    a("s_endpgm")

    out = [HEADER + f"; @launch grid=(256,1,1) block=(256,1,1) lds={LDS_BYTES}",
           '.amdgcn_target "amdgcn-amd-amdhsa--gfx950"', ".text", f".globl {name}", ".p2align 8",
           f".type {name},@function", f"{name}:"]
    out += g.L
    out += ['.section .rodata,"a"', ".p2align 6", f".amdhsa_kernel {name}",
            f"  .amdhsa_next_free_vgpr {NV}", "  .amdhsa_next_free_sgpr 102", f"  .amdhsa_accum_offset {NV}",
            "  .amdhsa_group_segment_fixed_size 0", "  .amdhsa_kernarg_size 88", "  .amdhsa_user_sgpr_count 2",
            "  .amdhsa_user_sgpr_kernarg_segment_ptr 1", "  .amdhsa_system_sgpr_workgroup_id_x 1",
            "  .amdhsa_float_denorm_mode_32 3",
            ".end_amdhsa_kernel"]
    return "\n".join(out) + "\n"


if __name__ == "__main__":
    kw = json.loads(sys.argv[1]) if len(sys.argv) > 1 else {}
    sys.stdout.write(gen(**kw))
```

```python
import sys, json

KNAME = "sequential_preLN__mha_block_cached__dense_activation_relu__decode_kernel"

HEADER = """; Kernarg layout for this problem (88 bytes, ptrs only, base s[0:1]):
"""

QP = 0x180000
OP = 0x040000
YP = 0x080000
FP = 0x090000
CT = 0x0D0000
ST = 0x100000
WS_REC = 0x200000

MISC = 0
WGT = 0x3000
RING = 0xF000
QV = MISC
XO = MISC + 0x200
OV = MISC + 0x1200
XY = MISC + 0x1A00
HV = MISC + 0x1C00
XS = MISC + 0x2200
XN = MISC + 0x2300
XH = MISC + 0x2900
XF = MISC + 0x2A00
XC = MISC + 0x2C00
NV_ = MISC + 0x2D00
LDS_BYTES = RING + 0x18000

SCALE = 0x3d93cd3a
LOG2E = 0x3fb8aa3b
EPS = 0x3727c5ac
R640 = 0x3acccccd
R160 = 0x3bcccccd
HEAD_BYTES = 12582912
CB = 12288


class G:
    def __init__(self):
        self.L = []
        self.nlabel = 0

    def a(self, s):
        self.L.append("  " + s)

    def lab(self, s):
        self.L.append(s + ":")

    def c(self, s):
        self.L.append("  ; " + s)

    def newlab(self, p):
        self.nlabel += 1
        return f"L_{p}{self.nlabel}"

    def nop(self, n):
        while n > 0:
            k = min(n, 16)
            self.a(f"s_nop {k-1}")
            n -= k


def vr(b, n=1):
    return f"v{b}" if n == 1 else f"v[{b}:{b+n-1}]"


def sr(b, n=1):
    return f"s{b}" if n == 1 else f"s[{b}:{b+n-1}]"


def gen(name=KNAME, kvflags="nt", wflags="", qflags="nt", sched=(24,4,2,1,1), hstag=3, rot=1, aflags='sc0 sc1', diag=0, bound=1 << 20,
        sleep=1, dbgspan=0, perturb=0, pace=6, k3=3, gdelay=0, fsleep=2, kpace=0, chk=8, cdelay=0, ndelay=0):
    assert not dbgspan
    g = G()
    a, lab, c, nop = g.a, g.lab, g.c, g.nop
    pX, pK, pV, pWQ, pWO, pW1, pW2, pOUT, pDBG, pWS = 4, 6, 8, 10, 12, 16, 18, 20, 22, 24
    rK, rV, rWS, rWQ, rX, rDBG, rWA, rWB, rOUT = 28, 32, 36, 40, 44, 48, 52, 56, 60
    sW, sH, sM, sR, sRow, sRole, sF = 64, 65, 66, 67, 68, 69, 70
    sT0, sT1, sT2, sT3 = 71, 72, 73, 74
    sMK, sMV = 75, 78
    sOff, sCnt, sBound, sChunk = 81, 82, 83, 84
    sEx = 86
    sLog, sSc = 88, 89
    sStamp = 90
    sTm = 100
    vLane, vDMA, vKA, vVA, vG, vT = 1, 2, 3, 4, 5, 6
    vML, vL, vTk, vCa = 16, 17, 18, 19
    vXF = 20
    vS = 24
    vP = 32
    vE = 36
    vQ = 44
    vF = 68
    vACC = 116
    vU = 164
    vWF = 212
    NV = 216

    vSt = 22
    global STAMPS
    STAMPS = []

    def stamp(nm):
        if not diag or (diag == 2 and nm not in ("stream", "end")):
            return
        if nm not in STAMPS:
            STAMPS.append(nm)
        i = STAMPS.index(nm)
        assert i < 30
        a(f"s_memrealtime {sr(sTm,2)}")
        a("s_waitcnt lgkmcnt(0)")
        a(f"v_writelane_b32 v{vSt}, s{sTm}, {i}")

    def srd(d, p, n, addlo=None):
        if addlo is None:
            a(f"s_mov_b32 s{d}, s{p}")
            a(f"s_and_b32 s{d+1}, s{p+1}, 0xffff")
        else:
            a(f"s_add_u32 s{d}, s{p}, s{addlo}")
            a(f"s_addc_u32 s{d+1}, s{p+1}, 0")
            a(f"s_and_b32 s{d+1}, s{d+1}, 0xffff")
        a(f"s_mov_b32 s{d+2}, {n}")
        a(f"s_mov_b32 s{d+3}, 0x20000")

    def exec_first(n):
        a(f"s_bfm_b64 exec, {n}, 0")

    def exec_all():
        a("s_mov_b64 exec, -1")

    def exec_n0():
        a("s_mov_b32 exec_lo, 0x00010001")
        a("s_mov_b32 exec_hi, 0x00010001")

    def allreduce(op, regs, tmps):
        pad = max(0, 2 - (len(regs) - 1))
        nop(2)
        for rr in (8, 4, 2, 1):
            for r in regs:
                a(f"{op}_dpp v{r}, v{r}, v{r} row_ror:{rr} row_mask:0xf bank_mask:0xf")
            nop(pad)
        xgroup(op, regs, tmps)

    def xgroup(op, regs, tmps):
        for sw in ("v_permlane16_swap_b32", "v_permlane32_swap_b32"):
            for r, t in zip(regs, tmps):
                a(f"v_mov_b32 v{t}, v{r}")
            nop(2)
            for r, t in zip(regs, tmps):
                a(f"{sw} v{r}, v{t}")
            for r, t in zip(regs, tmps):
                a(f"{op} v{r}, v{r}, v{t}")

    def unpack(src, lo, hi):
        a(f"v_lshlrev_b32 v{lo}, 16, v{src}")
        a(f"v_and_b32 v{hi}, 0xffff0000, v{src}")

    def round_bf16(r, t):
        a(f"v_cvt_pk_bf16_f32 v{t}, v{r}, v{r}")
        a(f"v_and_b32 v{r}, 0xffff0000, v{t}")

    def ln_finish(vMean, vVar, vRcp, t):
        round_bf16(vMean, t)
        round_bf16(vVar, t)
        a(f"v_add_f32 v{vVar}, {EPS:#x}, v{vVar}")
        round_bf16(vVar, t)
        a(f"v_sqrt_f32 v{vVar}, v{vVar}")
        nop(1)
        round_bf16(vVar, t)
        a(f"v_rcp_f32 v{vRcp}, v{vVar}")
        nop(1)

    def normalise_pair(src, dst, vMean, vDen, vRcp, t):
        unpack(src, t, t + 1)
        a(f"v_sub_f32 v{t}, v{t}, v{vMean}")
        a(f"v_sub_f32 v{t+1}, v{t+1}, v{vMean}")
        a(f"v_cvt_pk_bf16_f32 v{dst}, v{t}, v{t+1}")
        unpack(dst, t, t + 1)
        for k in (0, 1):
            a(f"v_mul_f32 v{t+2+k}, v{t+k}, v{vRcp}")
        for k in (0, 1):
            a(f"v_fma_f32 v{t+k}, -v{t+2+k}, v{vDen}, v{t+k}")
        for k in (0, 1):
            a(f"v_fma_f32 v{t+2+k}, v{t+k}, v{vRcp}, v{t+2+k}")
        a(f"v_cvt_pk_bf16_f32 v{dst}, v{t+2}, v{t+3}")

    def any_marker(regs, t):
        regs = list(regs)
        a(f"v_max3_u32 v{t}, v{regs[0]}, v{regs[1]}, v{regs[2]}")
        regs = regs[3:]
        while len(regs) >= 2:
            a(f"v_max3_u32 v{t}, v{t}, v{regs[0]}, v{regs[1]}")
            regs = regs[2:]
        if regs:
            a(f"v_max_u32 v{t}, v{t}, v{regs[0]}")
        a(f"v_cmp_eq_u32 vcc, -1, v{t}")

    def poll(loads, regs, t, pre_wait=0):
        top, done = g.newlab("poll"), g.newlab("got")
        a(f"s_mov_b32 s{sBound}, {bound}")
        lab(top)
        loads()
        a("s_waitcnt vmcnt(0)")
        any_marker(regs, t)
        nop(1)
        a(f"s_cbranch_vccz {done}")
        if sleep:
            a(f"s_sleep {sleep}")
        a(f"s_sub_u32 s{sBound}, s{sBound}, 1")
        a(f"s_cmp_lg_u32 s{sBound}, 0")
        a(f"s_cbranch_scc1 {top}")
        a("s_branch L_end")
        lab(done)

    def issue_chunk(r, m0base, groups=(0, 1, 2)):
        for j in groups:
            a(f"s_mov_b32 m0, s{m0base+j}")
            if j == 0:
                a(f"s_mov_b32 s{sT0}, s{sOff}")
            else:
                a(f"s_add_u32 s{sT0}, s{sOff}, {4096*j}")
            for k in range(4):
                a(f"buffer_load_dwordx4 v{vDMA}, {sr(r,4)}, s{sT0} offen offset:{1024*k} {kvflags} lds")

    c("---------------- entry ----------------")
    a("s_cmp_ge_u32 s2, 256")
    a("s_cbranch_scc1 L_end")
    if diag:
        a(f"s_memrealtime {sr(sTm,2)}")
    if dbgspan:
        a("s_memrealtime s[96:97]")
    sNon = 26
    a(f"s_memrealtime {sr(sNon,2)}")
    a("s_load_dwordx16 s[4:19], s[0:1], 0")
    a("s_load_dwordx4 s[20:23], s[0:1], 64")
    a("s_load_dwordx2 s[24:25], s[0:1], 80")
    a(f"v_lshrrev_b32 v{vT}, 6, v0")
    a(f"v_and_b32 v{vLane}, 63, v0")
    a(f"v_readfirstlane_b32 s{sW}, v{vT}")
    a(f"v_lshlrev_b32 v{vDMA}, 4, v{vLane}")
    a(f"v_lshrrev_b32 v{vG}, 4, v{vLane}")
    a(f"s_and_b32 s{sM}, s2, 7")
    a(f"s_lshr_b32 s{sR}, s2, 3")
    a(f"s_mul_i32 s{sT0}, s{sM}, {rot}")
    a(f"s_add_u32 s{sH}, s{sR}, s{sT0}")
    a(f"s_and_b32 s{sH}, s{sH}, 31")
    a(f"s_lshl_b32 s{sRow}, s{sH}, 3")
    a(f"s_add_u32 s{sRow}, s{sRow}, s{sM}")
    a(f"s_mul_i32 s{sF}, s{sM}, 12")
    a(f"s_add_u32 s{sF}, s{sF}, s{sR}")
    a(f"s_sub_u32 s{sF}, s{sF}, 20")
    a(f"s_mul_i32 s{sT0}, s{sW}, {2*CB}")
    for j in range(3):
        a(f"s_add_u32 s{sMK+j}, s{sT0}, {RING + 4096*j}")
        a(f"s_add_u32 s{sMV+j}, s{sT0}, {RING + CB + 4096*j}")
    vN = 23
    a(f"v_and_b32 v{vN}, 15, v{vLane}")
    a(f"v_mul_u32_u24 v{vT}, 384, v{vN}")
    a(f"v_lshl_add_u32 v{vT}, v{vG}, 4, v{vT}")
    a(f"v_add_u32 v{vKA}, s{sMK}, v{vT}")
    vTR0, vTR1 = vU + 5, vU + 6
    a(f"v_lshrrev_b32 v{vTR0}, 2, v{vLane}")
    a(f"v_and_b32 v{vTR1}, 3, v{vLane}")
    a(f"v_lshlrev_b32 v{vTR1}, 3, v{vTR1}")
    a(f"v_mul_u32_u24 v{vT}, 384, v{vTR0}")
    a(f"v_add_u32 v{vT}, v{vT}, v{vTR1}")
    a(f"v_add_u32 v{vVA}, s{sMV}, v{vT}")
    vWA = vU + 7
    a(f"s_lshl_b32 s{sT0}, s{sW}, 7")
    a(f"s_add_u32 s{sT0}, s{sT0}, {WGT}")
    a(f"v_add_u32 v{vWA}, s{sT0}, v{vT}")
    assert sum(sched) == 32 and len(sched) <= 9 and pace <= 8
    sRnd, sLeft, sJW, sHs = 84, 85, 90, 91
    sTabS, sTabN = 92, 94
    acc_, ts_, tn_ = sched[0], 0, 0
    for i_, n_ in enumerate(sched[1:]):
        ts_ |= acc_ << (8 * i_); tn_ |= n_ << (8 * i_); acc_ += n_
    nblk = len(sched) - 1
    a(f"s_mul_i32 s{sHs}, s{sH}, {hstag}")
    a(f"s_lshl_b32 s{sJW}, s{sM}, 2")
    a(f"s_add_u32 s{sJW}, s{sJW}, s{sW}")
    a(f"s_mul_i32 s{sJW}, s{sJW}, {CB}")
    a(f"s_mov_b32 s{sRnd}, 0")
    a(f"s_mov_b32 s{sLeft}, {sched[0]}")

    def next_off():
        a(f"s_add_u32 s{sOff}, s{sRnd}, s{sHs}")
        a(f"s_and_b32 s{sOff}, s{sOff}, 31")
        a(f"s_mul_i32 s{sOff}, s{sOff}, {32*CB}")
        a(f"s_add_u32 s{sOff}, s{sOff}, s{sJW}")
        a(f"s_add_u32 s{sRnd}, s{sRnd}, 1")
        a(f"s_sub_u32 s{sLeft}, s{sLeft}, 1")
    next_off()
    vWQ = vU
    for b in range(3):
        a(f"v_add_u32 v{vT}, {64*b}, v{vLane}")
        a(f"v_mul_u32_u24 v{vT}, 2731, v{vT}")
        a(f"v_lshrrev_b32 v{vT}, 16, v{vT}")
        a(f"v_mul_u32_u24 v{vT}, 11904, v{vT}")
        a(f"v_add_u32 v{vWQ+b}, v{vT}, v{vDMA}")
    vXA = vU + 3
    a(f"v_lshlrev_b32 v{vXA}, 2, v{vLane}")
    a(f"s_lshl_b32 s{sRow}, s{sRow}, 10")
    a(f"s_mul_i32 s{sT1}, s{sH}, {HEAD_BYTES}")
    a(f"s_mul_i32 s{sT0}, s{sM}, {80*12288}")
    a(f"s_mul_i32 s{sT2}, s{sH}, 384")
    a(f"s_add_u32 s{sT2}, s{sT0}, s{sT2}")
    a(f"s_mul_i32 s{sT3}, s{sM}, 160")
    a("s_waitcnt lgkmcnt(0)")
    if diag:
        a(f"v_mov_b32 v{vSt}, 0")
        a(f"v_writelane_b32 v{vSt}, s{sTm}, 0")
        STAMPS.append("entry")
    stamp("karg")
    srd(rX, pX, 1280)
    srd(rWS, pWS, WS_REC)
    a(f"s_cmp_eq_u32 s{sW}, 3")
    a("s_cbranch_scc1 L_comm")

    c("================ waves 0..2: q partial of this member's 80 rows ================")
    srd(rWQ, pWQ, 79 * 12288 + 384, addlo=sT2)
    vXS = vU + 8
    vXC = vU + 13
    for i in range(5):
        a(f"buffer_load_dword v{vXS+i}, v{vXA}, {sr(rX,4)}, 0 offen offset:{256*i}")
    a(f"buffer_load_dword v{vXC}, v{vXA}, {sr(rX,4)}, s{sT3} offen")

    def wq_group(sidx):
        a(f"s_mul_i32 s{sT0}, s{sidx}, 3072")
        a(f"s_add_u32 m0, s{sT0}, {WGT}")
        a(f"s_mul_i32 s{sT0}, s{sidx}, {8*12288}")
        for b in range(3):
            a(f"buffer_load_dwordx4 v{vWQ+b}, {sr(rWQ,4)}, s{sT0} offen offset:{1024*b} {qflags} lds")
    a(f"s_mov_b32 s{sT2}, s{sW}")
    for k in range(3):
        wq_group(sT2)
        a(f"s_add_u32 s{sT2}, s{sT2}, 3")
    a(f"s_cmp_lg_u32 s{sW}, 0")
    a("s_cbranch_scc1 L_wq_done")
    wq_group(sT2)
    lab("L_wq_done")
    srd(rK, pK, HEAD_BYTES, addlo=sT1)
    issue_chunk(rK, sMK, (0,))
    srd(rV, pV, HEAD_BYTES, addlo=sT1)
    stamp("wqiss")
    vMk = vU + 14
    for t in range(4):
        a(f"v_cmp_eq_u32 vcc, {t}, v{vN}")
        nop(2)
        a(f"v_cndmask_b32 v{vMk+t}, 0, -1, vcc")
    a(f"s_lshl_b32 s{sT0}, s{sW}, 8")
    a(f"s_add_u32 s{sT0}, s{sT0}, {XN}")
    a(f"v_add_u32 v{vXA}, s{sT0}, v{vXA}")
    a(f"v_lshl_add_u32 v{vXA+1}, v{vG}, 3, s{sT0}")
    a("s_waitcnt vmcnt(13)")
    stamp("xland")
    vA0 = vE
    for i in range(5):
        unpack(vXS + i, vA0 + 2 * i, vA0 + 2 * i + 1)
    vMean, vVar, vRcp = vT, vT + 1, vT + 2
    for i in (0, 2):
        a(f"v_pk_add_f32 {vr(vS+i,2)}, {vr(vA0+2*i,2)}, {vr(vA0+2*i+2,2)}")
    a(f"v_pk_add_f32 {vr(vS,2)}, {vr(vS,2)}, {vr(vS+2,2)}")
    a(f"v_pk_add_f32 {vr(vS,2)}, {vr(vS,2)}, {vr(vA0+8,2)}")
    a(f"v_add_f32 v{vMean}, v{vS}, v{vS+1}")
    allreduce("v_add_f32", [vMean], [vT + 3])
    a(f"v_mul_f32 v{vMean}, {R640:#x}, v{vMean}")
    for i in range(10):
        a(f"v_sub_f32 v{vA0+i}, v{vA0+i}, v{vMean}")
    a(f"v_pk_mul_f32 {vr(vS,2)}, {vr(vA0,2)}, {vr(vA0,2)}")
    for i in range(1, 5):
        a(f"v_pk_fma_f32 {vr(vS,2)}, {vr(vA0+2*i,2)}, {vr(vA0+2*i,2)}, {vr(vS,2)}")
    a(f"v_add_f32 v{vVar}, v{vS}, v{vS+1}")
    allreduce("v_add_f32", [vVar], [vT + 3])
    a(f"v_mul_f32 v{vVar}, {R640:#x}, v{vVar}")
    ln_finish(vMean, vVar, vRcp, vT + 3)
    normalise_pair(vXC, vXC, vMean, vVar, vRcp, vT + 4)
    a(f"ds_write_b32 v{vXA}, v{vXC}")
    a("s_waitcnt lgkmcnt(0)")
    for b in range(5):
        a(f"ds_read_b64 {vr(vA0+2*b,2)}, v{vXA+1} offset:{32*b}")
    vB = vACC
    a("s_waitcnt lgkmcnt(0)")
    for t in range(4):
        for k in range(8):
            a(f"v_and_b32 v{vB+8*t+k}, v{vA0+k}, v{vMk+t}")
        for k in range(2):
            a(f"v_and_b32 v{vB+32+2*t+k}, v{vA0+8+k}, v{vMk+t}")
    a(f"s_lshl_b32 s{sT2}, s{sW}, 8")
    a(f"s_add_u32 s{sT2}, s{sT2}, s{sRow}")
    a(f"s_lshl_b32 s{sT2}, s{sT2}, 1")
    a(f"s_add_u32 s{sT2}, s{sT2}, {QP}")
    a(f"v_lshlrev_b32 v{vT}, 5, v{vG}")
    a(f"v_lshl_add_u32 v{vT}, v{vN}, 7, v{vT}")
    a(f"v_mov_b32 v{vT+1}, 0")
    stamp("ln")
    a("s_waitcnt vmcnt(4)")
    a("s_barrier")
    stamp("wq")
    rd = [(vF + 8 * t + 2 * b, b * 6144 + t * 32) for t in range(4) for b in range(4)]
    rd += [(vF + 32 + 2 * t, 4 * 6144 + t * 32) for t in range(4)]
    a(f"ds_read_b64 {vr(vS+6,2)}, v{vT+1} offset:{NV_}")
    for k in range(14):
        a(f"ds_read_b64_tr_b16 {vr(rd[k][0],2)}, v{vWA} offset:{rd[k][1]}")
    for k in range(10):
        left = min(20, 14 + 2 * k) - 2 * (k + 1)
        a(f"s_waitcnt lgkmcnt({left})")
        cc = "0" if k == 0 else vr(vS, 4)
        a(f"v_mfma_f32_16x16x32_bf16 {vr(vS,4)}, {vr(vF+4*k,4)}, {vr(vB+4*k,4)}, {cc}")
        for kk in (14 + 2 * k, 15 + 2 * k):
            if kk < 20:
                a(f"ds_read_b64_tr_b16 {vr(rd[kk][0],2)}, v{vWA} offset:{rd[kk][1]}")
    a("s_mov_b32 exec_lo, 0x000f000f")
    a("s_mov_b32 exec_hi, 0x000f000f")
    nop(6)
    a(f"v_mov_b32 v{vS+4}, v{vS+2}")
    a(f"v_mov_b32 v{vS+5}, v{vS+3}")
    a(f"v_mov_b32 v{vS+2}, v{vS+6}")
    a(f"v_mov_b32 v{vS+3}, v{vS+6}")
    a(f"buffer_store_dwordx4 {vr(vS,4)}, v{vT}, {sr(rWS,4)}, s{sT2} offen sc1")
    a(f"buffer_store_dwordx4 {vr(vS+4,4)}, v{vT}, {sr(rWS,4)}, s{sT2} offen offset:16 sc1")
    exec_all()
    stamp("qpub")
    issue_chunk(rK, sMK, (1,))
    if kpace:
        a(f"s_waitcnt vmcnt({kpace})")
    issue_chunk(rK, sMK, (2,))
    for j in range(3):
        a(f"s_waitcnt vmcnt({pace})")
        issue_chunk(rV, sMV, (j,))
    stamp("v0iss")
    a("s_barrier")
    a("s_branch L_qready")

    c("================ wave 3: hand-off set-up and the gather of q ================")
    lab("L_comm")
    c("workgroup 0 draws this launch's nonce (the clock) into debug word 0")
    a("s_cmp_lg_u32 s2, 0")
    a("s_cbranch_scc1 L_no_nonce")
    a(f"s_max_u32 s{sNon}, s{sNon}, 1")
    a(f"s_atomic_add s{sNon}, {sr(pDBG,2)}, 0x0")
    lab("L_no_nonce")
    c("members 0..3 reset one ticket counter of the head each")
    a(f"s_cmp_ge_u32 s{sM}, 4")
    a("s_cbranch_scc1 L_no_ct")
    a(f"s_lshl_b32 s{sT0}, s{sH}, 2")
    a(f"s_add_u32 s{sT0}, s{sT0}, s{sM}")
    a(f"s_lshl_b32 s{sT0}, s{sT0}, 8")
    a(f"s_add_u32 s27, s{sT0}, {CT}")
    a(f"s_mov_b32 s99, 0")
    a(f"s_atomic_swap s99, {sr(pWS,2)}, s27 glc")
    lab("L_no_ct")
    for k in range(4):
        a(f"v_mov_b32 v{vT+k}, -1")
    if cdelay:
        a(f"s_sleep {cdelay}")
    c("mark the slots this workgroup publishes in the tail as empty")
    exec_first(49)
    a(f"s_add_u32 s{sT0}, s{sRow}, {OP}")
    a(f"buffer_store_dwordx4 {vr(vT,4)}, v{vDMA}, {sr(rWS,4)}, s{sT0} offen sc1")
    a(f"s_cmp_ge_u32 s{sR}, 20")
    a("s_cbranch_scc1 L_clr_ffn")
    exec_first(8)
    a(f"s_mul_i32 s{sT0}, s{sM}, 2560")
    a(f"s_lshl_b32 s{sT2}, s{sR}, 7")
    a(f"s_add_u32 s{sT0}, s{sT0}, s{sT2}")
    a(f"s_add_u32 s{sT0}, s{sT0}, {YP}")
    a(f"buffer_store_dwordx4 {vr(vT,4)}, v{vDMA}, {sr(rWS,4)}, s{sT0} offen sc1")
    a("s_branch L_clr_ct")
    lab("L_clr_ffn")
    exec_all()
    a(f"s_mul_i32 s{sT0}, s{sF}, 2560")
    a(f"s_add_u32 s{sT0}, s{sT0}, {FP}")
    a(f"buffer_store_dwordx4 {vr(vT,4)}, v{vDMA}, {sr(rWS,4)}, s{sT0} offen sc1")
    a(f"buffer_store_dwordx4 {vr(vT,4)}, v{vDMA}, {sr(rWS,4)}, s{sT0} offen offset:1024 sc1")
    exec_first(32)
    a(f"buffer_store_dwordx4 {vr(vT,4)}, v{vDMA}, {sr(rWS,4)}, s{sT0} offen offset:2048 sc1")
    lab("L_clr_ct")
    lab("L_clr_done")
    exec_all()
    srd(rK, pK, HEAD_BYTES, addlo=sT1)
    issue_chunk(rK, sMK, (0, 1, 2)[:k3])
    srd(rV, pV, HEAD_BYTES, addlo=sT1)
    a(f"s_mov_b32 s{sBound}, {bound}")
    if ndelay:
        a(f"s_sleep {ndelay}")
    c("first look through the scalar cache (first touch in this launch), further looks by vector loads")
    a("s_waitcnt lgkmcnt(0)")
    a(f"s_load_dword s{sNon}, {sr(pDBG,2)}, 0x0")
    srd(rDBG, pDBG, 256)
    a(f"v_mov_b32 v{vT+6}, 0")
    a("s_waitcnt lgkmcnt(0)")
    lab("L_noncepoll")
    a(f"s_cmp_lg_u32 s{sNon}, 0")
    a("s_cbranch_scc1 L_nonce_ok")
    a(f"buffer_load_dword v{vT+4}, v{vT+6}, {sr(rDBG,4)}, 0 offen sc1")
    a(f"s_sub_u32 s{sBound}, s{sBound}, 1")
    a("s_waitcnt vmcnt(0)")
    a(f"v_readfirstlane_b32 s{sNon}, v{vT+4}")
    a(f"s_cmp_lg_u32 s{sBound}, 0")
    a("s_cbranch_scc1 L_noncepoll")
    a("s_branch L_end")
    lab("L_nonce_ok")
    stamp("nonce")
    a(f"v_mov_b32 v{vT+4}, s{sNon}")
    a(f"v_mov_b32 v{vT+5}, s{sNon}")
    a(f"v_mov_b32 v{vT+6}, 0")
    a(f"ds_write_b64 v{vT+6}, {vr(vT+4,2)} offset:{NV_}")
    a(f"s_lshl_b32 s{sT1}, s{sH}, 14")
    a(f"s_add_u32 s{sT1}, s{sT1}, {QP}")
    for k in range(1, 4):
        a(f"s_add_u32 s{sEx if k == 3 else sT1 + k}, s{sT1}, {4096*k}")
    qbase = [sT1, sT2, sT3, sEx]
    a(f"v_lshlrev_b32 v{vT+6}, 5, v{vLane}")
    a(f"s_waitcnt vmcnt({4*k3}) lgkmcnt(0)")
    stamp("flagst")
    a("s_barrier")
    exec_first(48)
    if gdelay:
        a(f"s_sleep {gdelay}")
    vG2 = vQ
    a(f"s_mov_b32 s{sBound}, {bound}")
    lab("L_qpoll")
    for m in range(8):
        for hh in range(2):
            a(f"buffer_load_dwordx3 {vr(vG2+8*m+4*hh,3)}, v{vT+6}, {sr(rWS,4)}, s{qbase[m//2]} offen offset:{2048*(m%2) + 16*hh} sc1")
    a("s_waitcnt vmcnt(0)")
    a(f"v_xor_b32 v{vT}, v{vG2+2}, v{vT+4}")
    for k in range(1, 16):
        a(f"v_bitop3_b32 v{vT}, v{vG2+4*k+2}, v{vT+4}, v{vT} bitop3:0xbe")
    a(f"v_cmp_ne_u32 vcc, 0, v{vT}")
    nop(1)
    a("s_cbranch_vccz L_qgot")
    a(f"s_sub_u32 s{sBound}, s{sBound}, 1")
    a(f"s_cmp_lg_u32 s{sBound}, 0")
    a("s_cbranch_scc1 L_qpoll")
    a("s_branch L_end")
    lab("L_qgot")
    stamp("qgot")
    for m in range(1, 8):
        for hh in (0, 4):
            a(f"v_pk_add_f32 {vr(vG2+hh,2)}, {vr(vG2+hh,2)}, {vr(vG2+8*m+hh,2)}")
    a(f"v_cvt_pk_bf16_f32 v{vF}, v{vG2}, v{vG2+1}")
    a(f"v_cvt_pk_bf16_f32 v{vF+1}, v{vG2+4}, v{vG2+5}")
    a(f"v_lshlrev_b32 v{vT}, 3, v{vLane}")
    a(f"ds_write_b64 v{vT}, {vr(vF,2)} offset:{QV}")
    exec_all()
    a("s_waitcnt lgkmcnt(0)")
    a("s_barrier")
    c("all eight members have published q, so they have emptied their slots: member 0 counts the head in debug word 32")
    a(f"s_cmp_lg_u32 s{sM}, 0")
    a("s_cbranch_scc1 L_no_cnt")
    a(f"s_mov_b32 s99, 1")
    a(f"s_atomic_add s99, {sr(pDBG,2)}, 0x80")
    lab("L_no_cnt")
    issue_chunk(rK, sMK, (0, 1, 2)[k3:])
    issue_chunk(rV, sMV)
    if k3 < 3:
        a("s_waitcnt vmcnt(12)")

    lab("L_qready")
    stamp("qbar")
    a(f"v_lshlrev_b32 v{vT}, 4, v{vG}")
    for j in range(6):
        a(f"ds_read_b128 {vr(vQ+4*j,4)}, v{vT} offset:{QV + 64*j}")
    a(f"s_mov_b32 s{sTabS}, {ts_ & 0xffffffff:#x}")
    a(f"s_mov_b32 s{sTabS+1}, {ts_ >> 32:#x}")
    a(f"s_mov_b32 s{sTabN}, {tn_ & 0xffffffff:#x}")
    a(f"s_mov_b32 s{sTabN+1}, {tn_ >> 32:#x}")
    a(f"s_lshl_b32 s{sT0}, s{sH}, 2")
    a(f"s_add_u32 s{sT0}, s{sT0}, s{sW}")
    a(f"s_lshl_b32 s{sT0}, s{sT0}, 8")
    a(f"s_add_u32 s{sT0}, s{sT0}, {CT}")
    a(f"s_mov_b32 s97, s{sT0}")
    assert 2 <= chk < sched[0]
    a(f"s_cmp_eq_u32 s{sW}, 3")
    a(f"s_cselect_b32 s98, {chk}, 63")
    a(f"s_mov_b32 s{sLog}, {LOG2E:#x}")
    a(f"s_mov_b32 s{sSc}, {SCALE:#x}")
    c("---------------- weights of the tail -> LDS WGT (12 loads per wave in both roles) ----------------")
    a(f"s_cmp_ge_u32 s{sR}, 20")
    a("s_cbranch_scc1 L_wffn")
    srd(rWA, pWO, 6144 * 1280)
    a(f"v_mul_u32_u24 v{vT+1}, 1280, v{vTR0}")
    a(f"v_lshl_add_u32 v{vT+1}, v{vTR1}, 1, v{vT+1}")
    a(f"s_lshl_b32 s{sT0}, s{sM}, 2")
    a(f"s_add_u32 s{sT0}, s{sT0}, s{sW}")
    a(f"s_mul_i32 s{sT0}, s{sT0}, {192*1280}")
    a(f"s_lshl_b32 s{sT1}, s{sR}, 6")
    a(f"s_add_u32 s{sT0}, s{sT0}, s{sT1}")
    a(f"s_mul_i32 s{sT2}, s{sW}, 12288")
    for i in range(12):
        if i % 4 == 0:
            a(f"s_add_u32 m0, s{sT2}, {WGT + 1024*i}")
        a(f"s_add_u32 s{sT1}, s{sT0}, {20480*i - 1024*(i%4)}")
        a(f"buffer_load_dwordx4 v{vT+1}, {sr(rWA,4)}, s{sT1} offen offset:{1024*(i%4)} {wflags} lds")
    a("s_branch L_wdone")
    lab("L_wffn")
    srd(rWA, pW1, 640 * 3072)
    srd(rWB, pW2, 1536 * 1280)
    a(f"v_lshrrev_b32 v{vT+1}, 1, v{vLane}")
    a(f"v_mul_u32_u24 v{vT+1}, 3072, v{vT+1}")
    a(f"v_and_b32 v{vT+2}, 1, v{vLane}")
    a(f"v_lshl_add_u32 v{vT+1}, v{vT+2}, 4, v{vT+1}")
    a(f"s_mul_i32 s{sT0}, s{sW}, {160*3072}")
    a(f"s_lshl_b32 s{sT1}, s{sF}, 5")
    a(f"s_add_u32 s{sT0}, s{sT0}, s{sT1}")
    a(f"s_mul_i32 s{sT2}, s{sW}, 5120")
    for i in range(5):
        if i % 4 == 0:
            a(f"s_add_u32 m0, s{sT2}, {WGT + 1024*i}")
        a(f"s_add_u32 s{sT1}, s{sT0}, {32*3072*i - 1024*(i%4)}")
        a(f"buffer_load_dwordx4 v{vT+1}, {sr(rWA,4)}, s{sT1} offen offset:{1024*(i%4)} {wflags} lds")
    a(f"s_mul_i32 s{sT0}, s{sF}, 20480")
    a(f"s_add_u32 s{sT0}, s{sT0}, s{sT2}")
    for i in range(5):
        if i % 4 == 0:
            a(f"s_add_u32 m0, s{sT2}, {WGT + 20480 + 1024*i}")
            a(f"s_add_u32 s{sT1}, s{sT0}, {1024*i}")
        a(f"buffer_load_dwordx4 v{vDMA}, {sr(rWB,4)}, s{sT1} offen offset:{1024*(i%4)} {qflags} lds")
    c("x columns 160w + 4*lane (lanes < 40; others read zeros past the end or unused values)")
    a(f"s_mul_i32 s{sT0}, s{sW}, 320")
    a(f"v_lshlrev_b32 v{vT+1}, 3, v{vLane}")
    a(f"buffer_load_dwordx2 {vr(vXF,2)}, v{vT+1}, {sr(rX,4)}, s{sT0} offen")
    a(f"buffer_load_dwordx2 {vr(vXF,2)}, v{vT+1}, {sr(rX,4)}, s{sT0} offen")
    lab("L_wdone")
    c("---------------- streaming state ----------------")
    a(f"v_mov_b32 v{vML}, 0xff800000")
    a(f"v_mov_b32 v{vL}, 0")
    for r in range(48):
        a(f"v_mov_b32 v{vACC+r}, 0")
    a(f"s_mov_b32 s{sCnt}, 0")
    stamp("qrdy")
    if dbgspan:
        a("s_memrealtime s[98:99]")
    a("s_waitcnt lgkmcnt(0)")

    def qk_phase():
        for u in range(2):
            for j in range(6):
                a(f"ds_read_b128 {vr(vF + 24*u + 4*j, 4)}, v{vKA} offset:{6144*u + 64*j}")
        for j in range(6):
            a(f"s_waitcnt lgkmcnt({11 - j})")
            cc = "0" if j == 0 else vr(vS, 4)
            a(f"v_mfma_f32_16x16x32_bf16 {vr(vS,4)}, {vr(vF+4*j,4)}, {vr(vQ+4*j,4)}, {cc}")
        for j in range(6):
            a(f"s_waitcnt lgkmcnt({5 - j})")
            cc = "0" if j == 0 else vr(vS + 4, 4)
            a(f"v_mfma_f32_16x16x32_bf16 {vr(vS+4,4)}, {vr(vF+24+4*j,4)}, {vr(vQ+4*j,4)}, {cc}")

    def softmax_phase():
        for k in range(4):
            a(f"v_cvt_pk_bf16_f32 v{vP+k}, v{vS+2*k}, v{vS+2*k+1}")
        for k in range(4):
            unpack(vP + k, vS + 2 * k, vS + 2 * k + 1)
        for k in range(8):
            a(f"v_mul_f32 v{vS+k}, s{sSc}, v{vS+k}")
        for k in range(4):
            a(f"v_cvt_pk_bf16_f32 v{vP+k}, v{vS+2*k}, v{vS+2*k+1}")
        for k in range(4):
            unpack(vP + k, vS + 2 * k, vS + 2 * k + 1)
        a(f"v_max3_f32 v{vT}, v{vS}, v{vS+1}, v{vS+2}")
        a(f"v_max3_f32 v{vT+1}, v{vS+3}, v{vS+4}, v{vS+5}")
        a(f"v_max3_f32 v{vT}, v{vT}, v{vS+6}, v{vS+7}")
        a(f"v_max_f32 v{vT}, v{vT}, v{vT+1}")
        xgroup("v_max_f32", [vT], [vT + 1])
        a(f"v_mul_f32 v{vT}, s{sLog}, v{vT}")
        a(f"v_cmp_gt_f32 vcc, v{vT}, v{vML}")
        skip = g.newlab("keep")
        nop(1)
        a(f"s_cbranch_vccz {skip}")
        a(f"v_sub_f32 v{vT+1}, v{vML}, v{vT}")
        a(f"v_exp_f32 v{vT+1}, v{vT+1}")
        a(f"v_mov_b32 v{vML}, v{vT}")
        a(f"v_mul_f32 v{vL}, v{vL}, v{vT+1}")
        for r in range(48):
            a(f"v_mul_f32 v{vACC+r}, v{vACC+r}, v{vT+1}")
        lab(skip)
        for k in range(8):
            a(f"v_fma_f32 v{vE+k}, v{vS+k}, s{sLog}, -v{vML}")
        for k in range(8):
            a(f"v_exp_f32 v{vE+k}, v{vE+k}")
        nop(1)
        for k in range(4):
            a(f"v_cvt_pk_bf16_f32 v{vP+k}, v{vE+2*k}, v{vE+2*k+1}")
        for k in range(4):
            a(f"v_add_f32 v{vE+k}, v{vE+k}, v{vE+4+k}")
        a(f"v_add_f32 v{vE}, v{vE}, v{vE+1}")
        a(f"v_add_f32 v{vE+2}, v{vE+2}, v{vE+3}")
        a(f"v_add_f32 v{vE}, v{vE}, v{vE+2}")
        a(f"v_add_f32 v{vL}, v{vL}, v{vE}")

    def pv_phase():
        for t in range(12):
            for u in range(2):
                a(f"ds_read_b64_tr_b16 {vr(vF + 4*t + 2*u, 2)}, v{vVA} offset:{6144*u + 32*t}")
            if t >= 6:
                tt = t - 6
                a(f"s_waitcnt lgkmcnt({2*(t - tt)})")
                a(f"v_mfma_f32_16x16x32_bf16 {vr(vACC+4*tt,4)}, {vr(vF+4*tt,4)}, {vr(vP,4)}, {vr(vACC+4*tt,4)}")
        for tt in range(6, 12):
            a(f"s_waitcnt lgkmcnt({2*(11 - tt)})")
            a(f"v_mfma_f32_16x16x32_bf16 {vr(vACC+4*tt,4)}, {vr(vF+4*tt,4)}, {vr(vP,4)}, {vr(vACC+4*tt,4)}")

    sTk, sCa = 96, 97

    def ticket():
        a(f"s_mov_b32 s{sTk}, 1")
        a(f"s_atomic_add s{sTk}, {sr(pWS,2)}, s{sCa} glc")

    c("================ main loop: one 32-key chunk per trip ================")
    assert sched[0] >= 2
    a("s_branch L_first")
    lab("L_loop")
    a("s_waitcnt vmcnt(12)")
    lab("L_first")
    qk_phase()
    a(f"s_cmp_lg_u32 s{sLeft}, 0")
    a("s_cbranch_scc1 L_have")
    if nblk:
        a(f"s_mov_b32 s{sT1}, s{sTk}")
        a(f"s_cmp_ge_u32 s{sT1}, {8*nblk}")
        a("s_cbranch_scc1 L_last")
        a(f"s_and_b32 s{sJW}, s{sT1}, 7")
        a(f"s_lshl_b32 s{sJW}, s{sJW}, 2")
        a(f"s_add_u32 s{sJW}, s{sJW}, s{sW}")
        a(f"s_mul_i32 s{sJW}, s{sJW}, {CB}")
        a(f"s_and_b32 s{sT1}, s{sT1}, 0xf8")
        a(f"s_lshr_b64 {sr(sEx,2)}, {sr(sTabS,2)}, s{sT1}")
        a(f"s_and_b32 s{sRnd}, s{sEx}, 0xff")
        a(f"s_lshr_b64 {sr(sEx,2)}, {sr(sTabN,2)}, s{sT1}")
        a(f"s_and_b32 s{sLeft}, s{sEx}, 0xff")
    else:
        a("s_branch L_last")
    lab("L_have")
    next_off()
    issue_chunk(rK, sMK)
    softmax_phase()
    a("s_waitcnt vmcnt(12)")
    pv_phase()
    if nblk:
        a(f"s_cmp_lg_u32 s{sLeft}, 0")
        a("s_cbranch_scc1 L_notk")
        ticket()
        lab("L_notk")
    issue_chunk(rV, sMV)
    if diag:
        a(f"s_add_u32 s{sCnt}, s{sCnt}, 1")
    a(f"s_cmp_eq_u32 s{sRnd}, s98")
    a("s_cbranch_scc0 L_loop")
    c("once, in wave 3: every head must have been counted before this workgroup reads tail slots")
    lab("L_chk")
    a(f"s_load_dword s{sT1}, {sr(pDBG,2)}, 0x80")
    a(f"s_mov_b32 s{sBound}, {bound}")
    lab("L_chk_poll")
    a("s_waitcnt lgkmcnt(0)")
    a(f"s_cmp_eq_u32 s{sT1}, 32")
    a("s_cbranch_scc1 L_loop")
    a("s_sleep 32")
    a(f"s_load_dword s{sT1}, {sr(pDBG,2)}, 0x80 glc")
    a(f"s_sub_u32 s{sBound}, s{sBound}, 1")
    a(f"s_cmp_lg_u32 s{sBound}, 0")
    a("s_cbranch_scc1 L_chk_poll")
    a("s_branch L_end")
    lab("L_last")
    nop(8)
    softmax_phase()
    a("s_waitcnt vmcnt(0)")
    pv_phase()
    stamp("stream")
    if dbgspan:
        a("s_memrealtime s[100:101]")
        a("s_waitcnt lgkmcnt(0)")
        a(f"v_mov_b32 v{vE}, s96")
        a(f"v_mov_b32 v{vE+1}, s98")
        a(f"v_mov_b32 v{vE+2}, s100")
        a(f"v_mov_b32 v{vE+3}, 0")
        a(f"s_lshl_b32 s{sT0}, s2, 2")
        a(f"s_add_u32 s{sT0}, s{sT0}, s{sW}")
        a(f"s_lshl_b32 s{sT0}, s{sT0}, 4")
        a(f"s_add_u32 s{sT0}, s{sT0}, {ST}")
        exec_first(1)
        a(f"buffer_store_dwordx4 {vr(vE,4)}, v{vDMA}, {sr(rWS,4)}, s{sT0} offen sc1")
        exec_all()
        a("s_waitcnt vmcnt(0)")
    c("---------------- combine the four waves ----------------")

    def pk_scale(dst, w, src, first):
        for r in (0, 2):
            if first:
                a(f"v_pk_mul_f32 {vr(dst+r,2)}, {vr(w,2)}, {vr(src+r,2)} op_sel_hi:[0,1]")
            else:
                a(f"v_pk_fma_f32 {vr(dst+r,2)}, {vr(w,2)}, {vr(src+r,2)}, {vr(dst+r,2)} op_sel_hi:[0,1,1]")

    def pk_sum4(b):
        for r in (0, 2):
            a(f"v_pk_add_f32 {vr(b+r,2)}, {vr(b+r,2)}, {vr(b+4+r,2)}")
            a(f"v_pk_add_f32 {vr(b+8+r,2)}, {vr(b+8+r,2)}, {vr(b+12+r,2)}")
        for r in (0, 2):
            a(f"v_pk_add_f32 {vr(b+r,2)}, {vr(b+r,2)}, {vr(b+8+r,2)}")

    a(f"s_lshl_b32 s{sT0}, s{sW}, 10")
    a(f"s_add_u32 s{sT0}, s{sT0}, {XO}")
    a(f"v_lshl_add_u32 v{vT+2}, v{vG}, 4, s{sT0}")
    a(f"v_mov_b32 v{vT+1}, s{sT0}")
    xgroup("v_add_f32", [vL], [vT])
    exec_n0()
    a(f"ds_write_b64 v{vT+1}, {vr(vML,2)} offset:768")
    for t in range(12):
        a(f"ds_write_b128 v{vT+2}, {vr(vACC+4*t,4)} offset:{64*t}")
    exec_all()
    a(f"v_mov_b32 v{vT}, 0")
    a(f"s_add_u32 s{sT0}, s{sRow}, {OP}")
    a("s_waitcnt lgkmcnt(0)")
    a("s_barrier")
    a(f"s_cmp_lg_u32 s{sW}, 0")
    a("s_cbranch_scc1 L_pub_done")
    for w in range(4):
        a(f"ds_read_b64 {vr(vE+2*w,2)}, v{vT} offset:{XO + 1024*w + 768}")
    for w in range(4):
        a(f"ds_read_b128 {vr(vF+4*w,4)}, v{vDMA} offset:{XO + 1024*w}")
    a("s_waitcnt lgkmcnt(4)")
    a(f"v_max3_f32 v{vT}, v{vE}, v{vE+2}, v{vE+4}")
    a(f"v_max_f32 v{vT}, v{vT}, v{vE+6}")
    for w in range(4):
        a(f"v_sub_f32 v{vE+2*w}, v{vE+2*w}, v{vT}")
    for w in range(4):
        a(f"v_exp_f32 v{vE+2*w}, v{vE+2*w}")
    a("s_waitcnt lgkmcnt(0)")
    a(f"v_mul_f32 v{vT+1}, v{vE}, v{vE+1}")
    pk_scale(vS, vE, vF, True)
    for w in range(1, 4):
        a(f"v_fmac_f32 v{vT+1}, v{vE+2*w}, v{vE+2*w+1}")
        pk_scale(vS, vE + 2 * w, vF + 4 * w, False)
    a(f"s_bfm_b64 exec, 1, 48")
    a(f"v_mov_b32 v{vS}, v{vT}")
    a(f"v_mov_b32 v{vS+1}, v{vT+1}")
    exec_first(49)
    a(f"v_min_u32 v{vS}, 0xfffffffe, v{vS}")
    a(f"buffer_store_dwordx4 {vr(vS,4)}, v{vDMA}, {sr(rWS,4)}, s{sT0} offen sc1")
    exec_all()
    lab("L_pub_done")
    stamp("opub")
    a(f"s_cmp_ge_u32 s{sR}, 20")
    a("s_cbranch_scc1 L_ffn")

    c("================ output projection role: heads 4m..4m+3, columns 32r..32r+31 ================")
    vWf = vACC
    a(f"s_mul_i32 s{sT0}, s{sW}, 12288")
    a(f"s_add_u32 s{sT0}, s{sT0}, {WGT}")
    a(f"v_lshl_add_u32 v{vT}, v{vTR0}, 6, v{vTR1}")
    a(f"v_add_u32 v{vT}, s{sT0}, v{vT}")
    for t in range(2):
        for b in range(12):
            a(f"ds_read_b64_tr_b16 {vr(vWf + 24*t + 2*b, 2)}, v{vT} offset:{1024*b + 32*t}")
            if (12 * t + b) % 12 == 11:
                a("s_waitcnt lgkmcnt(0)")
    a(f"s_lshl_b32 s{sT1}, s{sM}, 2")
    a(f"s_add_u32 s{sT1}, s{sT1}, s{sW}")
    a(f"s_lshl_b32 s{sT1}, s{sT1}, 13")
    a(f"s_add_u32 s{sT1}, s{sT1}, {OP}")
    a(f"s_add_u32 s{sT2}, s{sT1}, 4096")
    a(f"v_mov_b32 v{vT+4}, 768")
    a(f"s_lshl_b32 s{sT0}, s{sW}, 9")
    a(f"s_add_u32 s{sT0}, s{sT0}, {OV}")
    a(f"v_lshl_add_u32 v{vT+6}, v{vLane}, 3, s{sT0}")
    a(f"v_lshl_add_u32 v{vT+7}, v{vG}, 3, s{sT0}")
    a(f"s_lshl_b32 s{sT0}, s{sW}, 7")
    a(f"s_add_u32 s{sT0}, s{sT0}, {XY}")
    a(f"v_lshl_add_u32 v{vT+8}, v{vG}, 4, s{sT0}")
    a(f"s_mul_i32 s{sT0}, s{sM}, 2560")
    a(f"s_lshl_b32 s{sT3}, s{sR}, 7")
    a(f"s_add_u32 s{sT0}, s{sT0}, s{sT3}")
    a(f"s_add_u32 s{sT0}, s{sT0}, {YP}")
    vO, vMLs = vF, vF + 32
    exec_first(48)

    def aloads():
        for m in range(8):
            so = sT1 if m < 4 else sT2
            a(f"buffer_load_dwordx2 {vr(vMLs+2*m,2)}, v{vT+4}, {sr(rWS,4)}, s{so} offen offset:{1024*(m%4)} sc1")
            a(f"buffer_load_dwordx4 {vr(vO+4*m,4)}, v{vDMA}, {sr(rWS,4)}, s{so} offen offset:{1024*(m%4)} sc1")
    poll(aloads, [vO + 4 * m for m in range(8)] + [vMLs + 2 * m for m in range(8)], vT + 5)
    stamp("hopA")
    a(f"v_max3_f32 v{vT}, v{vMLs}, v{vMLs+2}, v{vMLs+4}")
    a(f"v_max3_f32 v{vT+1}, v{vMLs+6}, v{vMLs+8}, v{vMLs+10}")
    a(f"v_max3_f32 v{vT}, v{vT}, v{vMLs+12}, v{vMLs+14}")
    a(f"v_max_f32 v{vT}, v{vT}, v{vT+1}")
    for m in range(8):
        a(f"v_sub_f32 v{vMLs+2*m}, v{vMLs+2*m}, v{vT}")
    for m in range(8):
        a(f"v_exp_f32 v{vMLs+2*m}, v{vMLs+2*m}")
    a(f"v_mul_f32 v{vT+2}, v{vMLs}, v{vMLs+1}")
    for m in range(1, 8):
        a(f"v_fmac_f32 v{vT+2}, v{vMLs+2*m}, v{vMLs+2*m+1}")
    a(f"v_rcp_f32 v{vT+2}, v{vT+2}")
    for m in range(8):
        pk_scale(vS, vMLs + 2 * m, vO + 4 * m, m == 0)
    pk_scale(vS, vT + 2, vS, True)
    a(f"v_cvt_pk_bf16_f32 v{vS}, v{vS}, v{vS+1}")
    a(f"v_cvt_pk_bf16_f32 v{vS+1}, v{vS+2}, v{vS+3}")
    a(f"ds_write_b64 v{vT+6}, {vr(vS,2)}")
    exec_all()
    a("s_waitcnt lgkmcnt(0)")
    for b in range(12):
        a(f"ds_read_b64 {vr(vQ+2*b,2)}, v{vT+7} offset:{32*b}")
    for j in range(6):
        a(f"s_waitcnt lgkmcnt({10 - 2*j})")
        for t in range(2):
            cc = "0" if j == 0 else vr(vS + 4 * t, 4)
            a(f"v_mfma_f32_16x16x32_bf16 {vr(vS+4*t,4)}, {vr(vWf+24*t+4*j,4)}, {vr(vQ+4*j,4)}, {cc}")
    exec_n0()
    nop(5)
    for t in range(2):
        a(f"ds_write_b128 v{vT+8}, {vr(vS+4*t,4)} offset:{64*t}")
        if t == 0:
            pass
    exec_first(8)
    a("s_waitcnt lgkmcnt(0)")
    a("s_barrier")
    a(f"s_cmp_lg_u32 s{sW}, 0")
    a("s_cbranch_scc1 L_fin")
    for w in range(4):
        a(f"ds_read_b128 {vr(vF+4*w,4)}, v{vDMA} offset:{XY + 128*w}")
    a("s_waitcnt lgkmcnt(0)")
    pk_sum4(vF)
    a(f"v_min_u32 v{vF}, 0xfffffffe, v{vF}")
    a(f"buffer_store_dwordx4 {vr(vF,4)}, v{vDMA}, {sr(rWS,4)}, s{sT0} offen sc1")
    a("s_branch L_fin")

    c("================ FFN role: hidden columns 16f..16f+15 ================")
    lab("L_ffn")
    vW1, vW2, vCs, vMk2, vXU = vACC, vACC + 20, vACC + 40, vU + 18, vACC + 44
    a(f"s_mul_i32 s{sT0}, s{sW}, 5120")
    a(f"s_add_u32 s{sT0}, s{sT0}, {WGT}")
    a(f"v_lshl_add_u32 v{vT}, v{vLane}, 3, s{sT0}")
    for b in range(10):
        a(f"ds_read_b64_tr_b16 {vr(vW1+2*b,2)}, v{vT} offset:{512*b}")
    a(f"v_mul_u32_u24 v{vT+1}, 1280, v{vTR0}")
    a(f"s_mul_i32 s{sT0}, s{sW}, 320")
    a(f"s_add_u32 s{sT1}, s{sT0}, {WGT + 20480}")
    a(f"v_add3_u32 v{vT+1}, v{vT+1}, v{vTR1}, s{sT1}")
    for r in range(4):
        a(f"v_mov_b32 v{vE+r}, 0x3f803f80")
    a(f"v_lshlrev_b32 v{vT+6}, 4, v{vG}")
    a(f"s_lshl_b32 s{sT2}, s{sW}, 6")
    a(f"v_add_u32 v{vT+7}, s{sT2}, v{vT+6}")
    a("s_waitcnt lgkmcnt(0)")
    for t in range(10):
        a(f"ds_read_b64_tr_b16 {vr(vW2+2*t,2)}, v{vT+1} offset:{32*t}")
    c("column sums of this w1 slice (layernorm's mean is applied after the product)")
    for j in range(5):
        cc = "0" if j == 0 else vr(vS, 4)
        a(f"v_mfma_f32_16x16x32_bf16 {vr(vS,4)}, {vr(vW1+4*j,4)}, {vr(vE,4)}, {cc}")
    for t in range(10):
        a(f"v_cmp_eq_u32 vcc, {t}, v{vN}")
        nop(2)
        a(f"v_cndmask_b32 v{vMk2+t}, 0, -1, vcc")
    exec_n0()
    a(f"ds_write_b128 v{vT+7}, {vr(vS,4)} offset:{XC}")
    exec_all()
    a("s_waitcnt lgkmcnt(0)")
    a("s_barrier")
    for w in range(4):
        a(f"ds_read_b128 {vr(vF+4*w,4)}, v{vT+6} offset:{XC + 64*w}")
    unpack(vXF, vXU, vXU + 1)
    unpack(vXF + 1, vXU + 2, vXU + 3)
    a(f"v_lshl_add_u32 v{vT+4}, v{vLane}, 3, s{sT0}")
    a(f"v_lshl_add_u32 v{vT+5}, v{vG}, 3, s{sT0}")
    a(f"s_lshl_b32 s{sT2}, s{sW}, 3")
    a(f"v_mov_b32 v{vT+8}, s{sT2}")
    a(f"v_lshl_add_u32 v{vT+9}, v{vN}, 6, v{vT+6}")
    a("s_waitcnt lgkmcnt(0)")
    pk_sum4(vF)
    for r in range(4):
        a(f"v_mov_b32 v{vCs+r}, v{vF+r}")
    a(f"s_mul_i32 s{sT1}, s{sW}, 640")
    a(f"s_mul_i32 s{sT0}, s{sF}, 2560")
    a(f"s_add_u32 s{sT0}, s{sT0}, s{sT1}")
    a(f"s_add_u32 s{sT0}, s{sT0}, {FP}")
    a(f"s_add_u32 s{sT1}, s{sT1}, {YP}")
    for k in range(1, 4):
        a(f"s_add_u32 s{sEx if k == 3 else sT1 + k}, s{sT1}, {5120*k}")
    ybase = [sT1, sT2, sT3, sEx]
    a(f"v_mov_b32 v{vS+4}, 0")
    a(f"v_mov_b32 v{vS+5}, 0")
    exec_first(40)

    def bloads():
        for m in range(8):
            a(f"buffer_load_dwordx4 {vr(vF+4*m,4)}, v{vDMA}, {sr(rWS,4)}, s{ybase[m//2]} offen offset:{2560*(m%2)} sc1")
    poll(bloads, [vF + 4 * m for m in range(8)], vT + 3)
    stamp("hopB")
    pk_sum4(vF)
    pk_sum4(vF + 16)
    for r in (0, 2):
        a(f"v_pk_add_f32 {vr(vF+r,2)}, {vr(vF+r,2)}, {vr(vF+16+r,2)}")
    a(f"v_cvt_pk_bf16_f32 v{vF+4}, v{vF}, v{vF+1}")
    a(f"v_cvt_pk_bf16_f32 v{vF+5}, v{vF+2}, v{vF+3}")
    unpack(vF + 4, vF, vF + 1)
    unpack(vF + 5, vF + 2, vF + 3)
    for r in (0, 2):
        a(f"v_pk_add_f32 {vr(vF+r,2)}, {vr(vF+r,2)}, {vr(vXU+r,2)}")
    vH = vP
    a(f"v_cvt_pk_bf16_f32 v{vH}, v{vF}, v{vF+1}")
    a(f"v_cvt_pk_bf16_f32 v{vH+1}, v{vF+2}, v{vF+3}")
    a(f"ds_write_b64 v{vT+4}, {vr(vH,2)} offset:{HV}")
    unpack(vH, vF, vF + 1)
    unpack(vH + 1, vF + 2, vF + 3)
    a(f"v_pk_add_f32 {vr(vF+4,2)}, {vr(vF,2)}, {vr(vF+2,2)}")
    a(f"v_pk_mul_f32 {vr(vF,2)}, {vr(vF,2)}, {vr(vF,2)}")
    a(f"v_pk_fma_f32 {vr(vF,2)}, {vr(vF+2,2)}, {vr(vF+2,2)}, {vr(vF,2)}")
    a(f"v_add_f32 v{vS+4}, v{vF+4}, v{vF+5}")
    a(f"v_add_f32 v{vS+5}, v{vF}, v{vF+1}")
    exec_all()
    a("s_waitcnt lgkmcnt(0)")
    for b in range(10):
        a(f"ds_read_b64 {vr(vQ+2*b,2)}, v{vT+5} offset:{HV + 32*b}")
    for k, rr in enumerate((8, 4, 2, 1)):
        for r in (vS + 4, vS + 5):
            a(f"v_add_f32_dpp v{r}, v{r}, v{r} row_ror:{rr} row_mask:0xf bank_mask:0xf")
        a(f"s_waitcnt lgkmcnt({8 - 2*k})")
        cc = "0" if k == 0 else vr(vS, 4)
        a(f"v_mfma_f32_16x16x32_bf16 {vr(vS,4)}, {vr(vW1+4*k,4)}, {vr(vQ+4*k,4)}, {cc}")
    a("s_waitcnt lgkmcnt(0)")
    a(f"v_mfma_f32_16x16x32_bf16 {vr(vS,4)}, {vr(vW1+16,4)}, {vr(vQ+16,4)}, {vr(vS,4)}")
    c("fold the four lane groups: lanes 0..31 end with the sum, lanes 32..63 with the sum of squares")
    a(f"v_permlane32_swap_b32 v{vS+4}, v{vS+5}")
    a(f"v_add_f32 v{vS+4}, v{vS+4}, v{vS+5}")
    a(f"v_mov_b32 v{vS+5}, v{vS+4}")
    a(f"v_lshrrev_b32 v{vT+3}, 5, v{vLane}")
    a(f"v_lshl_add_u32 v{vT+3}, v{vT+3}, 2, v{vT+8}")
    a(f"v_permlane16_swap_b32 v{vS+4}, v{vS+5}")
    a(f"v_add_f32 v{vS+4}, v{vS+4}, v{vS+5}")
    exec_n0()
    a(f"ds_write_b32 v{vT+3}, v{vS+4} offset:{XS}")
    a(f"ds_write_b128 v{vT+7}, {vr(vS,4)} offset:{XH}")
    exec_all()
    a(f"v_mov_b32 v{vT}, 0")
    a("s_waitcnt lgkmcnt(0)")
    a("s_barrier")
    a(f"ds_read_b128 {vr(vE,4)}, v{vT} offset:{XS}")
    a(f"ds_read_b128 {vr(vE+4,4)}, v{vT} offset:{XS+16}")
    for w in range(4):
        a(f"ds_read_b128 {vr(vF+4*w,4)}, v{vT+6} offset:{XH + 64*w}")
    a("s_waitcnt lgkmcnt(4)")
    a(f"v_pk_add_f32 {vr(vE,2)}, {vr(vE,2)}, {vr(vE+2,2)}")
    a(f"v_pk_add_f32 {vr(vE+4,2)}, {vr(vE+4,2)}, {vr(vE+6,2)}")
    a(f"v_pk_add_f32 {vr(vE,2)}, {vr(vE,2)}, {vr(vE+4,2)}")
    a(f"v_mul_f32 v{vMean}, {R640:#x}, v{vE}")
    a(f"v_mul_f32 v{vVar}, {R640:#x}, v{vE+1}")
    a(f"v_fma_f32 v{vVar}, -v{vMean}, v{vMean}, v{vVar}")
    a(f"v_max_f32 v{vVar}, 0, v{vVar}")
    a(f"v_cvt_pk_bf16_f32 v{vT+3}, v{vMean}, v{vVar}")
    unpack(vT + 3, vMean, vVar)
    a(f"v_add_f32 v{vVar}, {EPS:#x}, v{vVar}")
    round_bf16(vVar, vT + 3)
    a(f"v_sqrt_f32 v{vVar}, v{vVar}")
    a("s_waitcnt lgkmcnt(0)")
    pk_sum4(vF)
    round_bf16(vVar, vT + 3)
    a(f"v_rcp_f32 v{vRcp}, v{vVar}")
    for r in (0, 2):
        a(f"v_pk_fma_f32 {vr(vF+r,2)}, {vr(vMean,2)}, {vr(vCs+r,2)}, {vr(vF+r,2)} op_sel_hi:[0,1,1] neg_lo:[1,0,0] neg_hi:[1,0,0]")
    pk_scale(vF, vRcp, vF, True)
    for r in range(4):
        a(f"v_max_f32 v{vF+r}, 0, v{vF+r}")
    a(f"v_cvt_pk_bf16_f32 v{vF+4}, v{vF}, v{vF+1}")
    a(f"v_cvt_pk_bf16_f32 v{vF+5}, v{vF+2}, v{vF+3}")
    c("tile t of w2 lands in result column n = t: operand is hidden where n == t, else 0")
    for u in range(5):
        for t in (2 * u, 2 * u + 1):
            a(f"v_and_b32 v{vQ+2*t}, v{vF+4}, v{vMk2+t}")
            a(f"v_and_b32 v{vQ+2*t+1}, v{vF+5}, v{vMk2+t}")
        if u:
            cc = "0" if u == 1 else vr(vS, 4)
            a(f"v_mfma_f32_16x16x32_bf16 {vr(vS,4)}, {vr(vW2+4*(u-1),4)}, {vr(vQ+4*(u-1),4)}, {cc}")
    nop(1)
    a(f"v_mfma_f32_16x16x32_bf16 {vr(vS,4)}, {vr(vW2+16,4)}, {vr(vQ+16,4)}, {vr(vS,4)}")
    a("s_mov_b32 exec_lo, 0x03ff03ff")
    a("s_mov_b32 exec_hi, 0x03ff03ff")
    nop(6)
    a(f"v_min_u32 v{vS}, 0xfffffffe, v{vS}")
    a(f"buffer_store_dwordx4 {vr(vS,4)}, v{vT+9}, {sr(rWS,4)}, s{sT0} offen sc1")
    exec_all()
    c("---------------- final reduction: workgroups with e = 3m + (r-20) < 20, r < 23 ----------------")
    a(f"s_cmp_ge_u32 s{sR}, 23")
    a("s_cbranch_scc1 L_fin")
    a(f"s_mul_i32 s{sF}, s{sM}, 3")
    a(f"s_add_u32 s{sF}, s{sF}, s{sR}")
    a(f"s_sub_u32 s{sF}, s{sF}, 20")
    a(f"s_cmp_ge_u32 s{sF}, 20")
    a("s_cbranch_scc1 L_fin")
    a(f"v_lshrrev_b32 v{vT}, 3, v{vLane}")
    a(f"v_mul_u32_u24 v{vT}, 2560, v{vT}")
    a(f"v_and_b32 v{vT+1}, 7, v{vLane}")
    a(f"v_lshl_add_u32 v{vT}, v{vT+1}, 4, v{vT}")
    a(f"s_mul_i32 s{sT1}, s{sW}, {24*2560}")
    a(f"s_lshl_b32 s{sT2}, s{sF}, 7")
    a(f"s_add_u32 s{sT1}, s{sT1}, s{sT2}")
    a(f"s_add_u32 s{sT1}, s{sT1}, {FP}")
    a(f"s_add_u32 s{sT2}, s{sT1}, {8*2560}")
    a(f"s_add_u32 s{sT3}, s{sT1}, {16*2560}")
    srd(rOUT, pOUT, 1280)
    a(f"v_lshrrev_b32 v{vT+2}, 1, v{vG}")
    a(f"v_and_b32 v{vT+3}, 1, v{vG}")
    a(f"v_lshl_add_u32 v{vT+2}, v{vT+3}, 1, v{vT+2}")
    a(f"v_lshl_add_u32 v{vT+2}, v{vT+1}, 2, v{vT+2}")
    a(f"s_lshl_b32 s{sT0}, s{sW}, 7")
    a(f"v_lshl_add_u32 v{vT+2}, v{vT+2}, 2, s{sT0}")
    a(f"v_lshlrev_b32 v{vT+3}, 2, v{vLane}")
    a(f"s_lshl_b32 s{sT0}, s{sF}, 6")
    a(f"v_lshl_add_u32 v{vT+4}, v{vLane}, 1, s{sT0}")
    a(f"ds_read_u16 v{vE}, v{vT+4} offset:{HV}")

    def cloads():
        for k, so in enumerate((sT1, sT2, sT3)):
            a(f"buffer_load_dwordx4 {vr(vF+4*k,4)}, v{vT}, {sr(rWS,4)}, s{so} offen sc1")
    stamp("fpub")
    poll(cloads, [vF, vF + 4, vF + 8], vT + 5)
    stamp("hopC")
    for r in (0, 2):
        a(f"v_pk_add_f32 {vr(vF+r,2)}, {vr(vF+r,2)}, {vr(vF+4+r,2)}")
    for r in (0, 2):
        a(f"v_pk_add_f32 {vr(vF+r,2)}, {vr(vF+r,2)}, {vr(vF+8+r,2)}")
    nop(1)
    a(f"v_permlane32_swap_b32 v{vF}, v{vF+1}")
    a(f"v_permlane32_swap_b32 v{vF+2}, v{vF+3}")
    a(f"v_add_f32 v{vF}, v{vF}, v{vF+1}")
    a(f"v_add_f32 v{vF+2}, v{vF+2}, v{vF+3}")
    nop(2)
    a(f"v_permlane16_swap_b32 v{vF}, v{vF+2}")
    a(f"v_add_f32 v{vF}, v{vF}, v{vF+2}")
    nop(2)
    a(f"v_add_f32_dpp v{vF}, v{vF}, v{vF} row_ror:8 row_mask:0xf bank_mask:0xf")
    a(f"ds_write_b32 v{vT+2}, v{vF} offset:{XF}")
    exec_first(32)
    a("s_waitcnt lgkmcnt(0)")
    a("s_barrier")
    a(f"s_cmp_lg_u32 s{sW}, 0")
    a("s_cbranch_scc1 L_fin")
    for w in range(4):
        a(f"ds_read_b32 v{vF+w}, v{vT+3} offset:{XF + 128*w}")
    a(f"v_lshlrev_b32 v{vE}, 16, v{vE}")
    a("s_waitcnt lgkmcnt(0)")
    a(f"v_pk_add_f32 {vr(vF,2)}, {vr(vF,2)}, {vr(vF+2,2)}")
    a(f"v_add_f32 v{vF}, v{vF}, v{vF+1}")
    round_bf16(vF, vF + 1)
    a(f"v_add_f32 v{vF}, v{vF}, v{vE}")
    if perturb:
        a(f"s_cmp_eq_u32 s{sF}, 0")
        a(f"s_cselect_b32 s{sT0}, {perturb:#x}, 0")
        a(f"v_add_f32 v{vF}, s{sT0}, v{vF}")
    a(f"v_cvt_pk_bf16_f32 v{vF}, v{vF}, v{vF}")
    a(f"buffer_store_short v{vF}, v{vT+4}, {sr(rOUT,4)}, 0 offen")
    exec_all()
    if dbgspan:
        a(f"s_cmp_lg_u32 s{sF}, 0")
        a("s_cbranch_scc1 L_fin")
        a("s_waitcnt vmcnt(0)")
        a("s_memrealtime s[96:97]")
        srd(rDBG, pDBG, 256)
        for k in range(16):
            a(f"s_mov_b32 s{sT0}, {ST + 1024*k}")
            a(f"buffer_load_dwordx4 {vr(vACC+4*(k%12) if k < 12 else vF + 4*(k-12),4)}, v{vDMA}, {sr(rWS,4)}, s{sT0} offen sc1")
        a("s_waitcnt vmcnt(0) lgkmcnt(0)")
        regs = [vACC + 4*k for k in range(12)] + [vF + 4*k for k in range(4)]
        a(f"v_mov_b32 v{vE}, v{regs[0]}")
        a(f"v_mov_b32 v{vE+1}, v{regs[0]}")
        a(f"v_mov_b32 v{vE+2}, v{regs[0]+1}")
        a(f"v_mov_b32 v{vE+3}, v{regs[0]+2}")
        a(f"v_mov_b32 v{vE+4}, v{regs[0]+2}")
        for r in regs[1:]:
            a(f"v_min_u32 v{vE}, v{vE}, v{r}")
            a(f"v_max_u32 v{vE+1}, v{vE+1}, v{r}")
            a(f"v_max_u32 v{vE+2}, v{vE+2}, v{r+1}")
            a(f"v_min_u32 v{vE+3}, v{vE+3}, v{r+2}")
            a(f"v_max_u32 v{vE+4}, v{vE+4}, v{r+2}")
        allreduce("v_min_u32", [vE, vE+3], [vT, vT+1])
        allreduce("v_max_u32", [vE+1, vE+2, vE+4], [vT, vT+1, vT+2])
        a(f"v_mov_b32 v{vE+5}, s96")
        for k in range(1, 6):
            a(f"v_sub_u32 v{vE+k}, v{vE+k}, v{vE}")
        exec_first(1)
        a(f"buffer_store_dwordx4 {vr(vE+2,4)}, v{vDMA}, {sr(rDBG,4)}, 0 offen")
        a(f"buffer_store_dword v{vE+1}, v{vDMA}, {sr(rDBG,4)}, 0 offen offset:16")
        exec_all()
    lab("L_fin")
    if diag:
        exec_all()
        a("s_waitcnt vmcnt(0)")
        stamp("end")
        a("s_getreg_b32 s3, hwreg(HW_REG_XCC_ID)")
        a(f"v_writelane_b32 v{vSt}, s3, 30")
        a(f"v_writelane_b32 v{vSt}, s{sCnt}, 31")
        a(f"s_lshl_b32 s{sT0}, s2, 2")
        a(f"s_add_u32 s{sT0}, s{sT0}, s{sW}")
        a(f"s_lshl_b32 s{sT0}, s{sT0}, 7")
        a(f"s_add_u32 s{sT0}, s{sT0}, {ST}")
        a(f"v_lshlrev_b32 v{vT+1}, 2, v{vLane}")
        exec_first(32)
        a(f"buffer_store_dword v{vSt}, v{vT+1}, {sr(rWS,4)}, s{sT0} offen")
    lab("L_end")
    a("s_endpgm")

    out = [HEADER + f"; @launch grid=(256,1,1) block=(256,1,1) lds={LDS_BYTES}",
           '.amdgcn_target "amdgcn-amd-amdhsa--gfx950"', ".text", f".globl {name}", ".p2align 8",
           f".type {name},@function", f"{name}:"]
    out += g.L
    out += ['.section .rodata,"a"', ".p2align 6", f".amdhsa_kernel {name}",
            f"  .amdhsa_next_free_vgpr {NV}", "  .amdhsa_next_free_sgpr 102", f"  .amdhsa_accum_offset {NV}",
            "  .amdhsa_group_segment_fixed_size 0", "  .amdhsa_kernarg_size 88", "  .amdhsa_user_sgpr_count 2",
            "  .amdhsa_user_sgpr_kernarg_segment_ptr 1", "  .amdhsa_system_sgpr_workgroup_id_x 1",
            "  .amdhsa_float_denorm_mode_32 3",
            ".end_amdhsa_kernel"]
    return "\n".join(out) + "\n"


if __name__ == "__main__":
    kw = json.loads(sys.argv[1]) if len(sys.argv) > 1 else {}
    sys.stdout.write(gen(**kw))
```

```python
import sys, json

KNAME = "sequential_preLN__mha_block_cached__dense_activation_relu__decode_kernel"

HEADER = """; Kernarg layout for this problem (88 bytes, ptrs only, base s[0:1]):
"""

QP = 0x180000
OP = 0x040000
YP = 0x080000
FP = 0x090000
CT = 0x0D0000
ST = 0x100000
WS_REC = 0x200000

MISC = 0
WGT = 0x3000
RING = 0xF000
QV = MISC
XO = MISC + 0x200
OV = MISC + 0x1200
XY = MISC + 0x1A00
HV = MISC + 0x1C00
XS = MISC + 0x2200
XN = MISC + 0x2300
XH = MISC + 0x2900
XF = MISC + 0x2A00
XC = MISC + 0x2C00
NV_ = MISC + 0x2D00
LDS_BYTES = RING + 0x18000

SCALE = 0x3d93cd3a
LOG2E = 0x3fb8aa3b
EPS = 0x3727c5ac
R640 = 0x3acccccd
R160 = 0x3bcccccd
HEAD_BYTES = 12582912
CB = 12288


class G:
    def __init__(self):
        self.L = []
        self.nlabel = 0

    def a(self, s):
        self.L.append("  " + s)

    def lab(self, s):
        self.L.append(s + ":")

    def c(self, s):
        self.L.append("  ; " + s)

    def newlab(self, p):
        self.nlabel += 1
        return f"L_{p}{self.nlabel}"

    def nop(self, n):
        while n > 0:
            k = min(n, 16)
            self.a(f"s_nop {k-1}")
            n -= k


def vr(b, n=1):
    return f"v{b}" if n == 1 else f"v[{b}:{b+n-1}]"


def sr(b, n=1):
    return f"s{b}" if n == 1 else f"s[{b}:{b+n-1}]"


def gen(name=KNAME, kvflags="nt", wflags="nt", qflags="nt", sched=(24,4,2,1,1), hstag=3, rot=1, aflags='sc0 sc1', diag=0, bound=1 << 16,
        sleep=0, dbgspan=0, perturb=0, pace=6, k3=3, gdelay=8, fsleep=2, kpace=0, chk=8, cdelay=0, ndelay=0, noclr=0, now=0, nocomp=0, tkpos=1, wpace=8, probe=0, early_setup=1, v3early=1, wat=3, watf=3, wo_pre=9, w1_pre=3, w2_pre=0, swz=1):
    assert not dbgspan
    g = G()
    a, lab, c, nop = g.a, g.lab, g.c, g.nop
    pX, pK, pV, pWQ, pWO, pW1, pW2, pOUT, pDBG, pWS = 4, 6, 8, 10, 12, 16, 18, 20, 22, 24
    rK, rV, rWS, rWQ, rX, rDBG, rWA, rWB, rOUT = 28, 32, 36, 40, 44, 48, 52, 56, 60
    sW, sH, sM, sR, sRow, sRole, sF = 64, 65, 66, 67, 68, 69, 70
    sT0, sT1, sT2, sT3 = 71, 72, 73, 74
    sMK, sMV = 75, 78
    sOff, sCnt, sBound, sChunk = 81, 82, 83, 84
    sEx = 86
    sLog, sSc = 88, 89
    sStamp = 90
    sTm = 100
    vLane, vDMA, vKA, vVA, vG, vT = 1, 2, 3, 4, 5, 6
    vML, vL, vTk, vCa = 16, 17, 18, 19
    vXF = 20
    vS = 24
    vP = 32
    vE = 36
    vQ = 44
    vF = 68
    vACC = 116
    vU = 164
    vWF = 212
    vD3, vKA2, vVA4 = 196, 200, 204
    NV = 216

    vSt = 22
    global STAMPS
    STAMPS = []

    def stamp(nm):
        if not diag or (diag == 2 and nm not in ("stream", "end")):
            return
        if nm not in STAMPS:
            STAMPS.append(nm)
        i = STAMPS.index(nm)
        assert i < 30
        a(f"s_memrealtime {sr(sTm,2)}")
        a("s_waitcnt lgkmcnt(0)")
        a(f"v_writelane_b32 v{vSt}, s{sTm}, {i}")

    def srd(d, p, n, addlo=None):
        if addlo is None:
            a(f"s_mov_b32 s{d}, s{p}")
            a(f"s_and_b32 s{d+1}, s{p+1}, 0xffff")
        else:
            a(f"s_add_u32 s{d}, s{p}, s{addlo}")
            a(f"s_addc_u32 s{d+1}, s{p+1}, 0")
            a(f"s_and_b32 s{d+1}, s{d+1}, 0xffff")
        a(f"s_mov_b32 s{d+2}, {n}")
        a(f"s_mov_b32 s{d+3}, 0x20000")

    def exec_first(n):
        a(f"s_bfm_b64 exec, {n}, 0")

    def exec_all():
        a("s_mov_b64 exec, -1")

    def exec_n0():
        a("s_mov_b32 exec_lo, 0x00010001")
        a("s_mov_b32 exec_hi, 0x00010001")

    def allreduce(op, regs, tmps):
        pad = max(0, 2 - (len(regs) - 1))
        nop(2)
        for rr in (8, 4, 2, 1):
            for r in regs:
                a(f"{op}_dpp v{r}, v{r}, v{r} row_ror:{rr} row_mask:0xf bank_mask:0xf")
            nop(pad)
        xgroup(op, regs, tmps)

    def xgroup(op, regs, tmps):
        for sw in ("v_permlane16_swap_b32", "v_permlane32_swap_b32"):
            for r, t in zip(regs, tmps):
                a(f"v_mov_b32 v{t}, v{r}")
            nop(2)
            for r, t in zip(regs, tmps):
                a(f"{sw} v{r}, v{t}")
            for r, t in zip(regs, tmps):
                a(f"{op} v{r}, v{r}, v{t}")

    def unpack(src, lo, hi):
        a(f"v_lshlrev_b32 v{lo}, 16, v{src}")
        a(f"v_and_b32 v{hi}, 0xffff0000, v{src}")

    def round_bf16(r, t):
        a(f"v_cvt_pk_bf16_f32 v{t}, v{r}, v{r}")
        a(f"v_and_b32 v{r}, 0xffff0000, v{t}")

    def ln_finish(vMean, vVar, vRcp, t):
        round_bf16(vMean, t)
        round_bf16(vVar, t)
        a(f"v_add_f32 v{vVar}, {EPS:#x}, v{vVar}")
        round_bf16(vVar, t)
        a(f"v_sqrt_f32 v{vVar}, v{vVar}")
        nop(1)
        round_bf16(vVar, t)
        a(f"v_rcp_f32 v{vRcp}, v{vVar}")
        nop(1)

    def normalise_pair(src, dst, vMean, vDen, vRcp, t):
        unpack(src, t, t + 1)
        a(f"v_sub_f32 v{t}, v{t}, v{vMean}")
        a(f"v_sub_f32 v{t+1}, v{t+1}, v{vMean}")
        a(f"v_cvt_pk_bf16_f32 v{dst}, v{t}, v{t+1}")
        unpack(dst, t, t + 1)
        for k in (0, 1):
            a(f"v_mul_f32 v{t+2+k}, v{t+k}, v{vRcp}")
        for k in (0, 1):
            a(f"v_fma_f32 v{t+k}, -v{t+2+k}, v{vDen}, v{t+k}")
        for k in (0, 1):
            a(f"v_fma_f32 v{t+2+k}, v{t+k}, v{vRcp}, v{t+2+k}")
        a(f"v_cvt_pk_bf16_f32 v{dst}, v{t+2}, v{t+3}")

    def any_marker(regs, t):
        regs = list(regs)
        a(f"v_max3_u32 v{t}, v{regs[0]}, v{regs[1]}, v{regs[2]}")
        regs = regs[3:]
        while len(regs) >= 2:
            a(f"v_max3_u32 v{t}, v{t}, v{regs[0]}, v{regs[1]}")
            regs = regs[2:]
        if regs:
            a(f"v_max_u32 v{t}, v{t}, v{regs[0]}")
        a(f"v_cmp_eq_u32 vcc, -1, v{t}")

    def poll(loads, regs, t, pre_wait=0):
        top, done = g.newlab("poll"), g.newlab("got")
        a(f"s_mov_b32 s{sBound}, {bound}")
        lab(top)
        loads()
        a(f"s_sub_u32 s{sBound}, s{sBound}, 1")
        a("s_cbranch_scc1 L_end")
        a("s_waitcnt vmcnt(0)")
        any_marker(regs, t)
        if sleep:
            nop(1)
            a(f"s_cbranch_vccz {done}")
            a(f"s_sleep {sleep}")
            a(f"s_branch {top}")
        else:
            nop(1)
            a(f"s_cbranch_vccnz {top}")
        lab(done)

    def issue_chunk(r, m0base, groups=(0, 1, 2)):
        for j in groups:
            a(f"s_mov_b32 m0, s{m0base+j}")
            if j == 0:
                a(f"s_mov_b32 s{sT0}, s{sOff}")
            else:
                a(f"s_add_u32 s{sT0}, s{sOff}, {4096*j}")
            for k in range(4):
                vo = vD3 + (4 * j + k) % 3 if swz else vDMA
                a(f"buffer_load_dwordx4 v{vo}, {sr(r,4)}, s{sT0} offen offset:{1024*k} {kvflags} lds")

    c("---------------- entry ----------------")
    a("s_cmp_ge_u32 s2, 256")
    a("s_cbranch_scc1 L_end")
    if diag:
        a(f"s_memrealtime {sr(sTm,2)}")
    if dbgspan:
        a("s_memrealtime s[96:97]")
    sNon = 26
    a(f"s_memrealtime {sr(sNon,2)}")
    a("s_load_dwordx16 s[4:19], s[0:1], 0")
    a("s_load_dwordx4 s[20:23], s[0:1], 64")
    a("s_load_dwordx2 s[24:25], s[0:1], 80")
    a(f"v_lshrrev_b32 v{vT}, 6, v0")
    a(f"v_and_b32 v{vLane}, 63, v0")
    a(f"v_readfirstlane_b32 s{sW}, v{vT}")
    a(f"v_lshlrev_b32 v{vDMA}, 4, v{vLane}")
    a(f"v_lshrrev_b32 v{vG}, 4, v{vLane}")
    a(f"s_and_b32 s{sM}, s2, 7")
    a(f"s_lshr_b32 s{sR}, s2, 3")
    a(f"s_mul_i32 s{sT0}, s{sM}, {rot}")
    a(f"s_add_u32 s{sH}, s{sR}, s{sT0}")
    a(f"s_and_b32 s{sH}, s{sH}, 31")
    a(f"s_lshl_b32 s{sRow}, s{sH}, 3")
    a(f"s_add_u32 s{sRow}, s{sRow}, s{sM}")
    a(f"s_mul_i32 s{sF}, s{sM}, 12")
    a(f"s_add_u32 s{sF}, s{sF}, s{sR}")
    a(f"s_sub_u32 s{sF}, s{sF}, 20")
    a(f"s_mul_i32 s{sT0}, s{sW}, {2*CB}")
    for j in range(3):
        a(f"s_add_u32 s{sMK+j}, s{sT0}, {RING + 4096*j}")
        a(f"s_add_u32 s{sMV+j}, s{sT0}, {RING + CB + 4096*j}")
    vN = 23
    a(f"v_and_b32 v{vN}, 15, v{vLane}")
    a(f"v_mul_u32_u24 v{vT}, 384, v{vN}")
    a(f"v_lshl_add_u32 v{vT}, v{vG}, 4, v{vT}")
    a(f"v_add_u32 v{vKA}, s{sMK}, v{vT}")
    if swz:
        a(f"v_lshlrev_b32 v{vT+1}, 4, v{vN}")
        a(f"v_and_b32 v{vT+1}, 0x60, v{vT+1}")
        a(f"v_xor_b32 v{vKA2}, v{vKA}, v{vT+1}")
        a(f"v_xor_b32 v{vKA2+1}, 64, v{vKA2}")
    vTR0, vTR1 = vU + 5, vU + 6
    a(f"v_lshrrev_b32 v{vTR0}, 2, v{vLane}")
    a(f"v_and_b32 v{vTR1}, 3, v{vLane}")
    a(f"v_lshlrev_b32 v{vTR1}, 3, v{vTR1}")
    a(f"v_mul_u32_u24 v{vT}, 384, v{vTR0}")
    a(f"v_add_u32 v{vT}, v{vT}, v{vTR1}")
    a(f"v_add_u32 v{vVA}, s{sMV}, v{vT}")
    if swz:
        a(f"v_lshlrev_b32 v{vT+1}, 4, v{vTR0}")
        a(f"v_and_b32 v{vT+1}, 0x60, v{vT+1}")
        a(f"v_xor_b32 v{vVA4}, v{vVA}, v{vT+1}")
        for k in range(1, 4):
            a(f"v_xor_b32 v{vVA4+k}, {32*k}, v{vVA4}")
    vWA = vU + 7
    a(f"s_lshl_b32 s{sT0}, s{sW}, 7")
    a(f"s_add_u32 s{sT0}, s{sT0}, {WGT}")
    a(f"v_add_u32 v{vWA}, s{sT0}, v{vT}")
    assert sum(sched) == 32 and len(sched) <= 9 and pace <= 8
    sRnd, sLeft, sJW, sHs = 84, 85, 90, 91
    sTabS, sTabN = 92, 94
    acc_, ts_, tn_ = sched[0], 0, 0
    for i_, n_ in enumerate(sched[1:]):
        ts_ |= acc_ << (8 * i_); tn_ |= n_ << (8 * i_); acc_ += n_
    nblk = len(sched) - 1
    a(f"s_mul_i32 s{sHs}, s{sH}, {hstag}")
    a(f"s_lshl_b32 s{sJW}, s{sM}, 2")
    a(f"s_add_u32 s{sJW}, s{sJW}, s{sW}")
    a(f"s_mul_i32 s{sJW}, s{sJW}, {CB}")
    a(f"s_mov_b32 s{sRnd}, 0")
    a(f"s_mov_b32 s{sLeft}, {sched[0]}")

    def next_off():
        a(f"s_add_u32 s{sOff}, s{sRnd}, s{sHs}")
        a(f"s_and_b32 s{sOff}, s{sOff}, 31")
        a(f"s_mul_i32 s{sOff}, s{sOff}, {32*CB}")
        a(f"s_add_u32 s{sOff}, s{sOff}, s{sJW}")
        a(f"s_add_u32 s{sRnd}, s{sRnd}, 1")
        a(f"s_sub_u32 s{sLeft}, s{sLeft}, 1")
    next_off()
    vWQ = vU
    for b in range(3):
        a(f"v_add_u32 v{vT}, {64*b}, v{vLane}")
        a(f"v_mul_u32_u24 v{vT}, 2731, v{vT}")
        a(f"v_lshrrev_b32 v{vT}, 16, v{vT}")
        if swz:
            a(f"v_lshlrev_b32 v{vT+1}, 4, v{vT}")
            a(f"v_and_b32 v{vT+1}, 0x60, v{vT+1}")
            a(f"v_xor_b32 v{vD3+b}, v{vT+1}, v{vDMA}")
        a(f"v_mul_u32_u24 v{vT}, 11904, v{vT}")
        a(f"v_add_u32 v{vWQ+b}, v{vT}, v{vDMA}")
    vXA = vU + 3
    a(f"v_lshlrev_b32 v{vXA}, 2, v{vLane}")
    a(f"s_lshl_b32 s{sRow}, s{sRow}, 10")
    a(f"s_mul_i32 s{sT1}, s{sH}, {HEAD_BYTES}")
    a(f"s_mul_i32 s{sT0}, s{sM}, {80*12288}")
    a(f"s_mul_i32 s{sT2}, s{sH}, 384")
    a(f"s_add_u32 s{sT2}, s{sT0}, s{sT2}")
    a(f"s_mul_i32 s{sT3}, s{sM}, 160")
    a("s_waitcnt lgkmcnt(0)")
    if diag:
        a(f"v_mov_b32 v{vSt}, 0")
        a(f"v_writelane_b32 v{vSt}, s{sTm}, 0")
        STAMPS.append("entry")
    stamp("karg")
    srd(rX, pX, 1280)
    srd(rWS, pWS, WS_REC)
    a(f"s_cmp_eq_u32 s{sW}, 3")
    a("s_cbranch_scc1 L_comm")

    def w_loads_wo(rng):
        if not len(rng):
            return
        srd(rWA, pWO, 6144 * 1280)
        a(f"v_mul_u32_u24 v{vT+1}, 1280, v{vTR0}")
        a(f"v_lshl_add_u32 v{vT+1}, v{vTR1}, 1, v{vT+1}")
        a(f"s_lshl_b32 s{sT0}, s{sM}, 2")
        a(f"s_add_u32 s{sT0}, s{sT0}, s{sW}")
        a(f"s_mul_i32 s{sT0}, s{sT0}, {192*1280}")
        a(f"s_lshl_b32 s{sT1}, s{sR}, 6")
        a(f"s_add_u32 s{sT0}, s{sT0}, s{sT1}")
        a(f"s_mul_i32 s{sT2}, s{sW}, 12288")
        for i in rng:
            a(f"s_add_u32 m0, s{sT2}, {WGT + 1024*i}")
            a(f"s_add_u32 s{sT1}, s{sT0}, {20480*i}")
            a(f"buffer_load_dwordx4 v{vT+1}, {sr(rWA,4)}, s{sT1} offen {wflags} lds")

    def w_loads_ffn(r1, r2):
        if not len(r1) and not len(r2):
            return
        srd(rWA, pW1, 640 * 3072)
        srd(rWB, pW2, 1536 * 1280)
        a(f"v_lshrrev_b32 v{vT+1}, 1, v{vLane}")
        a(f"v_mul_u32_u24 v{vT+1}, 3072, v{vT+1}")
        a(f"v_and_b32 v{vT+2}, 1, v{vLane}")
        a(f"v_lshl_add_u32 v{vT+1}, v{vT+2}, 4, v{vT+1}")
        a(f"s_mul_i32 s{sT0}, s{sW}, {160*3072}")
        a(f"s_lshl_b32 s{sT1}, s{sF}, 5")
        a(f"s_add_u32 s{sT0}, s{sT0}, s{sT1}")
        a(f"s_mul_i32 s{sT2}, s{sW}, 5120")
        for i in r1:
            a(f"s_add_u32 m0, s{sT2}, {WGT + 1024*i}")
            a(f"s_add_u32 s{sT1}, s{sT0}, {32*3072*i}")
            a(f"buffer_load_dwordx4 v{vT+1}, {sr(rWA,4)}, s{sT1} offen {wflags} lds")
        a(f"s_mul_i32 s{sT0}, s{sF}, 20480")
        a(f"s_add_u32 s{sT0}, s{sT0}, s{sT2}")
        for i in r2:
            a(f"s_add_u32 m0, s{sT2}, {WGT + 20480 + 1024*i}")
            a(f"s_add_u32 s{sT1}, s{sT0}, {1024*i}")
            a(f"buffer_load_dwordx4 v{vDMA}, {sr(rWB,4)}, s{sT1} offen {qflags} lds")

    def w_loads_at(pos):
        if pos and wat != pos and watf != pos:
            return
        l1, l2 = g.newlab("wf"), g.newlab("wd")
        a(f"s_cmp_ge_u32 s{sR}, 20")
        a(f"s_cbranch_scc1 {l1}")
        if pos == 0:
            w_loads_wo(range(wo_pre))
        elif wat == pos:
            w_loads_wo(range(wo_pre, 12))
        a(f"s_branch {l2}")
        lab(l1)
        if pos == 0:
            w_loads_ffn(range(w1_pre), range(w2_pre))
        elif watf == pos:
            w_loads_ffn(range(w1_pre, 5), range(w2_pre, 5))
        lab(l2)

    def stream_setup():
        a(f"s_mov_b32 s{sTabS}, {ts_ & 0xffffffff:#x}")
        a(f"s_mov_b32 s{sTabS+1}, {ts_ >> 32:#x}")
        a(f"s_mov_b32 s{sTabN}, {tn_ & 0xffffffff:#x}")
        a(f"s_mov_b32 s{sTabN+1}, {tn_ >> 32:#x}")
        a(f"s_lshl_b32 s{sT0}, s{sH}, 2")
        a(f"s_add_u32 s{sT0}, s{sT0}, s{sW}")
        a(f"s_lshl_b32 s{sT0}, s{sT0}, 8")
        a(f"s_add_u32 s{sT0}, s{sT0}, {CT}")
        a(f"s_mov_b32 s97, s{sT0}")
        assert 2 <= chk < sched[0]
        a(f"s_cmp_eq_u32 s{sW}, 3")
        a(f"s_cselect_b32 s98, {chk}, 63")
        a(f"s_mov_b32 s{sLog}, {LOG2E:#x}")
        a(f"s_mov_b32 s{sSc}, {SCALE:#x}")
        c("x columns 160w + 4*lane for the FFN role (lanes < 40; the others read zeros past the end or unused values)")
        a(f"s_mul_i32 s{sT0}, s{sW}, 320")
        a(f"v_lshlrev_b32 v{vT+1}, 3, v{vLane}")
        a(f"buffer_load_dwordx2 {vr(vXF,2)}, v{vT+1}, {sr(rX,4)}, s{sT0} offen")
        c("---------------- streaming state ----------------")
        a(f"v_mov_b32 v{vML}, 0xff800000")
        a(f"v_mov_b32 v{vL}, 0")
        for r in range(48):
            a(f"v_mov_b32 v{vACC+r}, 0")
        a(f"s_mov_b32 s{sCnt}, 0")

    c("================ waves 0..2: q partial of this member's 80 rows ================")
    srd(rWQ, pWQ, 79 * 12288 + 384, addlo=sT2)
    vXS = vU + 8
    vXC = vU + 13
    for i in range(5):
        a(f"buffer_load_dword v{vXS+i}, v{vXA}, {sr(rX,4)}, 0 offen offset:{256*i}")
    a(f"buffer_load_dword v{vXC}, v{vXA}, {sr(rX,4)}, s{sT3} offen")

    def wq_group(sidx):
        a(f"s_mul_i32 s{sT0}, s{sidx}, 3072")
        a(f"s_add_u32 m0, s{sT0}, {WGT}")
        a(f"s_mul_i32 s{sT0}, s{sidx}, {8*12288}")
        for b in range(3):
            a(f"buffer_load_dwordx4 v{vWQ+b}, {sr(rWQ,4)}, s{sT0} offen offset:{1024*b} {qflags} lds")
    a(f"s_mov_b32 s{sT2}, s{sW}")
    for k in range(3):
        wq_group(sT2)
        a(f"s_add_u32 s{sT2}, s{sT2}, 3")
    a(f"s_cmp_lg_u32 s{sW}, 0")
    a("s_cbranch_scc1 L_wq_done")
    wq_group(sT2)
    lab("L_wq_done")
    srd(rK, pK, HEAD_BYTES, addlo=sT1)
    issue_chunk(rK, sMK, (0,))
    srd(rV, pV, HEAD_BYTES, addlo=sT1)
    stamp("wqiss")
    vMk = vU + 14
    for t in range(4):
        a(f"v_cmp_eq_u32 vcc, {t}, v{vN}")
        nop(2)
        a(f"v_cndmask_b32 v{vMk+t}, 0, -1, vcc")
    a(f"s_lshl_b32 s{sT0}, s{sW}, 8")
    a(f"s_add_u32 s{sT0}, s{sT0}, {XN}")
    a(f"v_add_u32 v{vXA}, s{sT0}, v{vXA}")
    a(f"v_lshl_add_u32 v{vXA+1}, v{vG}, 3, s{sT0}")
    a("s_waitcnt vmcnt(13)")
    stamp("xland")
    vA0 = vE
    for i in range(5):
        unpack(vXS + i, vA0 + 2 * i, vA0 + 2 * i + 1)
    vMean, vVar, vRcp = vT, vT + 1, vT + 2
    for i in (0, 2):
        a(f"v_pk_add_f32 {vr(vS+i,2)}, {vr(vA0+2*i,2)}, {vr(vA0+2*i+2,2)}")
    a(f"v_pk_add_f32 {vr(vS,2)}, {vr(vS,2)}, {vr(vS+2,2)}")
    a(f"v_pk_add_f32 {vr(vS,2)}, {vr(vS,2)}, {vr(vA0+8,2)}")
    a(f"v_add_f32 v{vMean}, v{vS}, v{vS+1}")
    allreduce("v_add_f32", [vMean], [vT + 3])
    a(f"v_mul_f32 v{vMean}, {R640:#x}, v{vMean}")
    for i in range(10):
        a(f"v_sub_f32 v{vA0+i}, v{vA0+i}, v{vMean}")
    a(f"v_pk_mul_f32 {vr(vS,2)}, {vr(vA0,2)}, {vr(vA0,2)}")
    for i in range(1, 5):
        a(f"v_pk_fma_f32 {vr(vS,2)}, {vr(vA0+2*i,2)}, {vr(vA0+2*i,2)}, {vr(vS,2)}")
    a(f"v_add_f32 v{vVar}, v{vS}, v{vS+1}")
    allreduce("v_add_f32", [vVar], [vT + 3])
    a(f"v_mul_f32 v{vVar}, {R640:#x}, v{vVar}")
    ln_finish(vMean, vVar, vRcp, vT + 3)
    normalise_pair(vXC, vXC, vMean, vVar, vRcp, vT + 4)
    a(f"ds_write_b32 v{vXA}, v{vXC}")
    a("s_waitcnt lgkmcnt(0)")
    for b in range(5):
        a(f"ds_read_b64 {vr(vA0+2*b,2)}, v{vXA+1} offset:{32*b}")
    vB = vACC
    a("s_waitcnt lgkmcnt(0)")
    for t in range(4):
        for k in range(8):
            a(f"v_and_b32 v{vB+8*t+k}, v{vA0+k}, v{vMk+t}")
        for k in range(2):
            a(f"v_and_b32 v{vB+32+2*t+k}, v{vA0+8+k}, v{vMk+t}")
    a(f"s_lshl_b32 s{sT2}, s{sW}, 8")
    a(f"s_add_u32 s{sT2}, s{sT2}, s{sRow}")
    a(f"s_lshl_b32 s{sT2}, s{sT2}, 1")
    a(f"s_add_u32 s{sT2}, s{sT2}, {QP}")
    a(f"v_lshlrev_b32 v{vT}, 5, v{vG}")
    a(f"v_lshl_add_u32 v{vT}, v{vN}, 7, v{vT}")
    a(f"v_mov_b32 v{vT+1}, 0")
    stamp("ln")
    a("s_waitcnt vmcnt(4)")
    a("s_barrier")
    stamp("wq")
    rd = [(vF + 8 * t + 2 * b, b * 6144 + t * 32) for t in range(4) for b in range(4)]
    rd += [(vF + 32 + 2 * t, 4 * 6144 + t * 32) for t in range(4)]
    a(f"ds_read_b64 {vr(vS+6,2)}, v{vT+1} offset:{NV_}")
    for k in range(14):
        a(f"ds_read_b64_tr_b16 {vr(rd[k][0],2)}, v{vWA} offset:{rd[k][1]}")
    for k in range(10):
        left = min(20, 14 + 2 * k) - 2 * (k + 1)
        a(f"s_waitcnt lgkmcnt({left})")
        cc = "0" if k == 0 else vr(vS, 4)
        a(f"v_mfma_f32_16x16x32_bf16 {vr(vS,4)}, {vr(vF+4*k,4)}, {vr(vB+4*k,4)}, {cc}")
        for kk in (14 + 2 * k, 15 + 2 * k):
            if kk < 20:
                a(f"ds_read_b64_tr_b16 {vr(rd[kk][0],2)}, v{vWA} offset:{rd[kk][1]}")
    a("s_mov_b32 exec_lo, 0x000f000f")
    a("s_mov_b32 exec_hi, 0x000f000f")
    nop(6)
    a(f"v_mov_b32 v{vS+4}, v{vS+2}")
    a(f"v_mov_b32 v{vS+5}, v{vS+3}")
    a(f"v_mov_b32 v{vS+2}, v{vS+6}")
    a(f"v_mov_b32 v{vS+3}, v{vS+6}")
    a(f"buffer_store_dwordx4 {vr(vS,4)}, v{vT}, {sr(rWS,4)}, s{sT2} offen sc1")
    a(f"buffer_store_dwordx4 {vr(vS+4,4)}, v{vT}, {sr(rWS,4)}, s{sT2} offen offset:16 sc1")
    exec_all()
    stamp("qpub")
    issue_chunk(rK, sMK, (1,))
    a("s_barrier")
    if early_setup:
        stream_setup()
    if kpace:
        a(f"s_waitcnt vmcnt({kpace})")
    issue_chunk(rK, sMK, (2,))
    for j in range(3):
        a(f"s_waitcnt vmcnt({pace})")
        issue_chunk(rV, sMV, (j,))
    stamp("v0iss")
    stamp("wiss")
    if not early_setup:
        stream_setup()
    a("s_barrier")
    a("s_branch L_qready")

    c("================ wave 3: hand-off set-up and the gather of q ================")
    lab("L_comm")
    c("workgroup 0 draws this launch's nonce (the clock) into debug word 0")
    a("s_cmp_lg_u32 s2, 0")
    a("s_cbranch_scc1 L_no_nonce")
    a(f"s_max_u32 s{sNon}, s{sNon}, 1")
    a(f"s_mov_b32 s{sNon+1}, 0")
    a(f"s_atomic_cmpswap {sr(sNon,2)}, {sr(pDBG,2)}, 0x0")
    lab("L_no_nonce")
    c("members 0..3 reset one ticket counter of the head each")
    a(f"s_cmp_ge_u32 s{sM}, 4")
    a("s_cbranch_scc1 L_no_ct")
    a(f"s_lshl_b32 s{sT0}, s{sH}, 2")
    a(f"s_add_u32 s{sT0}, s{sT0}, s{sM}")
    a(f"s_lshl_b32 s{sT0}, s{sT0}, 8")
    a(f"s_add_u32 s98, s{sT0}, {CT}")
    a(f"s_mov_b32 s99, 0")
    a(f"s_atomic_swap s99, {sr(pWS,2)}, s98 glc")
    lab("L_no_ct")
    for k in range(4):
        a(f"v_mov_b32 v{vT+k}, -1")
    if cdelay:
        a(f"s_sleep {cdelay}")
    c("mark the slots this workgroup publishes in the tail as empty")
    if noclr:
        a("s_branch L_clr_done")
    exec_first(49)
    a(f"s_add_u32 s{sT0}, s{sRow}, {OP}")
    a(f"buffer_store_dwordx4 {vr(vT,4)}, v{vDMA}, {sr(rWS,4)}, s{sT0} offen sc1")
    a(f"s_cmp_ge_u32 s{sR}, 20")
    a("s_cbranch_scc1 L_clr_ffn")
    exec_first(8)
    a(f"s_mul_i32 s{sT0}, s{sM}, 2560")
    a(f"s_lshl_b32 s{sT2}, s{sR}, 7")
    a(f"s_add_u32 s{sT0}, s{sT0}, s{sT2}")
    a(f"s_add_u32 s{sT0}, s{sT0}, {YP}")
    a(f"buffer_store_dwordx4 {vr(vT,4)}, v{vDMA}, {sr(rWS,4)}, s{sT0} offen sc1")
    a("s_branch L_clr_ct")
    lab("L_clr_ffn")
    exec_all()
    a(f"s_mul_i32 s{sT0}, s{sF}, 2560")
    a(f"s_add_u32 s{sT0}, s{sT0}, {FP}")
    a(f"buffer_store_dwordx4 {vr(vT,4)}, v{vDMA}, {sr(rWS,4)}, s{sT0} offen sc1")
    a(f"buffer_store_dwordx4 {vr(vT,4)}, v{vDMA}, {sr(rWS,4)}, s{sT0} offen offset:1024 sc1")
    exec_first(32)
    a(f"buffer_store_dwordx4 {vr(vT,4)}, v{vDMA}, {sr(rWS,4)}, s{sT0} offen offset:2048 sc1")
    lab("L_clr_ct")
    lab("L_clr_done")
    exec_all()
    srd(rK, pK, HEAD_BYTES, addlo=sT1)
    issue_chunk(rK, sMK, (0, 1, 2)[:k3])
    srd(rV, pV, HEAD_BYTES, addlo=sT1)
    a(f"s_mov_b32 s{sBound}, {bound}")
    if ndelay:
        a(f"s_sleep {ndelay}")
    c("first look through the scalar cache (first touch in this launch), further looks by vector loads")
    a("s_waitcnt lgkmcnt(0)")
    a(f"s_load_dword s{sNon}, {sr(pDBG,2)}, 0x0")
    srd(rDBG, pDBG, 256)
    a(f"v_mov_b32 v{vT+6}, 0")
    a("s_waitcnt lgkmcnt(0)")
    lab("L_noncepoll")
    a(f"s_cmp_lg_u32 s{sNon}, 0")
    a("s_cbranch_scc1 L_nonce_ok")
    a(f"buffer_load_dword v{vT+4}, v{vT+6}, {sr(rDBG,4)}, 0 offen sc1")
    a(f"s_sub_u32 s{sBound}, s{sBound}, 1")
    a("s_waitcnt vmcnt(0)")
    a(f"v_readfirstlane_b32 s{sNon}, v{vT+4}")
    a(f"s_cmp_lg_u32 s{sBound}, 0")
    a("s_cbranch_scc1 L_noncepoll")
    a("s_branch L_end")
    lab("L_nonce_ok")
    stamp("nonce")
    a(f"v_mov_b32 v{vT+4}, s{sNon}")
    a(f"v_mov_b32 v{vT+5}, s{sNon}")
    a(f"v_mov_b32 v{vT+6}, 0")
    a(f"ds_write_b64 v{vT+6}, {vr(vT+4,2)} offset:{NV_}")
    a(f"s_lshl_b32 s{sT1}, s{sH}, 14")
    a(f"s_add_u32 s{sT1}, s{sT1}, {QP}")
    for k in range(1, 4):
        a(f"s_add_u32 s{sEx if k == 3 else sT1 + k}, s{sT1}, {4096*k}")
    qbase = [sT1, sT2, sT3, sEx]
    a(f"v_lshlrev_b32 v{vT+6}, 5, v{vLane}")
    a(f"s_waitcnt vmcnt({4*k3}) lgkmcnt(0)")
    stamp("flagst")
    a("s_barrier")
    stream_setup()
    a("s_barrier")
    exec_first(48)
    if gdelay:
        a(f"s_sleep {gdelay}")
    vG2 = vQ
    a(f"s_mov_b32 s{sBound}, {bound}")
    lab("L_qpoll")
    for m in range(8):
        for hh in range(2):
            a(f"buffer_load_dwordx3 {vr(vG2+8*m+4*hh,3)}, v{vT+6}, {sr(rWS,4)}, s{qbase[m//2]} offen offset:{2048*(m%2) + 16*hh} sc1")
    a("s_waitcnt vmcnt(0)")
    a(f"v_xor_b32 v{vT}, v{vG2+2}, v{vT+4}")
    for k in range(1, 16):
        a(f"v_bitop3_b32 v{vT}, v{vG2+4*k+2}, v{vT+4}, v{vT} bitop3:0xbe")
    a(f"v_cmp_ne_u32 vcc, 0, v{vT}")
    nop(1)
    a("s_cbranch_vccz L_qgot")
    a(f"s_sub_u32 s{sBound}, s{sBound}, 1")
    a(f"s_cmp_lg_u32 s{sBound}, 0")
    a("s_cbranch_scc1 L_qpoll")
    a("s_branch L_end")
    lab("L_qgot")
    stamp("qgot")
    for m in range(1, 8):
        for hh in (0, 4):
            a(f"v_pk_add_f32 {vr(vG2+hh,2)}, {vr(vG2+hh,2)}, {vr(vG2+8*m+hh,2)}")
    a(f"v_cvt_pk_bf16_f32 v{vF}, v{vG2}, v{vG2+1}")
    a(f"v_cvt_pk_bf16_f32 v{vF+1}, v{vG2+4}, v{vG2+5}")
    a(f"v_lshlrev_b32 v{vT}, 3, v{vLane}")
    a(f"ds_write_b64 v{vT}, {vr(vF,2)} offset:{QV}")
    exec_all()
    c("all eight members have published q, so they have emptied their slots: member 0 counts the head in debug word 32")
    a(f"s_cmp_lg_u32 s{sM}, 0")
    a("s_cbranch_scc1 L_no_cnt")
    a(f"s_mov_b32 s99, 1")
    a(f"s_atomic_add s99, {sr(pDBG,2)}, 0x80")
    lab("L_no_cnt")
    assert k3 == 3
    if v3early:
        issue_chunk(rV, sMV)
    a("s_waitcnt lgkmcnt(0)")
    a("s_barrier")
    if not v3early:
        issue_chunk(rV, sMV)

    lab("L_qready")
    w_loads_at(0)
    stamp("qbar")
    a(f"v_lshlrev_b32 v{vT}, 4, v{vG}")
    for j in range(6):
        a(f"ds_read_b128 {vr(vQ+4*j,4)}, v{vT} offset:{QV + 64*j}")
    stamp("qrdy")
    if dbgspan:
        a("s_memrealtime s[98:99]")
    a("s_waitcnt lgkmcnt(0)")

    def qk_phase():
        if nocomp:
            a("s_waitcnt lgkmcnt(0)")
            return
        for u in range(2):
            for j in range(6):
                if swz:
                    a(f"ds_read_b128 {vr(vF + 24*u + 4*j, 4)}, v{vKA2 + (j & 1)} offset:{6144*u + 128*(j >> 1)}")
                else:
                    a(f"ds_read_b128 {vr(vF + 24*u + 4*j, 4)}, v{vKA} offset:{6144*u + 64*j}")
        for j in range(6):
            a(f"s_waitcnt lgkmcnt({11 - j})")
            cc = "0" if j == 0 else vr(vS, 4)
            a(f"v_mfma_f32_16x16x32_bf16 {vr(vS,4)}, {vr(vF+4*j,4)}, {vr(vQ+4*j,4)}, {cc}")
        for j in range(6):
            a(f"s_waitcnt lgkmcnt({5 - j})")
            cc = "0" if j == 0 else vr(vS + 4, 4)
            a(f"v_mfma_f32_16x16x32_bf16 {vr(vS+4,4)}, {vr(vF+24+4*j,4)}, {vr(vQ+4*j,4)}, {cc}")

    def softmax_phase():
        if nocomp:
            return
        for k in range(4):
            a(f"v_cvt_pk_bf16_f32 v{vP+k}, v{vS+2*k}, v{vS+2*k+1}")
        for k in range(4):
            unpack(vP + k, vS + 2 * k, vS + 2 * k + 1)
        for k in range(8):
            a(f"v_mul_f32 v{vS+k}, s{sSc}, v{vS+k}")
        for k in range(4):
            a(f"v_cvt_pk_bf16_f32 v{vP+k}, v{vS+2*k}, v{vS+2*k+1}")
        for k in range(4):
            unpack(vP + k, vS + 2 * k, vS + 2 * k + 1)
        a(f"v_max3_f32 v{vT}, v{vS}, v{vS+1}, v{vS+2}")
        a(f"v_max3_f32 v{vT+1}, v{vS+3}, v{vS+4}, v{vS+5}")
        a(f"v_max3_f32 v{vT}, v{vT}, v{vS+6}, v{vS+7}")
        a(f"v_max_f32 v{vT}, v{vT}, v{vT+1}")
        xgroup("v_max_f32", [vT], [vT + 1])
        a(f"v_mul_f32 v{vT}, s{sLog}, v{vT}")
        a(f"v_cmp_gt_f32 vcc, v{vT}, v{vML}")
        skip = g.newlab("keep")
        nop(1)
        a(f"s_cbranch_vccz {skip}")
        a(f"v_sub_f32 v{vT+1}, v{vML}, v{vT}")
        a(f"v_exp_f32 v{vT+1}, v{vT+1}")
        a(f"v_mov_b32 v{vML}, v{vT}")
        a(f"v_mul_f32 v{vL}, v{vL}, v{vT+1}")
        for r in range(0, 48, 4):
            a(f"v_mul_f32 v{vACC+r}, v{vACC+r}, v{vT+1}")
        lab(skip)
        for k in range(8):
            a(f"v_fma_f32 v{vE+k}, v{vS+k}, s{sLog}, -v{vML}")
        for k in range(8):
            a(f"v_exp_f32 v{vE+k}, v{vE+k}")
        nop(1)
        for k in range(4):
            a(f"v_cvt_pk_bf16_f32 v{vP+k}, v{vE+2*k}, v{vE+2*k+1}")
        for k in range(4):
            a(f"v_add_f32 v{vE+k}, v{vE+k}, v{vE+4+k}")
        a(f"v_add_f32 v{vE}, v{vE}, v{vE+1}")
        a(f"v_add_f32 v{vE+2}, v{vE+2}, v{vE+3}")
        a(f"v_add_f32 v{vE}, v{vE}, v{vE+2}")
        a(f"v_add_f32 v{vL}, v{vL}, v{vE}")

    def pv_phase():
        if nocomp:
            return
        for t in range(12):
            for u in range(2):
                if swz:
                    a(f"ds_read_b64_tr_b16 {vr(vF + 4*t + 2*u, 2)}, v{vVA4 + (t & 3)} offset:{6144*u + 128*(t >> 2)}")
                else:
                    a(f"ds_read_b64_tr_b16 {vr(vF + 4*t + 2*u, 2)}, v{vVA} offset:{6144*u + 32*t}")
            if t >= 6:
                tt = t - 6
                a(f"s_waitcnt lgkmcnt({2*(t - tt)})")
                a(f"v_mfma_f32_16x16x32_bf16 {vr(vACC+4*tt,4)}, {vr(vP,4)}, {vr(vF+4*tt,4)}, {vr(vACC+4*tt,4)}")
        for tt in range(6, 12):
            a(f"s_waitcnt lgkmcnt({2*(11 - tt)})")
            a(f"v_mfma_f32_16x16x32_bf16 {vr(vACC+4*tt,4)}, {vr(vP,4)}, {vr(vF+4*tt,4)}, {vr(vACC+4*tt,4)}")

    sTk, sCa = 96, 97

    def ticket():
        a(f"s_mov_b32 s{sTk}, 1")
        a(f"s_atomic_add s{sTk}, {sr(pWS,2)}, s{sCa} glc")

    def maybe_ticket():
        a(f"s_cmp_lg_u32 s{sLeft}, 0")
        a("s_cbranch_scc1 L_notk")
        ticket()
        lab("L_notk")

    c("================ main loop: one 32-key chunk per trip ================")
    assert sched[0] >= 2
    a("s_branch L_first")
    lab("L_loop")
    if nblk and tkpos == 1:
        maybe_ticket()
    a("s_waitcnt vmcnt(12)")
    if nblk and tkpos == 2:
        maybe_ticket()
    lab("L_first")
    qk_phase()
    a(f"s_cmp_lg_u32 s{sLeft}, 0")
    a("s_cbranch_scc1 L_have")
    if nblk:
        a(f"s_mov_b32 s{sT1}, s{sTk}")
        a(f"s_cmp_ge_u32 s{sT1}, {8*nblk}")
        a("s_cbranch_scc1 L_last")
        a(f"s_and_b32 s{sJW}, s{sT1}, 7")
        a(f"s_lshl_b32 s{sJW}, s{sJW}, 2")
        a(f"s_add_u32 s{sJW}, s{sJW}, s{sW}")
        a(f"s_mul_i32 s{sJW}, s{sJW}, {CB}")
        a(f"s_and_b32 s{sT1}, s{sT1}, 0xf8")
        a(f"s_lshr_b64 {sr(sEx,2)}, {sr(sTabS,2)}, s{sT1}")
        a(f"s_and_b32 s{sRnd}, s{sEx}, 0xff")
        a(f"s_lshr_b64 {sr(sEx,2)}, {sr(sTabN,2)}, s{sT1}")
        a(f"s_and_b32 s{sLeft}, s{sEx}, 0xff")
    else:
        a("s_branch L_last")
    lab("L_have")
    next_off()
    issue_chunk(rK, sMK)
    softmax_phase()
    a("s_waitcnt vmcnt(12)")
    pv_phase()
    if nblk and tkpos == 0:
        maybe_ticket()
    issue_chunk(rV, sMV)
    if diag:
        a(f"s_add_u32 s{sCnt}, s{sCnt}, 1")
    a(f"s_cmp_eq_u32 s{sRnd}, s98")
    a("s_cbranch_scc0 L_loop")
    c("once, in wave 3: every head must have been counted before this workgroup reads tail slots")
    lab("L_chk")
    a(f"s_load_dword s{sT1}, {sr(pDBG,2)}, 0x80")
    a(f"s_mov_b32 s{sBound}, {bound}")
    lab("L_chk_poll")
    a("s_waitcnt lgkmcnt(0)")
    a(f"s_cmp_ge_u32 s{sT1}, 32")
    a("s_cbranch_scc1 L_loop")
    a("s_sleep 32")
    a(f"s_load_dword s{sT1}, {sr(pDBG,2)}, 0x80 glc")
    a(f"s_sub_u32 s{sBound}, s{sBound}, 1")
    a(f"s_cmp_lg_u32 s{sBound}, 0")
    a("s_cbranch_scc1 L_chk_poll")
    a("s_branch L_end")
    lab("L_last")
    nop(8)
    softmax_phase()
    c("weights of the tail -> LDS WGT, behind the last V chunk")
    if wat == 1 or watf == 1:
        l1, l2 = "L_w1f", "L_w1d"
        a(f"s_cmp_ge_u32 s{sR}, 20")
        a(f"s_cbranch_scc1 {l1}")
        if wat == 1:
            w_loads_wo(range(wo_pre, 12))
        a(f"s_waitcnt vmcnt({12 - wo_pre if wat == 1 else 0})")
        a(f"s_branch {l2}")
        lab(l1)
        if watf == 1:
            w_loads_ffn(range(w1_pre, 5), range(w2_pre, 5))
        a(f"s_waitcnt vmcnt({10 - w1_pre - w2_pre if watf == 1 else 0})")
        lab(l2)
    else:
        a("s_waitcnt vmcnt(0)")
    pv_phase()
    stamp("stream")
    if dbgspan:
        a("s_memrealtime s[100:101]")
        a("s_waitcnt lgkmcnt(0)")
        a(f"v_mov_b32 v{vE}, s96")
        a(f"v_mov_b32 v{vE+1}, s98")
        a(f"v_mov_b32 v{vE+2}, s100")
        a(f"v_mov_b32 v{vE+3}, 0")
        a(f"s_lshl_b32 s{sT0}, s2, 2")
        a(f"s_add_u32 s{sT0}, s{sT0}, s{sW}")
        a(f"s_lshl_b32 s{sT0}, s{sT0}, 4")
        a(f"s_add_u32 s{sT0}, s{sT0}, {ST}")
        exec_first(1)
        a(f"buffer_store_dwordx4 {vr(vE,4)}, v{vDMA}, {sr(rWS,4)}, s{sT0} offen sc1")
        exec_all()
        a("s_waitcnt vmcnt(0)")
    c("---------------- combine the four waves ----------------")

    def pk_scale(dst, w, src, first):
        for r in (0, 2):
            if first:
                a(f"v_pk_mul_f32 {vr(dst+r,2)}, {vr(w,2)}, {vr(src+r,2)} op_sel_hi:[0,1]")
            else:
                a(f"v_pk_fma_f32 {vr(dst+r,2)}, {vr(w,2)}, {vr(src+r,2)}, {vr(dst+r,2)} op_sel_hi:[0,1,1]")

    def pk_sum4(b):
        for r in (0, 2):
            a(f"v_pk_add_f32 {vr(b+r,2)}, {vr(b+r,2)}, {vr(b+4+r,2)}")
            a(f"v_pk_add_f32 {vr(b+8+r,2)}, {vr(b+8+r,2)}, {vr(b+12+r,2)}")
        for r in (0, 2):
            a(f"v_pk_add_f32 {vr(b+r,2)}, {vr(b+r,2)}, {vr(b+8+r,2)}")

    a(f"s_lshl_b32 s{sT0}, s{sW}, 10")
    a(f"s_add_u32 s{sT0}, s{sT0}, {XO}")
    a(f"v_lshl_add_u32 v{vT+2}, v{vN}, 2, s{sT0}")
    a(f"v_mov_b32 v{vT+1}, s{sT0}")
    xgroup("v_add_f32", [vL], [vT])
    exec_first(16)
    a(f"ds_write_b64 v{vT+1}, {vr(vML,2)} offset:768")
    for t in range(0, 12, 2):
        a(f"ds_write2_b32 v{vT+2}, v{vACC+4*t}, v{vACC+4*t+4} offset0:{16*t} offset1:{16*t+16}")
    exec_all()
    w_loads_at(2)
    a(f"v_mov_b32 v{vT}, 0")
    a(f"s_add_u32 s{sT0}, s{sRow}, {OP}")
    a("s_waitcnt lgkmcnt(0)")
    a("s_barrier")
    a(f"s_cmp_lg_u32 s{sW}, 0")
    a("s_cbranch_scc1 L_pub_done")
    for w in range(4):
        a(f"ds_read_b64 {vr(vE+2*w,2)}, v{vT} offset:{XO + 1024*w + 768}")
    for w in range(4):
        a(f"ds_read_b128 {vr(vF+4*w,4)}, v{vDMA} offset:{XO + 1024*w}")
    a("s_waitcnt lgkmcnt(4)")
    a(f"v_max3_f32 v{vT}, v{vE}, v{vE+2}, v{vE+4}")
    a(f"v_max_f32 v{vT}, v{vT}, v{vE+6}")
    for w in range(4):
        a(f"v_sub_f32 v{vE+2*w}, v{vE+2*w}, v{vT}")
    for w in range(4):
        a(f"v_exp_f32 v{vE+2*w}, v{vE+2*w}")
    a("s_waitcnt lgkmcnt(0)")
    a(f"v_mul_f32 v{vT+1}, v{vE}, v{vE+1}")
    pk_scale(vS, vE, vF, True)
    for w in range(1, 4):
        a(f"v_fmac_f32 v{vT+1}, v{vE+2*w}, v{vE+2*w+1}")
        pk_scale(vS, vE + 2 * w, vF + 4 * w, False)
    a(f"s_bfm_b64 exec, 1, 48")
    a(f"v_mov_b32 v{vS}, v{vT}")
    a(f"v_mov_b32 v{vS+1}, v{vT+1}")
    exec_first(49)
    a(f"v_min_u32 v{vS}, 0xfffffffe, v{vS}")
    a(f"buffer_store_dwordx4 {vr(vS,4)}, v{vDMA}, {sr(rWS,4)}, s{sT0} offen sc1")
    exec_all()
    lab("L_pub_done")
    stamp("opub")
    w_loads_at(3)
    a(f"s_cmp_ge_u32 s{sR}, 20")
    a("s_cbranch_scc1 L_ffn")

    c("================ output projection role: heads 4m..4m+3, columns 32r..32r+31 ================")
    vWf = vACC
    a(f"s_mul_i32 s{sT0}, s{sW}, 12288")
    a(f"s_add_u32 s{sT0}, s{sT0}, {WGT}")
    a(f"v_lshl_add_u32 v{vT}, v{vTR0}, 6, v{vTR1}")
    a(f"v_add_u32 v{vT}, s{sT0}, v{vT}")
    a(f"s_lshl_b32 s{sT1}, s{sM}, 2")
    a(f"s_add_u32 s{sT1}, s{sT1}, s{sW}")
    a(f"s_lshl_b32 s{sT1}, s{sT1}, 13")
    a(f"s_add_u32 s{sT1}, s{sT1}, {OP}")
    a(f"s_add_u32 s{sT2}, s{sT1}, 4096")
    a(f"v_mov_b32 v{vT+4}, 768")
    a(f"s_lshl_b32 s{sT0}, s{sW}, 9")
    a(f"s_add_u32 s{sT0}, s{sT0}, {OV}")
    a(f"v_lshl_add_u32 v{vT+6}, v{vLane}, 3, s{sT0}")
    a(f"v_lshl_add_u32 v{vT+7}, v{vG}, 3, s{sT0}")
    a(f"s_lshl_b32 s{sT0}, s{sW}, 7")
    a(f"s_add_u32 s{sT0}, s{sT0}, {XY}")
    a(f"v_lshl_add_u32 v{vT+8}, v{vG}, 4, s{sT0}")
    a(f"s_mul_i32 s{sT0}, s{sM}, 2560")
    a(f"s_lshl_b32 s{sT3}, s{sR}, 7")
    a(f"s_add_u32 s{sT0}, s{sT0}, s{sT3}")
    a(f"s_add_u32 s{sT0}, s{sT0}, {YP}")
    vO, vMLs = vF, vF + 32
    if wo_pre < 12:
        a("s_waitcnt vmcnt(0)")
    stamp("wland")
    for t in range(2):
        for b in range(12):
            a(f"ds_read_b64_tr_b16 {vr(vWf + 24*t + 2*b, 2)}, v{vT} offset:{1024*b + 32*t}")
            if (12 * t + b) % 12 == 11:
                a("s_waitcnt lgkmcnt(0)")
    exec_first(48)

    def aloads():
        for m in range(8):
            so = sT1 if m < 4 else sT2
            a(f"buffer_load_dwordx2 {vr(vMLs+2*m,2)}, v{vT+4}, {sr(rWS,4)}, s{so} offen offset:{1024*(m%4)} sc1")
            a(f"buffer_load_dwordx4 {vr(vO+4*m,4)}, v{vDMA}, {sr(rWS,4)}, s{so} offen offset:{1024*(m%4)} sc1")
    poll(aloads, [vO + 4 * m for m in range(8)] + [vMLs + 2 * m for m in range(8)], vT + 5)
    stamp("hopA")
    a(f"v_max3_f32 v{vT}, v{vMLs}, v{vMLs+2}, v{vMLs+4}")
    a(f"v_max3_f32 v{vT+1}, v{vMLs+6}, v{vMLs+8}, v{vMLs+10}")
    a(f"v_max3_f32 v{vT}, v{vT}, v{vMLs+12}, v{vMLs+14}")
    a(f"v_max_f32 v{vT}, v{vT}, v{vT+1}")
    for m in range(8):
        a(f"v_sub_f32 v{vMLs+2*m}, v{vMLs+2*m}, v{vT}")
    for m in range(8):
        a(f"v_exp_f32 v{vMLs+2*m}, v{vMLs+2*m}")
    a(f"v_mul_f32 v{vT+2}, v{vMLs}, v{vMLs+1}")
    for m in range(1, 8):
        a(f"v_fmac_f32 v{vT+2}, v{vMLs+2*m}, v{vMLs+2*m+1}")
    a(f"v_rcp_f32 v{vT+2}, v{vT+2}")
    for m in range(8):
        pk_scale(vS, vMLs + 2 * m, vO + 4 * m, m == 0)
    pk_scale(vS, vT + 2, vS, True)
    a(f"v_cvt_pk_bf16_f32 v{vS}, v{vS}, v{vS+1}")
    a(f"v_cvt_pk_bf16_f32 v{vS+1}, v{vS+2}, v{vS+3}")
    a(f"ds_write_b64 v{vT+6}, {vr(vS,2)}")
    exec_all()
    a("s_waitcnt lgkmcnt(0)")
    for b in range(12):
        a(f"ds_read_b64 {vr(vQ+2*b,2)}, v{vT+7} offset:{32*b}")
    for j in range(6):
        a(f"s_waitcnt lgkmcnt({10 - 2*j})")
        for t in range(2):
            cc = "0" if j == 0 else vr(vS + 4 * t, 4)
            a(f"v_mfma_f32_16x16x32_bf16 {vr(vS+4*t,4)}, {vr(vWf+24*t+4*j,4)}, {vr(vQ+4*j,4)}, {cc}")
    exec_n0()
    nop(5)
    for t in range(2):
        a(f"ds_write_b128 v{vT+8}, {vr(vS+4*t,4)} offset:{64*t}")
        if t == 0:
            pass
    exec_first(8)
    a("s_waitcnt lgkmcnt(0)")
    a("s_barrier")
    a(f"s_cmp_lg_u32 s{sW}, 0")
    a("s_cbranch_scc1 L_fin")
    for w in range(4):
        a(f"ds_read_b128 {vr(vF+4*w,4)}, v{vDMA} offset:{XY + 128*w}")
    a("s_waitcnt lgkmcnt(0)")
    pk_sum4(vF)
    a(f"v_min_u32 v{vF}, 0xfffffffe, v{vF}")
    a(f"buffer_store_dwordx4 {vr(vF,4)}, v{vDMA}, {sr(rWS,4)}, s{sT0} offen sc1")
    a("s_branch L_fin")

    c("================ FFN role: hidden columns 16f..16f+15 ================")
    lab("L_ffn")
    vW1, vW2, vCs, vMk2, vXU = vACC, vACC + 20, vACC + 40, vU + 18, vACC + 44
    a(f"s_mul_i32 s{sT0}, s{sW}, 5120")
    a(f"s_add_u32 s{sT0}, s{sT0}, {WGT}")
    a(f"v_lshl_add_u32 v{vT}, v{vLane}, 3, s{sT0}")
    for t in range(10):
        a(f"v_cmp_eq_u32 vcc, {t}, v{vN}")
        nop(2)
        a(f"v_cndmask_b32 v{vMk2+t}, 0, -1, vcc")
    a("s_waitcnt vmcnt(0)")
    stamp("wland")
    for b in range(10):
        a(f"ds_read_b64_tr_b16 {vr(vW1+2*b,2)}, v{vT} offset:{512*b}")
    a(f"v_mul_u32_u24 v{vT+1}, 1280, v{vTR0}")
    a(f"s_mul_i32 s{sT0}, s{sW}, 320")
    a(f"s_add_u32 s{sT1}, s{sT0}, {WGT + 20480}")
    a(f"v_add3_u32 v{vT+1}, v{vT+1}, v{vTR1}, s{sT1}")
    for r in range(4):
        a(f"v_mov_b32 v{vE+r}, 0x3f803f80")
    a(f"v_lshlrev_b32 v{vT+6}, 4, v{vG}")
    a(f"s_lshl_b32 s{sT2}, s{sW}, 6")
    a(f"v_add_u32 v{vT+7}, s{sT2}, v{vT+6}")
    a("s_waitcnt lgkmcnt(0)")
    c("column sums of this w1 slice (layernorm's mean is applied after the product)")
    for j in range(5):
        cc = "0" if j == 0 else vr(vS, 4)
        a(f"v_mfma_f32_16x16x32_bf16 {vr(vS,4)}, {vr(vW1+4*j,4)}, {vr(vE,4)}, {cc}")
    nop(8)
    exec_n0()
    a(f"ds_write_b128 v{vT+7}, {vr(vS,4)} offset:{XC}")
    exec_all()
    a("s_waitcnt lgkmcnt(0)")
    a("s_barrier")
    for w in range(4):
        a(f"ds_read_b128 {vr(vF+4*w,4)}, v{vT+6} offset:{XC + 64*w}")
    for t in range(10):
        a(f"ds_read_b64_tr_b16 {vr(vW2+2*t,2)}, v{vT+1} offset:{32*t}")
    unpack(vXF, vXU, vXU + 1)
    unpack(vXF + 1, vXU + 2, vXU + 3)
    a(f"v_lshl_add_u32 v{vT+4}, v{vLane}, 3, s{sT0}")
    a(f"v_lshl_add_u32 v{vT+5}, v{vG}, 3, s{sT0}")
    a(f"s_lshl_b32 s{sT2}, s{sW}, 3")
    a(f"v_mov_b32 v{vT+8}, s{sT2}")
    a(f"v_lshl_add_u32 v{vT+9}, v{vN}, 6, v{vT+6}")
    a("s_waitcnt lgkmcnt(0)")
    pk_sum4(vF)
    for r in range(4):
        a(f"v_mov_b32 v{vCs+r}, v{vF+r}")
    a(f"s_mul_i32 s{sT1}, s{sW}, 640")
    a(f"s_mul_i32 s{sT0}, s{sF}, 2560")
    a(f"s_add_u32 s{sT0}, s{sT0}, s{sT1}")
    a(f"s_add_u32 s{sT0}, s{sT0}, {FP}")
    a(f"s_add_u32 s{sT1}, s{sT1}, {YP}")
    for k in range(1, 4):
        a(f"s_add_u32 s{sEx if k == 3 else sT1 + k}, s{sT1}, {5120*k}")
    ybase = [sT1, sT2, sT3, sEx]
    a(f"v_mov_b32 v{vS+4}, 0")
    a(f"v_mov_b32 v{vS+5}, 0")
    exec_first(40)

    def bloads():
        for m in range(8):
            a(f"buffer_load_dwordx4 {vr(vF+4*m,4)}, v{vDMA}, {sr(rWS,4)}, s{ybase[m//2]} offen offset:{2560*(m%2)} sc1")
    poll(bloads, [vF + 4 * m for m in range(8)], vT + 3)
    stamp("hopB")
    pk_sum4(vF)
    pk_sum4(vF + 16)
    for r in (0, 2):
        a(f"v_pk_add_f32 {vr(vF+r,2)}, {vr(vF+r,2)}, {vr(vF+16+r,2)}")
    a(f"v_cvt_pk_bf16_f32 v{vF+4}, v{vF}, v{vF+1}")
    a(f"v_cvt_pk_bf16_f32 v{vF+5}, v{vF+2}, v{vF+3}")
    unpack(vF + 4, vF, vF + 1)
    unpack(vF + 5, vF + 2, vF + 3)
    for r in (0, 2):
        a(f"v_pk_add_f32 {vr(vF+r,2)}, {vr(vF+r,2)}, {vr(vXU+r,2)}")
    vH = vP
    a(f"v_cvt_pk_bf16_f32 v{vH}, v{vF}, v{vF+1}")
    a(f"v_cvt_pk_bf16_f32 v{vH+1}, v{vF+2}, v{vF+3}")
    a(f"ds_write_b64 v{vT+4}, {vr(vH,2)} offset:{HV}")
    unpack(vH, vF, vF + 1)
    unpack(vH + 1, vF + 2, vF + 3)
    a(f"v_pk_add_f32 {vr(vF+4,2)}, {vr(vF,2)}, {vr(vF+2,2)}")
    a(f"v_pk_mul_f32 {vr(vF,2)}, {vr(vF,2)}, {vr(vF,2)}")
    a(f"v_pk_fma_f32 {vr(vF,2)}, {vr(vF+2,2)}, {vr(vF+2,2)}, {vr(vF,2)}")
    a(f"v_add_f32 v{vS+4}, v{vF+4}, v{vF+5}")
    a(f"v_add_f32 v{vS+5}, v{vF}, v{vF+1}")
    exec_all()
    a("s_waitcnt lgkmcnt(0)")
    for b in range(10):
        a(f"ds_read_b64 {vr(vQ+2*b,2)}, v{vT+5} offset:{HV + 32*b}")
    for k, rr in enumerate((8, 4, 2, 1)):
        for r in (vS + 4, vS + 5):
            a(f"v_add_f32_dpp v{r}, v{r}, v{r} row_ror:{rr} row_mask:0xf bank_mask:0xf")
        a(f"s_waitcnt lgkmcnt({8 - 2*k})")
        cc = "0" if k == 0 else vr(vS, 4)
        a(f"v_mfma_f32_16x16x32_bf16 {vr(vS,4)}, {vr(vW1+4*k,4)}, {vr(vQ+4*k,4)}, {cc}")
    a("s_waitcnt lgkmcnt(0)")
    a(f"v_mfma_f32_16x16x32_bf16 {vr(vS,4)}, {vr(vW1+16,4)}, {vr(vQ+16,4)}, {vr(vS,4)}")
    c("fold the four lane groups: lanes 0..31 end with the sum, lanes 32..63 with the sum of squares")
    a(f"v_permlane32_swap_b32 v{vS+4}, v{vS+5}")
    a(f"v_add_f32 v{vS+4}, v{vS+4}, v{vS+5}")
    a(f"v_mov_b32 v{vS+5}, v{vS+4}")
    a(f"v_lshrrev_b32 v{vT+3}, 5, v{vLane}")
    a(f"v_lshl_add_u32 v{vT+3}, v{vT+3}, 2, v{vT+8}")
    a(f"v_permlane16_swap_b32 v{vS+4}, v{vS+5}")
    a(f"v_add_f32 v{vS+4}, v{vS+4}, v{vS+5}")
    exec_n0()
    a(f"ds_write_b32 v{vT+3}, v{vS+4} offset:{XS}")
    a(f"ds_write_b128 v{vT+7}, {vr(vS,4)} offset:{XH}")
    exec_all()
    a(f"v_mov_b32 v{vT}, 0")
    a("s_waitcnt lgkmcnt(0)")
    a("s_barrier")
    a(f"ds_read_b128 {vr(vE,4)}, v{vT} offset:{XS}")
    a(f"ds_read_b128 {vr(vE+4,4)}, v{vT} offset:{XS+16}")
    for w in range(4):
        a(f"ds_read_b128 {vr(vF+4*w,4)}, v{vT+6} offset:{XH + 64*w}")
    a("s_waitcnt lgkmcnt(4)")
    a(f"v_pk_add_f32 {vr(vE,2)}, {vr(vE,2)}, {vr(vE+2,2)}")
    a(f"v_pk_add_f32 {vr(vE+4,2)}, {vr(vE+4,2)}, {vr(vE+6,2)}")
    a(f"v_pk_add_f32 {vr(vE,2)}, {vr(vE,2)}, {vr(vE+4,2)}")
    a(f"v_mul_f32 v{vMean}, {R640:#x}, v{vE}")
    a(f"v_mul_f32 v{vVar}, {R640:#x}, v{vE+1}")
    a(f"v_fma_f32 v{vVar}, -v{vMean}, v{vMean}, v{vVar}")
    a(f"v_max_f32 v{vVar}, 0, v{vVar}")
    a(f"v_cvt_pk_bf16_f32 v{vT+3}, v{vMean}, v{vVar}")
    unpack(vT + 3, vMean, vVar)
    a(f"v_add_f32 v{vVar}, {EPS:#x}, v{vVar}")
    round_bf16(vVar, vT + 3)
    a(f"v_sqrt_f32 v{vVar}, v{vVar}")
    a("s_waitcnt lgkmcnt(0)")
    pk_sum4(vF)
    round_bf16(vVar, vT + 3)
    a(f"v_rcp_f32 v{vRcp}, v{vVar}")
    for r in (0, 2):
        a(f"v_pk_fma_f32 {vr(vF+r,2)}, {vr(vMean,2)}, {vr(vCs+r,2)}, {vr(vF+r,2)} op_sel_hi:[0,1,1] neg_lo:[1,0,0] neg_hi:[1,0,0]")
    pk_scale(vF, vRcp, vF, True)
    for r in range(4):
        a(f"v_max_f32 v{vF+r}, 0, v{vF+r}")
    a(f"v_cvt_pk_bf16_f32 v{vF+4}, v{vF}, v{vF+1}")
    a(f"v_cvt_pk_bf16_f32 v{vF+5}, v{vF+2}, v{vF+3}")
    c("tile t of w2 lands in result column n = t: operand is hidden where n == t, else 0")
    for u in range(5):
        for t in (2 * u, 2 * u + 1):
            a(f"v_and_b32 v{vQ+2*t}, v{vF+4}, v{vMk2+t}")
            a(f"v_and_b32 v{vQ+2*t+1}, v{vF+5}, v{vMk2+t}")
        if u:
            cc = "0" if u == 1 else vr(vS, 4)
            a(f"v_mfma_f32_16x16x32_bf16 {vr(vS,4)}, {vr(vW2+4*(u-1),4)}, {vr(vQ+4*(u-1),4)}, {cc}")
    nop(1)
    a(f"v_mfma_f32_16x16x32_bf16 {vr(vS,4)}, {vr(vW2+16,4)}, {vr(vQ+16,4)}, {vr(vS,4)}")
    a("s_mov_b32 exec_lo, 0x03ff03ff")
    a("s_mov_b32 exec_hi, 0x03ff03ff")
    nop(6)
    a(f"v_min_u32 v{vS}, 0xfffffffe, v{vS}")
    a(f"buffer_store_dwordx4 {vr(vS,4)}, v{vT+9}, {sr(rWS,4)}, s{sT0} offen sc1")
    exec_all()
    c("---------------- final reduction: workgroups with e = 3m + (r-20) < 20, r < 23 ----------------")
    a(f"s_cmp_ge_u32 s{sR}, 23")
    a("s_cbranch_scc1 L_fin")
    a(f"s_mul_i32 s{sF}, s{sM}, 3")
    a(f"s_add_u32 s{sF}, s{sF}, s{sR}")
    a(f"s_sub_u32 s{sF}, s{sF}, 20")
    a(f"s_cmp_ge_u32 s{sF}, 20")
    a("s_cbranch_scc1 L_fin")
    a(f"v_lshrrev_b32 v{vT}, 3, v{vLane}")
    a(f"v_mul_u32_u24 v{vT}, 2560, v{vT}")
    a(f"v_and_b32 v{vT+1}, 7, v{vLane}")
    a(f"v_lshl_add_u32 v{vT}, v{vT+1}, 4, v{vT}")
    a(f"s_mul_i32 s{sT1}, s{sW}, {24*2560}")
    a(f"s_lshl_b32 s{sT2}, s{sF}, 7")
    a(f"s_add_u32 s{sT1}, s{sT1}, s{sT2}")
    a(f"s_add_u32 s{sT1}, s{sT1}, {FP}")
    a(f"s_add_u32 s{sT2}, s{sT1}, {8*2560}")
    a(f"s_add_u32 s{sT3}, s{sT1}, {16*2560}")
    srd(rOUT, pOUT, 1280)
    a(f"v_lshrrev_b32 v{vT+2}, 1, v{vG}")
    a(f"v_and_b32 v{vT+3}, 1, v{vG}")
    a(f"v_lshl_add_u32 v{vT+2}, v{vT+3}, 1, v{vT+2}")
    a(f"v_lshl_add_u32 v{vT+2}, v{vT+1}, 2, v{vT+2}")
    a(f"s_lshl_b32 s{sT0}, s{sW}, 7")
    a(f"v_lshl_add_u32 v{vT+2}, v{vT+2}, 2, s{sT0}")
    a(f"v_lshlrev_b32 v{vT+3}, 2, v{vLane}")
    a(f"s_lshl_b32 s{sT0}, s{sF}, 6")
    a(f"v_lshl_add_u32 v{vT+4}, v{vLane}, 1, s{sT0}")
    a(f"ds_read_u16 v{vE}, v{vT+4} offset:{HV}")

    def cloads():
        for k, so in enumerate((sT1, sT2, sT3)):
            a(f"buffer_load_dwordx4 {vr(vF+4*k,4)}, v{vT}, {sr(rWS,4)}, s{so} offen sc1")
    stamp("fpub")
    poll(cloads, [vF, vF + 4, vF + 8], vT + 5)
    stamp("hopC")
    for r in (0, 2):
        a(f"v_pk_add_f32 {vr(vF+r,2)}, {vr(vF+r,2)}, {vr(vF+4+r,2)}")
    for r in (0, 2):
        a(f"v_pk_add_f32 {vr(vF+r,2)}, {vr(vF+r,2)}, {vr(vF+8+r,2)}")
    nop(1)
    a(f"v_permlane32_swap_b32 v{vF}, v{vF+1}")
    a(f"v_permlane32_swap_b32 v{vF+2}, v{vF+3}")
    a(f"v_add_f32 v{vF}, v{vF}, v{vF+1}")
    a(f"v_add_f32 v{vF+2}, v{vF+2}, v{vF+3}")
    nop(2)
    a(f"v_permlane16_swap_b32 v{vF}, v{vF+2}")
    a(f"v_add_f32 v{vF}, v{vF}, v{vF+2}")
    nop(2)
    a(f"v_add_f32_dpp v{vF}, v{vF}, v{vF} row_ror:8 row_mask:0xf bank_mask:0xf")
    a(f"ds_write_b32 v{vT+2}, v{vF} offset:{XF}")
    exec_first(32)
    a("s_waitcnt lgkmcnt(0)")
    a("s_barrier")
    a(f"s_cmp_lg_u32 s{sW}, 0")
    a("s_cbranch_scc1 L_fin")
    for w in range(4):
        a(f"ds_read_b32 v{vF+w}, v{vT+3} offset:{XF + 128*w}")
    a(f"v_lshlrev_b32 v{vE}, 16, v{vE}")
    a("s_waitcnt lgkmcnt(0)")
    a(f"v_pk_add_f32 {vr(vF,2)}, {vr(vF,2)}, {vr(vF+2,2)}")
    a(f"v_add_f32 v{vF}, v{vF}, v{vF+1}")
    round_bf16(vF, vF + 1)
    a(f"v_add_f32 v{vF}, v{vF}, v{vE}")
    if perturb:
        a(f"s_cmp_eq_u32 s{sF}, 0")
        a(f"s_cselect_b32 s{sT0}, {perturb:#x}, 0")
        a(f"v_add_f32 v{vF}, s{sT0}, v{vF}")
    a(f"v_cvt_pk_bf16_f32 v{vF}, v{vF}, v{vF}")
    a(f"buffer_store_short v{vF}, v{vT+4}, {sr(rOUT,4)}, 0 offen")
    exec_all()
    if dbgspan:
        a(f"s_cmp_lg_u32 s{sF}, 0")
        a("s_cbranch_scc1 L_fin")
        a("s_waitcnt vmcnt(0)")
        a("s_memrealtime s[96:97]")
        srd(rDBG, pDBG, 256)
        for k in range(16):
            a(f"s_mov_b32 s{sT0}, {ST + 1024*k}")
            a(f"buffer_load_dwordx4 {vr(vACC+4*(k%12) if k < 12 else vF + 4*(k-12),4)}, v{vDMA}, {sr(rWS,4)}, s{sT0} offen sc1")
        a("s_waitcnt vmcnt(0) lgkmcnt(0)")
        regs = [vACC + 4*k for k in range(12)] + [vF + 4*k for k in range(4)]
        a(f"v_mov_b32 v{vE}, v{regs[0]}")
        a(f"v_mov_b32 v{vE+1}, v{regs[0]}")
        a(f"v_mov_b32 v{vE+2}, v{regs[0]+1}")
        a(f"v_mov_b32 v{vE+3}, v{regs[0]+2}")
        a(f"v_mov_b32 v{vE+4}, v{regs[0]+2}")
        for r in regs[1:]:
            a(f"v_min_u32 v{vE}, v{vE}, v{r}")
            a(f"v_max_u32 v{vE+1}, v{vE+1}, v{r}")
            a(f"v_max_u32 v{vE+2}, v{vE+2}, v{r+1}")
            a(f"v_min_u32 v{vE+3}, v{vE+3}, v{r+2}")
            a(f"v_max_u32 v{vE+4}, v{vE+4}, v{r+2}")
        allreduce("v_min_u32", [vE, vE+3], [vT, vT+1])
        allreduce("v_max_u32", [vE+1, vE+2, vE+4], [vT, vT+1, vT+2])
        a(f"v_mov_b32 v{vE+5}, s96")
        for k in range(1, 6):
            a(f"v_sub_u32 v{vE+k}, v{vE+k}, v{vE}")
        exec_first(1)
        a(f"buffer_store_dwordx4 {vr(vE+2,4)}, v{vDMA}, {sr(rDBG,4)}, 0 offen")
        a(f"buffer_store_dword v{vE+1}, v{vDMA}, {sr(rDBG,4)}, 0 offen offset:16")
        exec_all()
    lab("L_fin")
    if diag:
        exec_all()
        a("s_waitcnt vmcnt(0)")
        stamp("end")
        a("s_getreg_b32 s3, hwreg(HW_REG_XCC_ID)")
        a(f"v_writelane_b32 v{vSt}, s3, 30")
        a(f"v_writelane_b32 v{vSt}, s{sCnt}, 31")
        a(f"s_lshl_b32 s{sT0}, s2, 2")
        a(f"s_add_u32 s{sT0}, s{sT0}, s{sW}")
        a(f"s_lshl_b32 s{sT0}, s{sT0}, 7")
        a(f"s_add_u32 s{sT0}, s{sT0}, {ST}")
        a(f"v_lshlrev_b32 v{vT+1}, 2, v{vLane}")
        exec_first(32)
        a(f"buffer_store_dword v{vSt}, v{vT+1}, {sr(rWS,4)}, s{sT0} offen")
    lab("L_end")
    a("s_endpgm")

    out = [HEADER + f"; @launch grid=(256,1,1) block=(256,1,1) lds={LDS_BYTES}",
           '.amdgcn_target "amdgcn-amd-amdhsa--gfx950"', ".text", f".globl {name}", ".p2align 8",
           f".type {name},@function", f"{name}:"]
    out += g.L
    out += ['.section .rodata,"a"', ".p2align 6", f".amdhsa_kernel {name}",
            f"  .amdhsa_next_free_vgpr {NV}", "  .amdhsa_next_free_sgpr 102", f"  .amdhsa_accum_offset {NV}",
            "  .amdhsa_group_segment_fixed_size 0", "  .amdhsa_kernarg_size 88", "  .amdhsa_user_sgpr_count 2",
            "  .amdhsa_user_sgpr_kernarg_segment_ptr 1", "  .amdhsa_system_sgpr_workgroup_id_x 1",
            "  .amdhsa_float_denorm_mode_32 3",
            ".end_amdhsa_kernel"]
    return "\n".join(out) + "\n"


if __name__ == "__main__":
    kw = json.loads(sys.argv[1]) if len(sys.argv) > 1 else {}
    sys.stdout.write(gen(**kw))
```

```python
import sys, json

KNAME = "sequential_preLN__mha_block_cached__dense_activation_relu__decode_kernel"

HEADER = """; Kernarg layout for this problem (88 bytes, ptrs only, base s[0:1]):
"""

QP = 0x180000
OP = 0x040000
YP = 0x080000
FP = 0x090000
CT = 0x0D0000
ST = 0x100000
WS_REC = 0x200000

QV = 0x000
NV_ = 0x180
XO = 0x200
XOS = 0x700
OV = 0x1E00
XY = 0x2600
HV = 0x2800
XN = HV
XS = 0x2D00
XH = 0x2D40
XC = 0x2E40
XF = 0x2F40
WGT = 0x3200
RING = 0xF200
LDS_BYTES = RING + 0x18000

SCALE = 0x3d93cd3a
LOG2E = 0x3fb8aa3b
EPS = 0x3727c5ac
R640 = 0x3acccccd
R160 = 0x3bcccccd
HEAD_BYTES = 12582912
CB = 12288


class G:
    def __init__(self):
        self.L = []
        self.nlabel = 0

    def a(self, s):
        self.L.append("  " + s)

    def lab(self, s):
        self.L.append(s + ":")

    def c(self, s):
        self.L.append("  ; " + s)

    def newlab(self, p):
        self.nlabel += 1
        return f"L_{p}{self.nlabel}"

    def nop(self, n):
        while n > 0:
            k = min(n, 16)
            self.a(f"s_nop {k-1}")
            n -= k


def vr(b, n=1):
    return f"v{b}" if n == 1 else f"v[{b}:{b+n-1}]"


def sr(b, n=1):
    return f"s{b}" if n == 1 else f"s[{b}:{b+n-1}]"


def gen(name=KNAME, kvflags="nt", wflags="nt", qflags="nt", sched=(24,4,2,1,1), hstag=3, rot=1, aflags='sc0 sc1', diag=0, bound=1 << 16,
        sleep=0, dbgspan=0, perturb=0, pace=6, k3=3, gdelay=8, fsleep=2, kpace=0, chk=8, cdelay=0, ndelay=0, noclr=0, now=0, nocomp=0, tkpos=1, wpace=8, probe=0, early_setup=1, v3early=1, wat=3, watf=3, wo_pre=9, w1_pre=3, w2_pre=0, swz=1, phased=1):
    assert not dbgspan
    g = G()
    a, lab, c, nop = g.a, g.lab, g.c, g.nop
    pX, pK, pV, pWQ, pWO, pW1, pW2, pOUT, pDBG, pWS = 4, 6, 8, 10, 12, 16, 18, 20, 22, 24
    rK, rV, rWS, rWQ, rX, rDBG, rWA, rWB, rOUT = 28, 32, 36, 40, 44, 48, 52, 56, 60
    sW, sH, sM, sR, sRow, sRole, sF = 64, 65, 66, 67, 68, 69, 70
    sT0, sT1, sT2, sT3 = 71, 72, 73, 74
    sMK, sMV = 75, 78
    sOff, sCnt, sBound, sChunk = 81, 82, 83, 84
    sEx = 86
    sLog, sSc = 88, 89
    sStamp = 90
    sTm = 100
    vLane, vDMA, vKA, vVA, vG, vT = 1, 2, 3, 4, 5, 6
    vML, vL, vTk, vCa = 16, 17, 18, 19
    vXF = 20
    vS = 24
    vP = 32
    vE = 36
    vQ = 44
    vF = 68
    vACC = 116
    vU = 164
    vWF = 212
    vD3, vKA2, vVA4 = 196, 200, 204
    NV = 216

    vSt = 22
    global STAMPS
    STAMPS = []

    def stamp(nm):
        if not diag or (diag == 2 and nm not in ("stream", "end")):
            return
        if nm not in STAMPS:
            STAMPS.append(nm)
        i = STAMPS.index(nm)
        assert i < 30
        a(f"s_memrealtime {sr(sTm,2)}")
        a("s_waitcnt lgkmcnt(0)")
        a(f"v_writelane_b32 v{vSt}, s{sTm}, {i}")

    def srd(d, p, n, addlo=None):
        if addlo is None:
            a(f"s_mov_b32 s{d}, s{p}")
            a(f"s_and_b32 s{d+1}, s{p+1}, 0xffff")
        else:
            a(f"s_add_u32 s{d}, s{p}, s{addlo}")
            a(f"s_addc_u32 s{d+1}, s{p+1}, 0")
            a(f"s_and_b32 s{d+1}, s{d+1}, 0xffff")
        a(f"s_mov_b32 s{d+2}, {n}")
        a(f"s_mov_b32 s{d+3}, 0x20000")

    def exec_first(n):
        a(f"s_bfm_b64 exec, {n}, 0")

    def exec_all():
        a("s_mov_b64 exec, -1")

    def exec_n0():
        a("s_mov_b32 exec_lo, 0x00010001")
        a("s_mov_b32 exec_hi, 0x00010001")

    def allreduce(op, regs, tmps):
        pad = max(0, 2 - (len(regs) - 1))
        nop(2)
        for rr in (8, 4, 2, 1):
            for r in regs:
                a(f"{op}_dpp v{r}, v{r}, v{r} row_ror:{rr} row_mask:0xf bank_mask:0xf")
            nop(pad)
        xgroup(op, regs, tmps)

    def xgroup(op, regs, tmps):
        for sw in ("v_permlane16_swap_b32", "v_permlane32_swap_b32"):
            for r, t in zip(regs, tmps):
                a(f"v_mov_b32 v{t}, v{r}")
            nop(2)
            for r, t in zip(regs, tmps):
                a(f"{sw} v{r}, v{t}")
            for r, t in zip(regs, tmps):
                a(f"{op} v{r}, v{r}, v{t}")

    def unpack(src, lo, hi):
        a(f"v_lshlrev_b32 v{lo}, 16, v{src}")
        a(f"v_and_b32 v{hi}, 0xffff0000, v{src}")

    def round_bf16(r, t):
        a(f"v_cvt_pk_bf16_f32 v{t}, v{r}, v{r}")
        a(f"v_and_b32 v{r}, 0xffff0000, v{t}")

    def ln_finish(vMean, vVar, vRcp, t):
        round_bf16(vMean, t)
        round_bf16(vVar, t)
        a(f"v_add_f32 v{vVar}, {EPS:#x}, v{vVar}")
        round_bf16(vVar, t)
        a(f"v_sqrt_f32 v{vVar}, v{vVar}")
        nop(1)
        round_bf16(vVar, t)
        a(f"v_rcp_f32 v{vRcp}, v{vVar}")
        nop(1)

    def normalise_pair(src, dst, vMean, vDen, vRcp, t):
        unpack(src, t, t + 1)
        a(f"v_sub_f32 v{t}, v{t}, v{vMean}")
        a(f"v_sub_f32 v{t+1}, v{t+1}, v{vMean}")
        a(f"v_cvt_pk_bf16_f32 v{dst}, v{t}, v{t+1}")
        unpack(dst, t, t + 1)
        for k in (0, 1):
            a(f"v_mul_f32 v{t+2+k}, v{t+k}, v{vRcp}")
        for k in (0, 1):
            a(f"v_fma_f32 v{t+k}, -v{t+2+k}, v{vDen}, v{t+k}")
        for k in (0, 1):
            a(f"v_fma_f32 v{t+2+k}, v{t+k}, v{vRcp}, v{t+2+k}")
        a(f"v_cvt_pk_bf16_f32 v{dst}, v{t+2}, v{t+3}")

    def any_marker(regs, t):
        regs = list(regs)
        a(f"v_max3_u32 v{t}, v{regs[0]}, v{regs[1]}, v{regs[2]}")
        regs = regs[3:]
        while len(regs) >= 2:
            a(f"v_max3_u32 v{t}, v{t}, v{regs[0]}, v{regs[1]}")
            regs = regs[2:]
        if regs:
            a(f"v_max_u32 v{t}, v{t}, v{regs[0]}")
        a(f"v_cmp_eq_u32 vcc, -1, v{t}")

    def poll(loads, regs, t, pre_wait=0):
        top, done = g.newlab("poll"), g.newlab("got")
        a(f"s_mov_b32 s{sBound}, {bound}")
        lab(top)
        loads()
        a(f"s_sub_u32 s{sBound}, s{sBound}, 1")
        a("s_cbranch_scc1 L_end")
        a("s_waitcnt vmcnt(0)")
        any_marker(regs, t)
        if sleep:
            nop(1)
            a(f"s_cbranch_vccz {done}")
            a(f"s_sleep {sleep}")
            a(f"s_branch {top}")
        else:
            nop(1)
            a(f"s_cbranch_vccnz {top}")
        lab(done)

    def issue_chunk(r, m0base, groups=(0, 1, 2)):
        for j in groups:
            a(f"s_mov_b32 m0, s{m0base+j}")
            if j == 0:
                a(f"s_mov_b32 s{sT0}, s{sOff}")
            else:
                a(f"s_add_u32 s{sT0}, s{sOff}, {4096*j}")
            for k in range(4):
                vo = vD3 + (4 * j + k) % 3 if swz else vDMA
                a(f"buffer_load_dwordx4 v{vo}, {sr(r,4)}, s{sT0} offen offset:{1024*k} {kvflags} lds")

    c("---------------- entry ----------------")
    a("s_cmp_ge_u32 s2, 256")
    a("s_cbranch_scc1 L_end")
    if diag:
        a(f"s_memrealtime {sr(sTm,2)}")
    if dbgspan:
        a("s_memrealtime s[96:97]")
    sNon = 26
    a(f"s_memrealtime {sr(sNon,2)}")
    a("s_load_dwordx16 s[4:19], s[0:1], 0")
    a("s_load_dwordx4 s[20:23], s[0:1], 64")
    a("s_load_dwordx2 s[24:25], s[0:1], 80")
    a(f"v_lshrrev_b32 v{vT}, 6, v0")
    a(f"v_and_b32 v{vLane}, 63, v0")
    a(f"v_readfirstlane_b32 s{sW}, v{vT}")
    a(f"v_lshlrev_b32 v{vDMA}, 4, v{vLane}")
    a(f"v_lshrrev_b32 v{vG}, 4, v{vLane}")
    a(f"s_and_b32 s{sM}, s2, 7")
    a(f"s_lshr_b32 s{sR}, s2, 3")
    a(f"s_mul_i32 s{sT0}, s{sM}, {rot}")
    a(f"s_add_u32 s{sH}, s{sR}, s{sT0}")
    a(f"s_and_b32 s{sH}, s{sH}, 31")
    a(f"s_lshl_b32 s{sRow}, s{sH}, 3")
    a(f"s_add_u32 s{sRow}, s{sRow}, s{sM}")
    a(f"s_mul_i32 s{sF}, s{sM}, 12")
    a(f"s_add_u32 s{sF}, s{sF}, s{sR}")
    a(f"s_sub_u32 s{sF}, s{sF}, 20")
    a(f"s_mul_i32 s{sT0}, s{sW}, {2*CB}")
    for j in range(3):
        a(f"s_add_u32 s{sMK+j}, s{sT0}, {RING + 4096*j}")
        a(f"s_add_u32 s{sMV+j}, s{sT0}, {RING + CB + 4096*j}")
    vN = 23
    a(f"v_and_b32 v{vN}, 15, v{vLane}")
    a(f"v_mul_u32_u24 v{vT}, 384, v{vN}")
    a(f"v_lshl_add_u32 v{vT}, v{vG}, 4, v{vT}")
    a(f"v_add_u32 v{vKA}, s{sMK}, v{vT}")
    if swz:
        a(f"v_lshlrev_b32 v{vT+1}, 4, v{vN}")
        a(f"v_and_b32 v{vT+1}, 0x60, v{vT+1}")
        a(f"v_xor_b32 v{vKA2}, v{vKA}, v{vT+1}")
        a(f"v_xor_b32 v{vKA2+1}, 64, v{vKA2}")
    vTR0, vTR1 = vU + 5, vU + 6
    a(f"v_lshrrev_b32 v{vTR0}, 2, v{vLane}")
    a(f"v_and_b32 v{vTR1}, 3, v{vLane}")
    a(f"v_lshlrev_b32 v{vTR1}, 3, v{vTR1}")
    a(f"v_mul_u32_u24 v{vT}, 384, v{vTR0}")
    a(f"v_add_u32 v{vT}, v{vT}, v{vTR1}")
    a(f"v_add_u32 v{vVA}, s{sMK}, v{vT}")
    if swz:
        a(f"v_lshlrev_b32 v{vT+1}, 4, v{vTR0}")
        a(f"v_and_b32 v{vT+1}, 0x60, v{vT+1}")
        a(f"v_xor_b32 v{vVA4}, v{vVA}, v{vT+1}")
        for k in range(1, 4):
            a(f"v_xor_b32 v{vVA4+k}, {32*k}, v{vVA4}")
    vWA = vU + 7
    a(f"s_lshl_b32 s{sT0}, s{sW}, 7")
    a(f"s_add_u32 s{sT0}, s{sT0}, {WGT}")
    a(f"v_add_u32 v{vWA}, s{sT0}, v{vT}")
    assert sum(sched) == 32 and len(sched) <= 9 and pace <= 8
    sRnd, sLeft, sJW, sHs = 84, 85, 90, 91
    sTabS, sTabN = 92, 94
    acc_, ts_, tn_ = sched[0], 0, 0
    for i_, n_ in enumerate(sched[1:]):
        ts_ |= acc_ << (8 * i_); tn_ |= n_ << (8 * i_); acc_ += n_
    nblk = len(sched) - 1
    a(f"s_mul_i32 s{sHs}, s{sH}, {hstag}")
    a(f"s_lshl_b32 s{sJW}, s{sM}, 2")
    a(f"s_add_u32 s{sJW}, s{sJW}, s{sW}")
    a(f"s_mul_i32 s{sJW}, s{sJW}, {CB}")
    a(f"s_mov_b32 s{sRnd}, 0")
    a(f"s_mov_b32 s{sLeft}, {sched[0]}")

    def next_off():
        a(f"s_add_u32 s{sOff}, s{sRnd}, s{sHs}")
        a(f"s_and_b32 s{sOff}, s{sOff}, 31")
        a(f"s_mul_i32 s{sOff}, s{sOff}, {32*CB}")
        a(f"s_add_u32 s{sOff}, s{sOff}, s{sJW}")
        a(f"s_add_u32 s{sRnd}, s{sRnd}, 1")
        a(f"s_sub_u32 s{sLeft}, s{sLeft}, 1")
    next_off()
    vWQ = vU
    for b in range(3):
        a(f"v_add_u32 v{vT}, {64*b}, v{vLane}")
        a(f"v_mul_u32_u24 v{vT}, 2731, v{vT}")
        a(f"v_lshrrev_b32 v{vT}, 16, v{vT}")
        if swz:
            a(f"v_lshlrev_b32 v{vT+1}, 4, v{vT}")
            a(f"v_and_b32 v{vT+1}, 0x60, v{vT+1}")
            a(f"v_xor_b32 v{vD3+b}, v{vT+1}, v{vDMA}")
        a(f"v_mul_u32_u24 v{vT}, 11904, v{vT}")
        a(f"v_add_u32 v{vWQ+b}, v{vT}, v{vDMA}")
    vXA = vU + 3
    a(f"v_lshlrev_b32 v{vXA}, 2, v{vLane}")
    a(f"s_lshl_b32 s{sRow}, s{sRow}, 10")
    a(f"s_mul_i32 s{sT1}, s{sH}, {HEAD_BYTES}")
    a(f"s_mul_i32 s{sT0}, s{sM}, {80*12288}")
    a(f"s_mul_i32 s{sT2}, s{sH}, 384")
    a(f"s_add_u32 s{sT2}, s{sT0}, s{sT2}")
    a(f"s_mul_i32 s{sT3}, s{sM}, 160")
    a("s_waitcnt lgkmcnt(0)")
    if diag:
        a(f"v_mov_b32 v{vSt}, 0")
        a(f"v_writelane_b32 v{vSt}, s{sTm}, 0")
        STAMPS.append("entry")
    stamp("karg")
    srd(rX, pX, 1280)
    srd(rWS, pWS, WS_REC)
    a(f"s_cmp_eq_u32 s{sW}, 3")
    a("s_cbranch_scc1 L_comm")

    def w_loads_wo(rng):
        if not len(rng):
            return
        srd(rWA, pWO, 6144 * 1280)
        a(f"v_mul_u32_u24 v{vT+1}, 1280, v{vTR0}")
        a(f"v_lshl_add_u32 v{vT+1}, v{vTR1}, 1, v{vT+1}")
        a(f"s_lshl_b32 s{sT0}, s{sM}, 2")
        a(f"s_add_u32 s{sT0}, s{sT0}, s{sW}")
        a(f"s_mul_i32 s{sT0}, s{sT0}, {192*1280}")
        a(f"s_lshl_b32 s{sT1}, s{sR}, 6")
        a(f"s_add_u32 s{sT0}, s{sT0}, s{sT1}")
        a(f"s_mul_i32 s{sT2}, s{sW}, 12288")
        for i in rng:
            a(f"s_add_u32 m0, s{sT2}, {WGT + 1024*i}")
            a(f"s_add_u32 s{sT1}, s{sT0}, {20480*i}")
            a(f"buffer_load_dwordx4 v{vT+1}, {sr(rWA,4)}, s{sT1} offen {wflags} lds")

    def w_loads_ffn(r1, r2):
        if not len(r1) and not len(r2):
            return
        srd(rWA, pW1, 640 * 3072)
        srd(rWB, pW2, 1536 * 1280)
        a(f"v_lshrrev_b32 v{vT+1}, 1, v{vLane}")
        a(f"v_mul_u32_u24 v{vT+1}, 3072, v{vT+1}")
        a(f"v_and_b32 v{vT+2}, 1, v{vLane}")
        a(f"v_lshl_add_u32 v{vT+1}, v{vT+2}, 4, v{vT+1}")
        a(f"s_mul_i32 s{sT0}, s{sW}, {160*3072}")
        a(f"s_lshl_b32 s{sT1}, s{sF}, 5")
        a(f"s_add_u32 s{sT0}, s{sT0}, s{sT1}")
        a(f"s_mul_i32 s{sT2}, s{sW}, 5120")
        for i in r1:
            a(f"s_add_u32 m0, s{sT2}, {WGT + 1024*i}")
            a(f"s_add_u32 s{sT1}, s{sT0}, {32*3072*i}")
            a(f"buffer_load_dwordx4 v{vT+1}, {sr(rWA,4)}, s{sT1} offen {wflags} lds")
        a(f"s_mul_i32 s{sT0}, s{sF}, 20480")
        a(f"s_add_u32 s{sT0}, s{sT0}, s{sT2}")
        for i in r2:
            a(f"s_add_u32 m0, s{sT2}, {WGT + 20480 + 1024*i}")
            a(f"s_add_u32 s{sT1}, s{sT0}, {1024*i}")
            a(f"buffer_load_dwordx4 v{vDMA}, {sr(rWB,4)}, s{sT1} offen {qflags} lds")

    def w_loads_at(pos):
        if pos and wat != pos and watf != pos:
            return
        l1, l2 = g.newlab("wf"), g.newlab("wd")
        a(f"s_cmp_ge_u32 s{sR}, 20")
        a(f"s_cbranch_scc1 {l1}")
        if pos == 0:
            w_loads_wo(range(wo_pre))
        elif wat == pos:
            w_loads_wo(range(wo_pre, 12))
        a(f"s_branch {l2}")
        lab(l1)
        if pos == 0:
            w_loads_ffn(range(w1_pre), range(w2_pre))
        elif watf == pos:
            w_loads_ffn(range(w1_pre, 5), range(w2_pre, 5))
        lab(l2)

    def stream_setup():
        a(f"s_mov_b32 s{sTabS}, {ts_ & 0xffffffff:#x}")
        a(f"s_mov_b32 s{sTabS+1}, {ts_ >> 32:#x}")
        a(f"s_mov_b32 s{sTabN}, {tn_ & 0xffffffff:#x}")
        a(f"s_mov_b32 s{sTabN+1}, {tn_ >> 32:#x}")
        a(f"s_lshl_b32 s{sT0}, s{sH}, 2")
        a(f"s_add_u32 s{sT0}, s{sT0}, s{sW}")
        a(f"s_lshl_b32 s{sT0}, s{sT0}, 8")
        a(f"s_add_u32 s{sT0}, s{sT0}, {CT}")
        a(f"s_mov_b32 s97, s{sT0}")
        assert 2 <= chk < sched[0]
        a(f"s_cmp_eq_u32 s{sW}, 3")
        a(f"s_cselect_b32 s98, {chk}, 63")
        a(f"s_mov_b32 s{sLog}, {LOG2E:#x}")
        a(f"s_mov_b32 s{sSc}, {SCALE:#x}")
        c("x columns 160w + 4*lane for the FFN role (lanes < 40; the others read zeros past the end or unused values)")
        a(f"s_mul_i32 s{sT0}, s{sW}, 320")
        a(f"v_lshlrev_b32 v{vT+1}, 3, v{vLane}")
        a(f"buffer_load_dwordx2 {vr(vXF,2)}, v{vT+1}, {sr(rX,4)}, s{sT0} offen")
        c("---------------- streaming state ----------------")
        a(f"v_mov_b32 v{vML}, 0xff800000")
        a(f"v_mov_b32 v{vL}, 0")
        for r in range(48):
            a(f"v_mov_b32 v{vACC+r}, 0")
        a(f"s_mov_b32 s{sCnt}, 0")

    c("================ waves 0..2: q partial of this member's 80 rows ================")
    srd(rWQ, pWQ, 79 * 12288 + 384, addlo=sT2)
    vXS = vU + 8
    vXC = vU + 13
    for i in range(5):
        a(f"buffer_load_dword v{vXS+i}, v{vXA}, {sr(rX,4)}, 0 offen offset:{256*i}")
    a(f"buffer_load_dword v{vXC}, v{vXA}, {sr(rX,4)}, s{sT3} offen")

    def wq_group(sidx):
        a(f"s_mul_i32 s{sT0}, s{sidx}, 3072")
        a(f"s_add_u32 m0, s{sT0}, {WGT}")
        a(f"s_mul_i32 s{sT0}, s{sidx}, {8*12288}")
        for b in range(3):
            a(f"buffer_load_dwordx4 v{vWQ+b}, {sr(rWQ,4)}, s{sT0} offen offset:{1024*b} {qflags} lds")
    a(f"s_mov_b32 s{sT2}, s{sW}")
    for k in range(3):
        wq_group(sT2)
        a(f"s_add_u32 s{sT2}, s{sT2}, 3")
    a(f"s_cmp_lg_u32 s{sW}, 0")
    a("s_cbranch_scc1 L_wq_done")
    wq_group(sT2)
    lab("L_wq_done")
    srd(rK, pK, HEAD_BYTES, addlo=sT1)
    issue_chunk(rK, sMK, (0,))
    srd(rV, pV, HEAD_BYTES, addlo=sT1)
    stamp("wqiss")
    vMk = vU + 14
    for t in range(4):
        a(f"v_cmp_eq_u32 vcc, {t}, v{vN}")
        nop(2)
        a(f"v_cndmask_b32 v{vMk+t}, 0, -1, vcc")
    a(f"s_lshl_b32 s{sT0}, s{sW}, 8")
    a(f"s_add_u32 s{sT0}, s{sT0}, {XN}")
    a(f"v_add_u32 v{vXA}, s{sT0}, v{vXA}")
    a(f"v_lshl_add_u32 v{vXA+1}, v{vG}, 3, s{sT0}")
    a("s_waitcnt vmcnt(13)")
    stamp("xland")
    vA0 = vE
    for i in range(5):
        unpack(vXS + i, vA0 + 2 * i, vA0 + 2 * i + 1)
    vMean, vVar, vRcp = vT, vT + 1, vT + 2
    for i in (0, 2):
        a(f"v_pk_add_f32 {vr(vS+i,2)}, {vr(vA0+2*i,2)}, {vr(vA0+2*i+2,2)}")
    a(f"v_pk_add_f32 {vr(vS,2)}, {vr(vS,2)}, {vr(vS+2,2)}")
    a(f"v_pk_add_f32 {vr(vS,2)}, {vr(vS,2)}, {vr(vA0+8,2)}")
    a(f"v_add_f32 v{vMean}, v{vS}, v{vS+1}")
    allreduce("v_add_f32", [vMean], [vT + 3])
    a(f"v_mul_f32 v{vMean}, {R640:#x}, v{vMean}")
    for i in range(10):
        a(f"v_sub_f32 v{vA0+i}, v{vA0+i}, v{vMean}")
    a(f"v_pk_mul_f32 {vr(vS,2)}, {vr(vA0,2)}, {vr(vA0,2)}")
    for i in range(1, 5):
        a(f"v_pk_fma_f32 {vr(vS,2)}, {vr(vA0+2*i,2)}, {vr(vA0+2*i,2)}, {vr(vS,2)}")
    a(f"v_add_f32 v{vVar}, v{vS}, v{vS+1}")
    allreduce("v_add_f32", [vVar], [vT + 3])
    a(f"v_mul_f32 v{vVar}, {R640:#x}, v{vVar}")
    ln_finish(vMean, vVar, vRcp, vT + 3)
    normalise_pair(vXC, vXC, vMean, vVar, vRcp, vT + 4)
    a(f"ds_write_b32 v{vXA}, v{vXC}")
    a("s_waitcnt lgkmcnt(0)")
    for b in range(5):
        a(f"ds_read_b64 {vr(vA0+2*b,2)}, v{vXA+1} offset:{32*b}")
    vB = vACC
    a("s_waitcnt lgkmcnt(0)")
    for t in range(4):
        for k in range(8):
            a(f"v_and_b32 v{vB+8*t+k}, v{vA0+k}, v{vMk+t}")
        for k in range(2):
            a(f"v_and_b32 v{vB+32+2*t+k}, v{vA0+8+k}, v{vMk+t}")
    a(f"s_lshl_b32 s{sT2}, s{sW}, 8")
    a(f"s_add_u32 s{sT2}, s{sT2}, s{sRow}")
    a(f"s_lshl_b32 s{sT2}, s{sT2}, 1")
    a(f"s_add_u32 s{sT2}, s{sT2}, {QP}")
    a(f"v_lshlrev_b32 v{vT}, 5, v{vG}")
    a(f"v_lshl_add_u32 v{vT}, v{vN}, 7, v{vT}")
    a(f"v_mov_b32 v{vT+1}, 0")
    stamp("ln")
    a("s_waitcnt vmcnt(4)")
    a("s_barrier")
    stamp("wq")
    rd = [(vF + 8 * t + 2 * b, b * 6144 + t * 32) for t in range(4) for b in range(4)]
    rd += [(vF + 32 + 2 * t, 4 * 6144 + t * 32) for t in range(4)]
    a(f"ds_read_b64 {vr(vS+6,2)}, v{vT+1} offset:{NV_}")
    for k in range(14):
        a(f"ds_read_b64_tr_b16 {vr(rd[k][0],2)}, v{vWA} offset:{rd[k][1]}")
    for k in range(10):
        left = min(20, 14 + 2 * k) - 2 * (k + 1)
        a(f"s_waitcnt lgkmcnt({left})")
        cc = "0" if k == 0 else vr(vS, 4)
        a(f"v_mfma_f32_16x16x32_bf16 {vr(vS,4)}, {vr(vF+4*k,4)}, {vr(vB+4*k,4)}, {cc}")
        for kk in (14 + 2 * k, 15 + 2 * k):
            if kk < 20:
                a(f"ds_read_b64_tr_b16 {vr(rd[kk][0],2)}, v{vWA} offset:{rd[kk][1]}")
    a("s_mov_b32 exec_lo, 0x000f000f")
    a("s_mov_b32 exec_hi, 0x000f000f")
    nop(6)
    a(f"v_mov_b32 v{vS+4}, v{vS+2}")
    a(f"v_mov_b32 v{vS+5}, v{vS+3}")
    a(f"v_mov_b32 v{vS+2}, v{vS+6}")
    a(f"v_mov_b32 v{vS+3}, v{vS+6}")
    a(f"buffer_store_dwordx4 {vr(vS,4)}, v{vT}, {sr(rWS,4)}, s{sT2} offen sc1")
    a(f"buffer_store_dwordx4 {vr(vS+4,4)}, v{vT}, {sr(rWS,4)}, s{sT2} offen offset:16 sc1")
    exec_all()
    stamp("qpub")
    issue_chunk(rK, sMK, (1,))
    a("s_barrier")
    if early_setup:
        stream_setup()
    if kpace:
        a(f"s_waitcnt vmcnt({kpace})")
    issue_chunk(rK, sMK, (2,))
    if phased:
        next_off()
    for j in range(3):
        a(f"s_waitcnt vmcnt({pace})")
        issue_chunk(rK if phased else rV, sMV, (j,))
    stamp("v0iss")
    stamp("wiss")
    if not early_setup:
        stream_setup()
    a("s_barrier")
    a("s_branch L_qready")

    c("================ wave 3: hand-off set-up and the gather of q ================")
    lab("L_comm")
    c("workgroup 0 draws this launch's nonce (the clock) into debug word 0")
    a("s_cmp_lg_u32 s2, 0")
    a("s_cbranch_scc1 L_no_nonce")
    a(f"s_max_u32 s{sNon}, s{sNon}, 1")
    a(f"s_mov_b32 s{sNon+1}, 0")
    a(f"s_atomic_cmpswap {sr(sNon,2)}, {sr(pDBG,2)}, 0x0")
    lab("L_no_nonce")
    c("members 0..3 reset one ticket counter of the head each")
    a(f"s_cmp_ge_u32 s{sM}, 4")
    a("s_cbranch_scc1 L_no_ct")
    a(f"s_lshl_b32 s{sT0}, s{sH}, 2")
    a(f"s_add_u32 s{sT0}, s{sT0}, s{sM}")
    a(f"s_lshl_b32 s{sT0}, s{sT0}, 8")
    a(f"s_add_u32 s98, s{sT0}, {CT}")
    a(f"s_mov_b32 s99, 0")
    a(f"s_atomic_swap s99, {sr(pWS,2)}, s98 glc")
    lab("L_no_ct")
    for k in range(4):
        a(f"v_mov_b32 v{vT+k}, -1")
    if cdelay:
        a(f"s_sleep {cdelay}")
    c("mark the slots this workgroup publishes in the tail as empty")
    if noclr:
        a("s_branch L_clr_done")
    exec_first(49)
    a(f"s_add_u32 s{sT0}, s{sRow}, {OP}")
    a(f"buffer_store_dwordx4 {vr(vT,4)}, v{vDMA}, {sr(rWS,4)}, s{sT0} offen sc1")
    a(f"s_cmp_ge_u32 s{sR}, 20")
    a("s_cbranch_scc1 L_clr_ffn")
    exec_first(8)
    a(f"s_mul_i32 s{sT0}, s{sM}, 2560")
    a(f"s_lshl_b32 s{sT2}, s{sR}, 7")
    a(f"s_add_u32 s{sT0}, s{sT0}, s{sT2}")
    a(f"s_add_u32 s{sT0}, s{sT0}, {YP}")
    a(f"buffer_store_dwordx4 {vr(vT,4)}, v{vDMA}, {sr(rWS,4)}, s{sT0} offen sc1")
    a("s_branch L_clr_ct")
    lab("L_clr_ffn")
    exec_all()
    a(f"s_mul_i32 s{sT0}, s{sF}, 2560")
    a(f"s_add_u32 s{sT0}, s{sT0}, {FP}")
    a(f"buffer_store_dwordx4 {vr(vT,4)}, v{vDMA}, {sr(rWS,4)}, s{sT0} offen sc1")
    a(f"buffer_store_dwordx4 {vr(vT,4)}, v{vDMA}, {sr(rWS,4)}, s{sT0} offen offset:1024 sc1")
    exec_first(32)
    a(f"buffer_store_dwordx4 {vr(vT,4)}, v{vDMA}, {sr(rWS,4)}, s{sT0} offen offset:2048 sc1")
    lab("L_clr_ct")
    lab("L_clr_done")
    exec_all()
    srd(rK, pK, HEAD_BYTES, addlo=sT1)
    issue_chunk(rK, sMK, (0, 1, 2)[:k3])
    srd(rV, pV, HEAD_BYTES, addlo=sT1)
    a(f"s_mov_b32 s{sBound}, {bound}")
    if ndelay:
        a(f"s_sleep {ndelay}")
    c("first look through the scalar cache (first touch in this launch), further looks by vector loads")
    a("s_waitcnt lgkmcnt(0)")
    a(f"s_load_dword s{sNon}, {sr(pDBG,2)}, 0x0")
    srd(rDBG, pDBG, 256)
    a(f"v_mov_b32 v{vT+6}, 0")
    a("s_waitcnt lgkmcnt(0)")
    lab("L_noncepoll")
    a(f"s_cmp_lg_u32 s{sNon}, 0")
    a("s_cbranch_scc1 L_nonce_ok")
    a(f"buffer_load_dword v{vT+4}, v{vT+6}, {sr(rDBG,4)}, 0 offen sc1")
    a(f"s_sub_u32 s{sBound}, s{sBound}, 1")
    a("s_waitcnt vmcnt(0)")
    a(f"v_readfirstlane_b32 s{sNon}, v{vT+4}")
    a(f"s_cmp_lg_u32 s{sBound}, 0")
    a("s_cbranch_scc1 L_noncepoll")
    a("s_branch L_end")
    lab("L_nonce_ok")
    stamp("nonce")
    a(f"v_mov_b32 v{vT+4}, s{sNon}")
    a(f"v_mov_b32 v{vT+5}, s{sNon}")
    a(f"v_mov_b32 v{vT+6}, 0")
    a(f"ds_write_b64 v{vT+6}, {vr(vT+4,2)} offset:{NV_}")
    a(f"s_lshl_b32 s{sT1}, s{sH}, 14")
    a(f"s_add_u32 s{sT1}, s{sT1}, {QP}")
    for k in range(1, 4):
        a(f"s_add_u32 s{sEx if k == 3 else sT1 + k}, s{sT1}, {4096*k}")
    qbase = [sT1, sT2, sT3, sEx]
    a(f"v_lshlrev_b32 v{vT+6}, 5, v{vLane}")
    a(f"s_waitcnt vmcnt({4*k3}) lgkmcnt(0)")
    stamp("flagst")
    a("s_barrier")
    stream_setup()
    a("s_barrier")
    exec_first(48)
    if gdelay:
        a(f"s_sleep {gdelay}")
    vG2 = vQ
    a(f"s_mov_b32 s{sBound}, {bound}")
    lab("L_qpoll")
    for m in range(8):
        for hh in range(2):
            a(f"buffer_load_dwordx3 {vr(vG2+8*m+4*hh,3)}, v{vT+6}, {sr(rWS,4)}, s{qbase[m//2]} offen offset:{2048*(m%2) + 16*hh} sc1")
    a("s_waitcnt vmcnt(0)")
    a(f"v_xor_b32 v{vT}, v{vG2+2}, v{vT+4}")
    for k in range(1, 16):
        a(f"v_bitop3_b32 v{vT}, v{vG2+4*k+2}, v{vT+4}, v{vT} bitop3:0xbe")
    a(f"v_cmp_ne_u32 vcc, 0, v{vT}")
    nop(1)
    a("s_cbranch_vccz L_qgot")
    a(f"s_sub_u32 s{sBound}, s{sBound}, 1")
    a(f"s_cmp_lg_u32 s{sBound}, 0")
    a("s_cbranch_scc1 L_qpoll")
    a("s_branch L_end")
    lab("L_qgot")
    stamp("qgot")
    for m in range(1, 8):
        for hh in (0, 4):
            a(f"v_pk_add_f32 {vr(vG2+hh,2)}, {vr(vG2+hh,2)}, {vr(vG2+8*m+hh,2)}")
    a(f"v_cvt_pk_bf16_f32 v{vF}, v{vG2}, v{vG2+1}")
    a(f"v_cvt_pk_bf16_f32 v{vF+1}, v{vG2+4}, v{vG2+5}")
    a(f"v_lshlrev_b32 v{vT}, 3, v{vLane}")
    a(f"ds_write_b64 v{vT}, {vr(vF,2)} offset:{QV}")
    exec_all()
    c("all eight members have published q, so they have emptied their slots: member 0 counts the head in debug word 32")
    a(f"s_cmp_lg_u32 s{sM}, 0")
    a("s_cbranch_scc1 L_no_cnt")
    a(f"s_mov_b32 s99, 1")
    a(f"s_atomic_add s99, {sr(pDBG,2)}, 0x80")
    lab("L_no_cnt")
    assert k3 == 3
    if phased:
        next_off()
    if v3early:
        issue_chunk(rK if phased else rV, sMV)
    a("s_waitcnt lgkmcnt(0)")
    a("s_barrier")
    if not v3early:
        issue_chunk(rK if phased else rV, sMV)

    lab("L_qready")
    w_loads_at(0)
    stamp("qbar")
    a(f"v_lshlrev_b32 v{vT}, 4, v{vG}")
    for j in range(6):
        a(f"ds_read_b128 {vr(vQ+4*j,4)}, v{vT} offset:{QV + 64*j}")
    stamp("qrdy")
    if dbgspan:
        a("s_memrealtime s[98:99]")
    a("s_waitcnt lgkmcnt(0)")

    def qk_phase(so=0):
        if nocomp:
            a("s_waitcnt lgkmcnt(0)")
            return
        for u in range(2):
            for j in range(6):
                if swz:
                    a(f"ds_read_b128 {vr(vF + 24*u + 4*j, 4)}, v{vKA2 + (j & 1)} offset:{so + 6144*u + 128*(j >> 1)}")
                else:
                    a(f"ds_read_b128 {vr(vF + 24*u + 4*j, 4)}, v{vKA} offset:{so + 6144*u + 64*j}")
        for j in range(6):
            a(f"s_waitcnt lgkmcnt({11 - j})")
            cc = "0" if j == 0 else vr(vS, 4)
            a(f"v_mfma_f32_16x16x32_bf16 {vr(vS,4)}, {vr(vF+4*j,4)}, {vr(vQ+4*j,4)}, {cc}")
        for j in range(6):
            a(f"s_waitcnt lgkmcnt({5 - j})")
            cc = "0" if j == 0 else vr(vS + 4, 4)
            a(f"v_mfma_f32_16x16x32_bf16 {vr(vS+4,4)}, {vr(vF+24+4*j,4)}, {vr(vQ+4*j,4)}, {cc}")

    def round_scores():
        for k in range(4):
            a(f"v_cvt_pk_bf16_f32 v{vP+k}, v{vS+2*k}, v{vS+2*k+1}")
        for k in range(4):
            unpack(vP + k, vS + 2 * k, vS + 2 * k + 1)
        for k in range(8):
            a(f"v_mul_f32 v{vS+k}, s{sSc}, v{vS+k}")
        for k in range(4):
            a(f"v_cvt_pk_bf16_f32 v{vP+k}, v{vS+2*k}, v{vS+2*k+1}")
        for k in range(4):
            unpack(vP + k, vS + 2 * k, vS + 2 * k + 1)

    def exps():
        for k in range(8):
            a(f"v_fma_f32 v{vE+k}, v{vS+k}, s{sLog}, -v{vML}")
        for k in range(8):
            a(f"v_exp_f32 v{vE+k}, v{vE+k}")
        nop(1)
        for k in range(4):
            a(f"v_cvt_pk_bf16_f32 v{vP+k}, v{vE+2*k}, v{vE+2*k+1}")
        for k in range(4):
            a(f"v_add_f32 v{vE+k}, v{vE+k}, v{vE+4+k}")
        a(f"v_add_f32 v{vE}, v{vE}, v{vE+1}")
        a(f"v_add_f32 v{vE+2}, v{vE+2}, v{vE+3}")
        a(f"v_add_f32 v{vE}, v{vE}, v{vE+2}")
        a(f"v_add_f32 v{vL}, v{vL}, v{vE}")

    def softmax_phase():
        if nocomp:
            return
        round_scores()
        a(f"v_max3_f32 v{vT}, v{vS}, v{vS+1}, v{vS+2}")
        a(f"v_max3_f32 v{vT+1}, v{vS+3}, v{vS+4}, v{vS+5}")
        a(f"v_max3_f32 v{vT}, v{vT}, v{vS+6}, v{vS+7}")
        a(f"v_max_f32 v{vT}, v{vT}, v{vT+1}")
        xgroup("v_max_f32", [vT], [vT + 1])
        a(f"v_mul_f32 v{vT}, s{sLog}, v{vT}")
        a(f"v_cmp_gt_f32 vcc, v{vT}, v{vML}")
        skip = g.newlab("keep")
        nop(1)
        a(f"s_cbranch_vccz {skip}")
        a(f"v_sub_f32 v{vT+1}, v{vML}, v{vT}")
        a(f"v_exp_f32 v{vT+1}, v{vT+1}")
        a(f"v_mov_b32 v{vML}, v{vT}")
        a(f"v_mul_f32 v{vL}, v{vL}, v{vT+1}")
        for r in range(0, 48, 4):
            a(f"v_mul_f32 v{vACC+r}, v{vACC+r}, v{vT+1}")
        lab(skip)
        exps()

    def pv_phase(so=CB):
        if nocomp:
            return
        for t in range(12):
            for u in range(2):
                if swz:
                    a(f"ds_read_b64_tr_b16 {vr(vF + 4*t + 2*u, 2)}, v{vVA4 + (t & 3)} offset:{so + 6144*u + 128*(t >> 2)}")
                else:
                    a(f"ds_read_b64_tr_b16 {vr(vF + 4*t + 2*u, 2)}, v{vVA} offset:{so + 6144*u + 32*t}")
            if t >= 6:
                tt = t - 6
                a(f"s_waitcnt lgkmcnt({2*(t - tt)})")
                a(f"v_mfma_f32_16x16x32_bf16 {vr(vACC+4*tt,4)}, {vr(vP,4)}, {vr(vF+4*tt,4)}, {vr(vACC+4*tt,4)}")
        for tt in range(6, 12):
            a(f"s_waitcnt lgkmcnt({2*(11 - tt)})")
            a(f"v_mfma_f32_16x16x32_bf16 {vr(vACC+4*tt,4)}, {vr(vP,4)}, {vr(vF+4*tt,4)}, {vr(vACC+4*tt,4)}")

    sTk, sCa = 96, 97

    def ticket():
        a(f"s_mov_b32 s{sTk}, 1")
        a(f"s_atomic_add s{sTk}, {sr(pWS,2)}, s{sCa} glc")

    def maybe_ticket():
        a(f"s_cmp_lg_u32 s{sLeft}, 0")
        a("s_cbranch_scc1 L_notk")
        ticket()
        lab("L_notk")

    def decode_ticket(empty):
        a(f"s_mov_b32 s{sT1}, s{sTk}")
        a(f"s_cmp_ge_u32 s{sT1}, {8*nblk}")
        a(f"s_cbranch_scc1 {empty}")
        a(f"s_and_b32 s{sJW}, s{sT1}, 7")
        a(f"s_lshl_b32 s{sJW}, s{sJW}, 2")
        a(f"s_add_u32 s{sJW}, s{sJW}, s{sW}")
        a(f"s_mul_i32 s{sJW}, s{sJW}, {CB}")
        a(f"s_and_b32 s{sT1}, s{sT1}, 0xf8")
        a(f"s_lshr_b64 {sr(sEx,2)}, {sr(sTabS,2)}, s{sT1}")
        a(f"s_and_b32 s{sRnd}, s{sEx}, 0xff")
        a(f"s_lshr_b64 {sr(sEx,2)}, {sr(sTabN,2)}, s{sT1}")
        a(f"s_and_b32 s{sLeft}, s{sEx}, 0xff")

    def chk_block(back):
        c("once, in wave 3: every head must have been counted before this workgroup reads tail slots")
        lab("L_chk")
        a(f"s_load_dword s{sT1}, {sr(pDBG,2)}, 0x80")
        a(f"s_mov_b32 s{sBound}, {bound}")
        lab("L_chk_poll")
        a("s_waitcnt lgkmcnt(0)")
        a(f"s_cmp_ge_u32 s{sT1}, 32")
        a(f"s_cbranch_scc1 {back}")
        a("s_sleep 32")
        a(f"s_load_dword s{sT1}, {sr(pDBG,2)}, 0x80 glc")
        a(f"s_sub_u32 s{sBound}, s{sBound}, 1")
        a(f"s_cmp_lg_u32 s{sBound}, 0")
        a("s_cbranch_scc1 L_chk_poll")
        a("s_branch L_end")

    assert sched[0] >= 2
    if phased:
        n0 = sched[0]
        assert n0 % 2 == 0 and n0 >= 8 and 64 * n0 <= XOS and chk % 2 == 0 and chk >= 6 and nblk
        vSC, vMx, sPair = vTk, vCa, 99
        c("================ static part, first pass: all scores (two K chunks per trip) ================")
        a(f"s_mul_i32 s{sT0}, s{sW}, {XOS}")
        a(f"s_add_u32 s{sT0}, s{sT0}, {XO}")
        a(f"v_lshl_add_u32 v{vSC}, v{vG}, 4, s{sT0}")
        a(f"v_mov_b32 v{vMx}, 0xff800000")
        a(f"s_mov_b32 s{sPair}, {n0 // 2}")
        a("s_branch L_kfirst")
        chk_block("L_kloop")
        lab("L_kloop")
        a("s_waitcnt vmcnt(12)")
        lab("L_kfirst")
        for h_, (so, m0b) in enumerate(((0, sMK), (CB, sMV))):
            if h_:
                a("s_waitcnt vmcnt(12)")
            qk_phase(so)
            a(f"s_cmp_eq_u32 s{sPair}, 1")
            a(f"s_cbranch_scc1 L_kv{h_}")
            next_off()
            issue_chunk(rK, m0b)
            a(f"s_branch L_kd{h_}")
            lab(f"L_kv{h_}")
            if h_ == 0:
                a(f"s_mov_b32 s{sRnd}, 0")
            next_off()
            issue_chunk(rV, m0b)
            lab(f"L_kd{h_}")
            round_scores()
            exec_n0()
            a(f"ds_write_b128 v{vSC}, {vr(vP,4)} offset:{64*h_}")
            exec_all()
            for k in range(0, 8, 2):
                a(f"v_max3_f32 v{vMx}, v{vMx}, v{vS+k}, v{vS+k+1}")
        a(f"v_add_u32 v{vSC}, 128, v{vSC}")
        a(f"s_sub_u32 s{sPair}, s{sPair}, 1")
        a(f"s_cmp_eq_u32 s{sRnd}, s98")
        a("s_cbranch_scc1 L_chk")
        a(f"s_cmp_lg_u32 s{sPair}, 0")
        a("s_cbranch_scc1 L_kloop")
        stamp("kdone")
        c("================ static part, second pass: V ================")
        xgroup("v_max_f32", [vMx], [vT])
        a(f"v_mul_f32 v{vML}, s{sLog}, v{vMx}")
        a(f"v_subrev_u32 v{vSC}, {64*n0}, v{vSC}")
        a(f"s_mov_b32 s{sPair}, {n0 // 2 - 1}")
        a("s_waitcnt lgkmcnt(0)")

        def prep(off):
            a(f"ds_read_b128 {vr(vP,4)}, v{vSC} offset:{off}")
            a("s_waitcnt lgkmcnt(0)")
            for k in range(4):
                unpack(vP + k, vS + 2 * k, vS + 2 * k + 1)
            exps()
        lab("L_vloop")
        for h_, (so, m0b) in enumerate(((0, sMK), (CB, sMV))):
            prep(64 * h_)
            a("s_waitcnt vmcnt(12)")
            pv_phase(so)
            next_off()
            issue_chunk(rV, m0b)
        a(f"v_add_u32 v{vSC}, 128, v{vSC}")
        a(f"s_sub_u32 s{sPair}, s{sPair}, 1")
        a(f"s_cmp_lg_u32 s{sPair}, 0")
        a("s_cbranch_scc1 L_vloop")
        prep(0)
        ticket()
        a("s_waitcnt vmcnt(12)")
        pv_phase(0)
        decode_ticket("L_vempty")
        next_off()
        issue_chunk(rK, sMK)
        prep(64)
        a("s_waitcnt vmcnt(12)")
        pv_phase(CB)
        issue_chunk(rV, sMV)
        stamp("vdone")
    c("================ shared part: one 32-key chunk per trip, handed out by ticket ================")
    if not phased:
        a("s_branch L_first")
    lab("L_loop")
    if nblk and tkpos == 1:
        maybe_ticket()
    a("s_waitcnt vmcnt(12)")
    if nblk and tkpos == 2:
        maybe_ticket()
    lab("L_first")
    qk_phase()
    a(f"s_cmp_lg_u32 s{sLeft}, 0")
    a("s_cbranch_scc1 L_have")
    if nblk:
        decode_ticket("L_last")
    else:
        a("s_branch L_last")
    lab("L_have")
    next_off()
    issue_chunk(rK, sMK)
    softmax_phase()
    a("s_waitcnt vmcnt(12)")
    pv_phase()
    if nblk and tkpos == 0:
        maybe_ticket()
    issue_chunk(rV, sMV)
    if diag:
        a(f"s_add_u32 s{sCnt}, s{sCnt}, 1")
    if phased:
        assert tkpos != 0
        a("s_branch L_loop")
        lab("L_vempty")
        prep(64)
        a("s_branch L_lastv")
    else:
        a(f"s_cmp_eq_u32 s{sRnd}, s98")
        a("s_cbranch_scc0 L_loop")
        chk_block("L_loop")
    lab("L_last")
    nop(8)
    softmax_phase()
    lab("L_lastv")
    c("weights of the tail -> LDS WGT, behind the last V chunk")
    if wat == 1 or watf == 1:
        l1, l2 = "L_w1f", "L_w1d"
        a(f"s_cmp_ge_u32 s{sR}, 20")
        a(f"s_cbranch_scc1 {l1}")
        if wat == 1:
            w_loads_wo(range(wo_pre, 12))
        a(f"s_waitcnt vmcnt({12 - wo_pre if wat == 1 else 0})")
        a(f"s_branch {l2}")
        lab(l1)
        if watf == 1:
            w_loads_ffn(range(w1_pre, 5), range(w2_pre, 5))
        a(f"s_waitcnt vmcnt({10 - w1_pre - w2_pre if watf == 1 else 0})")
        lab(l2)
    else:
        a("s_waitcnt vmcnt(0)")
    pv_phase()
    stamp("stream")
    if dbgspan:
        a("s_memrealtime s[100:101]")
        a("s_waitcnt lgkmcnt(0)")
        a(f"v_mov_b32 v{vE}, s96")
        a(f"v_mov_b32 v{vE+1}, s98")
        a(f"v_mov_b32 v{vE+2}, s100")
        a(f"v_mov_b32 v{vE+3}, 0")
        a(f"s_lshl_b32 s{sT0}, s2, 2")
        a(f"s_add_u32 s{sT0}, s{sT0}, s{sW}")
        a(f"s_lshl_b32 s{sT0}, s{sT0}, 4")
        a(f"s_add_u32 s{sT0}, s{sT0}, {ST}")
        exec_first(1)
        a(f"buffer_store_dwordx4 {vr(vE,4)}, v{vDMA}, {sr(rWS,4)}, s{sT0} offen sc1")
        exec_all()
        a("s_waitcnt vmcnt(0)")
    c("---------------- combine the four waves ----------------")

    def pk_scale(dst, w, src, first):
        for r in (0, 2):
            if first:
                a(f"v_pk_mul_f32 {vr(dst+r,2)}, {vr(w,2)}, {vr(src+r,2)} op_sel_hi:[0,1]")
            else:
                a(f"v_pk_fma_f32 {vr(dst+r,2)}, {vr(w,2)}, {vr(src+r,2)}, {vr(dst+r,2)} op_sel_hi:[0,1,1]")

    def pk_sum4(b):
        for r in (0, 2):
            a(f"v_pk_add_f32 {vr(b+r,2)}, {vr(b+r,2)}, {vr(b+4+r,2)}")
            a(f"v_pk_add_f32 {vr(b+8+r,2)}, {vr(b+8+r,2)}, {vr(b+12+r,2)}")
        for r in (0, 2):
            a(f"v_pk_add_f32 {vr(b+r,2)}, {vr(b+r,2)}, {vr(b+8+r,2)}")

    a(f"s_mul_i32 s{sT0}, s{sW}, {XOS}")
    a(f"s_add_u32 s{sT0}, s{sT0}, {XO}")
    a(f"v_lshl_add_u32 v{vT+2}, v{vN}, 2, s{sT0}")
    a(f"v_mov_b32 v{vT+1}, s{sT0}")
    xgroup("v_add_f32", [vL], [vT])
    exec_first(16)
    a(f"ds_write_b64 v{vT+1}, {vr(vML,2)} offset:768")
    for t in range(0, 12, 2):
        a(f"ds_write2_b32 v{vT+2}, v{vACC+4*t}, v{vACC+4*t+4} offset0:{16*t} offset1:{16*t+16}")
    exec_all()
    w_loads_at(2)
    a(f"v_mov_b32 v{vT}, 0")
    a(f"s_add_u32 s{sT0}, s{sRow}, {OP}")
    a("s_waitcnt lgkmcnt(0)")
    a("s_barrier")
    a(f"s_cmp_lg_u32 s{sW}, 0")
    a("s_cbranch_scc1 L_pub_done")
    for w in range(4):
        a(f"ds_read_b64 {vr(vE+2*w,2)}, v{vT} offset:{XO + XOS*w + 768}")
    for w in range(4):
        a(f"ds_read_b128 {vr(vF+4*w,4)}, v{vDMA} offset:{XO + XOS*w}")
    a("s_waitcnt lgkmcnt(4)")
    a(f"v_max3_f32 v{vT}, v{vE}, v{vE+2}, v{vE+4}")
    a(f"v_max_f32 v{vT}, v{vT}, v{vE+6}")
    for w in range(4):
        a(f"v_sub_f32 v{vE+2*w}, v{vE+2*w}, v{vT}")
    for w in range(4):
        a(f"v_exp_f32 v{vE+2*w}, v{vE+2*w}")
    a("s_waitcnt lgkmcnt(0)")
    a(f"v_mul_f32 v{vT+1}, v{vE}, v{vE+1}")
    pk_scale(vS, vE, vF, True)
    for w in range(1, 4):
        a(f"v_fmac_f32 v{vT+1}, v{vE+2*w}, v{vE+2*w+1}")
        pk_scale(vS, vE + 2 * w, vF + 4 * w, False)
    a(f"s_bfm_b64 exec, 1, 48")
    a(f"v_mov_b32 v{vS}, v{vT}")
    a(f"v_mov_b32 v{vS+1}, v{vT+1}")
    exec_first(49)
    a(f"v_min_u32 v{vS}, 0xfffffffe, v{vS}")
    a(f"buffer_store_dwordx4 {vr(vS,4)}, v{vDMA}, {sr(rWS,4)}, s{sT0} offen sc1")
    exec_all()
    lab("L_pub_done")
    stamp("opub")
    w_loads_at(3)
    a(f"s_cmp_ge_u32 s{sR}, 20")
    a("s_cbranch_scc1 L_ffn")

    c("================ output projection role: heads 4m..4m+3, columns 32r..32r+31 ================")
    vWf = vACC
    a(f"s_mul_i32 s{sT0}, s{sW}, 12288")
    a(f"s_add_u32 s{sT0}, s{sT0}, {WGT}")
    a(f"v_lshl_add_u32 v{vT}, v{vTR0}, 6, v{vTR1}")
    a(f"v_add_u32 v{vT}, s{sT0}, v{vT}")
    a(f"s_lshl_b32 s{sT1}, s{sM}, 2")
    a(f"s_add_u32 s{sT1}, s{sT1}, s{sW}")
    a(f"s_lshl_b32 s{sT1}, s{sT1}, 13")
    a(f"s_add_u32 s{sT1}, s{sT1}, {OP}")
    a(f"s_add_u32 s{sT2}, s{sT1}, 4096")
    a(f"v_mov_b32 v{vT+4}, 768")
    a(f"s_lshl_b32 s{sT0}, s{sW}, 9")
    a(f"s_add_u32 s{sT0}, s{sT0}, {OV}")
    a(f"v_lshl_add_u32 v{vT+6}, v{vLane}, 3, s{sT0}")
    a(f"v_lshl_add_u32 v{vT+7}, v{vG}, 3, s{sT0}")
    a(f"s_lshl_b32 s{sT0}, s{sW}, 7")
    a(f"s_add_u32 s{sT0}, s{sT0}, {XY}")
    a(f"v_lshl_add_u32 v{vT+8}, v{vG}, 4, s{sT0}")
    a(f"s_mul_i32 s{sT0}, s{sM}, 2560")
    a(f"s_lshl_b32 s{sT3}, s{sR}, 7")
    a(f"s_add_u32 s{sT0}, s{sT0}, s{sT3}")
    a(f"s_add_u32 s{sT0}, s{sT0}, {YP}")
    vO, vMLs = vF, vF + 32
    if wo_pre < 12:
        a("s_waitcnt vmcnt(0)")
    stamp("wland")
    for t in range(2):
        for b in range(12):
            a(f"ds_read_b64_tr_b16 {vr(vWf + 24*t + 2*b, 2)}, v{vT} offset:{1024*b + 32*t}")
            if (12 * t + b) % 12 == 11:
                a("s_waitcnt lgkmcnt(0)")
    exec_first(48)

    def aloads():
        for m in range(8):
            so = sT1 if m < 4 else sT2
            a(f"buffer_load_dwordx2 {vr(vMLs+2*m,2)}, v{vT+4}, {sr(rWS,4)}, s{so} offen offset:{1024*(m%4)} sc1")
            a(f"buffer_load_dwordx4 {vr(vO+4*m,4)}, v{vDMA}, {sr(rWS,4)}, s{so} offen offset:{1024*(m%4)} sc1")
    poll(aloads, [vO + 4 * m for m in range(8)] + [vMLs + 2 * m for m in range(8)], vT + 5)
    stamp("hopA")
    a(f"v_max3_f32 v{vT}, v{vMLs}, v{vMLs+2}, v{vMLs+4}")
    a(f"v_max3_f32 v{vT+1}, v{vMLs+6}, v{vMLs+8}, v{vMLs+10}")
    a(f"v_max3_f32 v{vT}, v{vT}, v{vMLs+12}, v{vMLs+14}")
    a(f"v_max_f32 v{vT}, v{vT}, v{vT+1}")
    for m in range(8):
        a(f"v_sub_f32 v{vMLs+2*m}, v{vMLs+2*m}, v{vT}")
    for m in range(8):
        a(f"v_exp_f32 v{vMLs+2*m}, v{vMLs+2*m}")
    a(f"v_mul_f32 v{vT+2}, v{vMLs}, v{vMLs+1}")
    for m in range(1, 8):
        a(f"v_fmac_f32 v{vT+2}, v{vMLs+2*m}, v{vMLs+2*m+1}")
    a(f"v_rcp_f32 v{vT+2}, v{vT+2}")
    for m in range(8):
        pk_scale(vS, vMLs + 2 * m, vO + 4 * m, m == 0)
    pk_scale(vS, vT + 2, vS, True)
    a(f"v_cvt_pk_bf16_f32 v{vS}, v{vS}, v{vS+1}")
    a(f"v_cvt_pk_bf16_f32 v{vS+1}, v{vS+2}, v{vS+3}")
    a(f"ds_write_b64 v{vT+6}, {vr(vS,2)}")
    exec_all()
    a("s_waitcnt lgkmcnt(0)")
    for b in range(12):
        a(f"ds_read_b64 {vr(vQ+2*b,2)}, v{vT+7} offset:{32*b}")
    for j in range(6):
        a(f"s_waitcnt lgkmcnt({10 - 2*j})")
        for t in range(2):
            cc = "0" if j == 0 else vr(vS + 4 * t, 4)
            a(f"v_mfma_f32_16x16x32_bf16 {vr(vS+4*t,4)}, {vr(vWf+24*t+4*j,4)}, {vr(vQ+4*j,4)}, {cc}")
    exec_n0()
    nop(5)
    for t in range(2):
        a(f"ds_write_b128 v{vT+8}, {vr(vS+4*t,4)} offset:{64*t}")
        if t == 0:
            pass
    exec_first(8)
    a("s_waitcnt lgkmcnt(0)")
    a("s_barrier")
    a(f"s_cmp_lg_u32 s{sW}, 0")
    a("s_cbranch_scc1 L_fin")
    for w in range(4):
        a(f"ds_read_b128 {vr(vF+4*w,4)}, v{vDMA} offset:{XY + 128*w}")
    a("s_waitcnt lgkmcnt(0)")
    pk_sum4(vF)
    a(f"v_min_u32 v{vF}, 0xfffffffe, v{vF}")
    a(f"buffer_store_dwordx4 {vr(vF,4)}, v{vDMA}, {sr(rWS,4)}, s{sT0} offen sc1")
    a("s_branch L_fin")

    c("================ FFN role: hidden columns 16f..16f+15 ================")
    lab("L_ffn")
    vW1, vW2, vCs, vMk2, vXU = vACC, vACC + 20, vACC + 40, vU + 18, vACC + 44
    a(f"s_mul_i32 s{sT0}, s{sW}, 5120")
    a(f"s_add_u32 s{sT0}, s{sT0}, {WGT}")
    a(f"v_lshl_add_u32 v{vT}, v{vLane}, 3, s{sT0}")
    for t in range(10):
        a(f"v_cmp_eq_u32 vcc, {t}, v{vN}")
        nop(2)
        a(f"v_cndmask_b32 v{vMk2+t}, 0, -1, vcc")
    a("s_waitcnt vmcnt(0)")
    stamp("wland")
    for b in range(10):
        a(f"ds_read_b64_tr_b16 {vr(vW1+2*b,2)}, v{vT} offset:{512*b}")
    a(f"v_mul_u32_u24 v{vT+1}, 1280, v{vTR0}")
    a(f"s_mul_i32 s{sT0}, s{sW}, 320")
    a(f"s_add_u32 s{sT1}, s{sT0}, {WGT + 20480}")
    a(f"v_add3_u32 v{vT+1}, v{vT+1}, v{vTR1}, s{sT1}")
    for r in range(4):
        a(f"v_mov_b32 v{vE+r}, 0x3f803f80")
    a(f"v_lshlrev_b32 v{vT+6}, 4, v{vG}")
    a(f"s_lshl_b32 s{sT2}, s{sW}, 6")
    a(f"v_add_u32 v{vT+7}, s{sT2}, v{vT+6}")
    a("s_waitcnt lgkmcnt(0)")
    c("column sums of this w1 slice (layernorm's mean is applied after the product)")
    for j in range(5):
        cc = "0" if j == 0 else vr(vS, 4)
        a(f"v_mfma_f32_16x16x32_bf16 {vr(vS,4)}, {vr(vW1+4*j,4)}, {vr(vE,4)}, {cc}")
    nop(8)
    exec_n0()
    a(f"ds_write_b128 v{vT+7}, {vr(vS,4)} offset:{XC}")
    exec_all()
    a("s_waitcnt lgkmcnt(0)")
    a("s_barrier")
    for w in range(4):
        a(f"ds_read_b128 {vr(vF+4*w,4)}, v{vT+6} offset:{XC + 64*w}")
    for t in range(10):
        a(f"ds_read_b64_tr_b16 {vr(vW2+2*t,2)}, v{vT+1} offset:{32*t}")
    unpack(vXF, vXU, vXU + 1)
    unpack(vXF + 1, vXU + 2, vXU + 3)
    a(f"v_lshl_add_u32 v{vT+4}, v{vLane}, 3, s{sT0}")
    a(f"v_lshl_add_u32 v{vT+5}, v{vG}, 3, s{sT0}")
    a(f"s_lshl_b32 s{sT2}, s{sW}, 3")
    a(f"v_mov_b32 v{vT+8}, s{sT2}")
    a(f"v_lshl_add_u32 v{vT+9}, v{vN}, 6, v{vT+6}")
    a("s_waitcnt lgkmcnt(0)")
    pk_sum4(vF)
    for r in range(4):
        a(f"v_mov_b32 v{vCs+r}, v{vF+r}")
    a(f"s_mul_i32 s{sT1}, s{sW}, 640")
    a(f"s_mul_i32 s{sT0}, s{sF}, 2560")
    a(f"s_add_u32 s{sT0}, s{sT0}, s{sT1}")
    a(f"s_add_u32 s{sT0}, s{sT0}, {FP}")
    a(f"s_add_u32 s{sT1}, s{sT1}, {YP}")
    for k in range(1, 4):
        a(f"s_add_u32 s{sEx if k == 3 else sT1 + k}, s{sT1}, {5120*k}")
    ybase = [sT1, sT2, sT3, sEx]
    a(f"v_mov_b32 v{vS+4}, 0")
    a(f"v_mov_b32 v{vS+5}, 0")
    exec_first(40)

    def bloads():
        for m in range(8):
            a(f"buffer_load_dwordx4 {vr(vF+4*m,4)}, v{vDMA}, {sr(rWS,4)}, s{ybase[m//2]} offen offset:{2560*(m%2)} sc1")
    poll(bloads, [vF + 4 * m for m in range(8)], vT + 3)
    stamp("hopB")
    pk_sum4(vF)
    pk_sum4(vF + 16)
    for r in (0, 2):
        a(f"v_pk_add_f32 {vr(vF+r,2)}, {vr(vF+r,2)}, {vr(vF+16+r,2)}")
    a(f"v_cvt_pk_bf16_f32 v{vF+4}, v{vF}, v{vF+1}")
    a(f"v_cvt_pk_bf16_f32 v{vF+5}, v{vF+2}, v{vF+3}")
    unpack(vF + 4, vF, vF + 1)
    unpack(vF + 5, vF + 2, vF + 3)
    for r in (0, 2):
        a(f"v_pk_add_f32 {vr(vF+r,2)}, {vr(vF+r,2)}, {vr(vXU+r,2)}")
    vH = vP
    a(f"v_cvt_pk_bf16_f32 v{vH}, v{vF}, v{vF+1}")
    a(f"v_cvt_pk_bf16_f32 v{vH+1}, v{vF+2}, v{vF+3}")
    a(f"ds_write_b64 v{vT+4}, {vr(vH,2)} offset:{HV}")
    unpack(vH, vF, vF + 1)
    unpack(vH + 1, vF + 2, vF + 3)
    a(f"v_pk_add_f32 {vr(vF+4,2)}, {vr(vF,2)}, {vr(vF+2,2)}")
    a(f"v_pk_mul_f32 {vr(vF,2)}, {vr(vF,2)}, {vr(vF,2)}")
    a(f"v_pk_fma_f32 {vr(vF,2)}, {vr(vF+2,2)}, {vr(vF+2,2)}, {vr(vF,2)}")
    a(f"v_add_f32 v{vS+4}, v{vF+4}, v{vF+5}")
    a(f"v_add_f32 v{vS+5}, v{vF}, v{vF+1}")
    exec_all()
    a("s_waitcnt lgkmcnt(0)")
    for b in range(10):
        a(f"ds_read_b64 {vr(vQ+2*b,2)}, v{vT+5} offset:{HV + 32*b}")
    for k, rr in enumerate((8, 4, 2, 1)):
        for r in (vS + 4, vS + 5):
            a(f"v_add_f32_dpp v{r}, v{r}, v{r} row_ror:{rr} row_mask:0xf bank_mask:0xf")
        a(f"s_waitcnt lgkmcnt({8 - 2*k})")
        cc = "0" if k == 0 else vr(vS, 4)
        a(f"v_mfma_f32_16x16x32_bf16 {vr(vS,4)}, {vr(vW1+4*k,4)}, {vr(vQ+4*k,4)}, {cc}")
    a("s_waitcnt lgkmcnt(0)")
    a(f"v_mfma_f32_16x16x32_bf16 {vr(vS,4)}, {vr(vW1+16,4)}, {vr(vQ+16,4)}, {vr(vS,4)}")
    c("fold the four lane groups: lanes 0..31 end with the sum, lanes 32..63 with the sum of squares")
    a(f"v_permlane32_swap_b32 v{vS+4}, v{vS+5}")
    a(f"v_add_f32 v{vS+4}, v{vS+4}, v{vS+5}")
    a(f"v_mov_b32 v{vS+5}, v{vS+4}")
    a(f"v_lshrrev_b32 v{vT+3}, 5, v{vLane}")
    a(f"v_lshl_add_u32 v{vT+3}, v{vT+3}, 2, v{vT+8}")
    a(f"v_permlane16_swap_b32 v{vS+4}, v{vS+5}")
    a(f"v_add_f32 v{vS+4}, v{vS+4}, v{vS+5}")
    exec_n0()
    a(f"ds_write_b32 v{vT+3}, v{vS+4} offset:{XS}")
    a(f"ds_write_b128 v{vT+7}, {vr(vS,4)} offset:{XH}")
    exec_all()
    a(f"v_mov_b32 v{vT}, 0")
    a("s_waitcnt lgkmcnt(0)")
    a("s_barrier")
    a(f"ds_read_b128 {vr(vE,4)}, v{vT} offset:{XS}")
    a(f"ds_read_b128 {vr(vE+4,4)}, v{vT} offset:{XS+16}")
    for w in range(4):
        a(f"ds_read_b128 {vr(vF+4*w,4)}, v{vT+6} offset:{XH + 64*w}")
    a("s_waitcnt lgkmcnt(4)")
    a(f"v_pk_add_f32 {vr(vE,2)}, {vr(vE,2)}, {vr(vE+2,2)}")
    a(f"v_pk_add_f32 {vr(vE+4,2)}, {vr(vE+4,2)}, {vr(vE+6,2)}")
    a(f"v_pk_add_f32 {vr(vE,2)}, {vr(vE,2)}, {vr(vE+4,2)}")
    a(f"v_mul_f32 v{vMean}, {R640:#x}, v{vE}")
    a(f"v_mul_f32 v{vVar}, {R640:#x}, v{vE+1}")
    a(f"v_fma_f32 v{vVar}, -v{vMean}, v{vMean}, v{vVar}")
    a(f"v_max_f32 v{vVar}, 0, v{vVar}")
    a(f"v_cvt_pk_bf16_f32 v{vT+3}, v{vMean}, v{vVar}")
    unpack(vT + 3, vMean, vVar)
    a(f"v_add_f32 v{vVar}, {EPS:#x}, v{vVar}")
    round_bf16(vVar, vT + 3)
    a(f"v_sqrt_f32 v{vVar}, v{vVar}")
    a("s_waitcnt lgkmcnt(0)")
    pk_sum4(vF)
    round_bf16(vVar, vT + 3)
    a(f"v_rcp_f32 v{vRcp}, v{vVar}")
    for r in (0, 2):
        a(f"v_pk_fma_f32 {vr(vF+r,2)}, {vr(vMean,2)}, {vr(vCs+r,2)}, {vr(vF+r,2)} op_sel_hi:[0,1,1] neg_lo:[1,0,0] neg_hi:[1,0,0]")
    pk_scale(vF, vRcp, vF, True)
    for r in range(4):
        a(f"v_max_f32 v{vF+r}, 0, v{vF+r}")
    a(f"v_cvt_pk_bf16_f32 v{vF+4}, v{vF}, v{vF+1}")
    a(f"v_cvt_pk_bf16_f32 v{vF+5}, v{vF+2}, v{vF+3}")
    c("tile t of w2 lands in result column n = t: operand is hidden where n == t, else 0")
    for u in range(5):
        for t in (2 * u, 2 * u + 1):
            a(f"v_and_b32 v{vQ+2*t}, v{vF+4}, v{vMk2+t}")
            a(f"v_and_b32 v{vQ+2*t+1}, v{vF+5}, v{vMk2+t}")
        if u:
            cc = "0" if u == 1 else vr(vS, 4)
            a(f"v_mfma_f32_16x16x32_bf16 {vr(vS,4)}, {vr(vW2+4*(u-1),4)}, {vr(vQ+4*(u-1),4)}, {cc}")
    nop(1)
    a(f"v_mfma_f32_16x16x32_bf16 {vr(vS,4)}, {vr(vW2+16,4)}, {vr(vQ+16,4)}, {vr(vS,4)}")
    a("s_mov_b32 exec_lo, 0x03ff03ff")
    a("s_mov_b32 exec_hi, 0x03ff03ff")
    nop(6)
    a(f"v_min_u32 v{vS}, 0xfffffffe, v{vS}")
    a(f"buffer_store_dwordx4 {vr(vS,4)}, v{vT+9}, {sr(rWS,4)}, s{sT0} offen sc1")
    exec_all()
    c("---------------- final reduction: workgroups with e = 3m + (r-20) < 20, r < 23 ----------------")
    a(f"s_cmp_ge_u32 s{sR}, 23")
    a("s_cbranch_scc1 L_fin")
    a(f"s_mul_i32 s{sF}, s{sM}, 3")
    a(f"s_add_u32 s{sF}, s{sF}, s{sR}")
    a(f"s_sub_u32 s{sF}, s{sF}, 20")
    a(f"s_cmp_ge_u32 s{sF}, 20")
    a("s_cbranch_scc1 L_fin")
    a(f"v_lshrrev_b32 v{vT}, 3, v{vLane}")
    a(f"v_mul_u32_u24 v{vT}, 2560, v{vT}")
    a(f"v_and_b32 v{vT+1}, 7, v{vLane}")
    a(f"v_lshl_add_u32 v{vT}, v{vT+1}, 4, v{vT}")
    a(f"s_mul_i32 s{sT1}, s{sW}, {24*2560}")
    a(f"s_lshl_b32 s{sT2}, s{sF}, 7")
    a(f"s_add_u32 s{sT1}, s{sT1}, s{sT2}")
    a(f"s_add_u32 s{sT1}, s{sT1}, {FP}")
    a(f"s_add_u32 s{sT2}, s{sT1}, {8*2560}")
    a(f"s_add_u32 s{sT3}, s{sT1}, {16*2560}")
    srd(rOUT, pOUT, 1280)
    a(f"v_lshrrev_b32 v{vT+2}, 1, v{vG}")
    a(f"v_and_b32 v{vT+3}, 1, v{vG}")
    a(f"v_lshl_add_u32 v{vT+2}, v{vT+3}, 1, v{vT+2}")
    a(f"v_lshl_add_u32 v{vT+2}, v{vT+1}, 2, v{vT+2}")
    a(f"s_lshl_b32 s{sT0}, s{sW}, 7")
    a(f"v_lshl_add_u32 v{vT+2}, v{vT+2}, 2, s{sT0}")
    a(f"v_lshlrev_b32 v{vT+3}, 2, v{vLane}")
    a(f"s_lshl_b32 s{sT0}, s{sF}, 6")
    a(f"v_lshl_add_u32 v{vT+4}, v{vLane}, 1, s{sT0}")
    a(f"ds_read_u16 v{vE}, v{vT+4} offset:{HV}")

    def cloads():
        for k, so in enumerate((sT1, sT2, sT3)):
            a(f"buffer_load_dwordx4 {vr(vF+4*k,4)}, v{vT}, {sr(rWS,4)}, s{so} offen sc1")
    stamp("fpub")
    poll(cloads, [vF, vF + 4, vF + 8], vT + 5)
    stamp("hopC")
    for r in (0, 2):
        a(f"v_pk_add_f32 {vr(vF+r,2)}, {vr(vF+r,2)}, {vr(vF+4+r,2)}")
    for r in (0, 2):
        a(f"v_pk_add_f32 {vr(vF+r,2)}, {vr(vF+r,2)}, {vr(vF+8+r,2)}")
    nop(1)
    a(f"v_permlane32_swap_b32 v{vF}, v{vF+1}")
    a(f"v_permlane32_swap_b32 v{vF+2}, v{vF+3}")
    a(f"v_add_f32 v{vF}, v{vF}, v{vF+1}")
    a(f"v_add_f32 v{vF+2}, v{vF+2}, v{vF+3}")
    nop(2)
    a(f"v_permlane16_swap_b32 v{vF}, v{vF+2}")
    a(f"v_add_f32 v{vF}, v{vF}, v{vF+2}")
    nop(2)
    a(f"v_add_f32_dpp v{vF}, v{vF}, v{vF} row_ror:8 row_mask:0xf bank_mask:0xf")
    a(f"ds_write_b32 v{vT+2}, v{vF} offset:{XF}")
    exec_first(32)
    a("s_waitcnt lgkmcnt(0)")
    a("s_barrier")
    a(f"s_cmp_lg_u32 s{sW}, 0")
    a("s_cbranch_scc1 L_fin")
    for w in range(4):
        a(f"ds_read_b32 v{vF+w}, v{vT+3} offset:{XF + 128*w}")
    a(f"v_lshlrev_b32 v{vE}, 16, v{vE}")
    a("s_waitcnt lgkmcnt(0)")
    a(f"v_pk_add_f32 {vr(vF,2)}, {vr(vF,2)}, {vr(vF+2,2)}")
    a(f"v_add_f32 v{vF}, v{vF}, v{vF+1}")
    round_bf16(vF, vF + 1)
    a(f"v_add_f32 v{vF}, v{vF}, v{vE}")
    if perturb:
        a(f"s_cmp_eq_u32 s{sF}, 0")
        a(f"s_cselect_b32 s{sT0}, {perturb:#x}, 0")
        a(f"v_add_f32 v{vF}, s{sT0}, v{vF}")
    a(f"v_cvt_pk_bf16_f32 v{vF}, v{vF}, v{vF}")
    a(f"buffer_store_short v{vF}, v{vT+4}, {sr(rOUT,4)}, 0 offen")
    exec_all()
    if dbgspan:
        a(f"s_cmp_lg_u32 s{sF}, 0")
        a("s_cbranch_scc1 L_fin")
        a("s_waitcnt vmcnt(0)")
        a("s_memrealtime s[96:97]")
        srd(rDBG, pDBG, 256)
        for k in range(16):
            a(f"s_mov_b32 s{sT0}, {ST + 1024*k}")
            a(f"buffer_load_dwordx4 {vr(vACC+4*(k%12) if k < 12 else vF + 4*(k-12),4)}, v{vDMA}, {sr(rWS,4)}, s{sT0} offen sc1")
        a("s_waitcnt vmcnt(0) lgkmcnt(0)")
        regs = [vACC + 4*k for k in range(12)] + [vF + 4*k for k in range(4)]
        a(f"v_mov_b32 v{vE}, v{regs[0]}")
        a(f"v_mov_b32 v{vE+1}, v{regs[0]}")
        a(f"v_mov_b32 v{vE+2}, v{regs[0]+1}")
        a(f"v_mov_b32 v{vE+3}, v{regs[0]+2}")
        a(f"v_mov_b32 v{vE+4}, v{regs[0]+2}")
        for r in regs[1:]:
            a(f"v_min_u32 v{vE}, v{vE}, v{r}")
            a(f"v_max_u32 v{vE+1}, v{vE+1}, v{r}")
            a(f"v_max_u32 v{vE+2}, v{vE+2}, v{r+1}")
            a(f"v_min_u32 v{vE+3}, v{vE+3}, v{r+2}")
            a(f"v_max_u32 v{vE+4}, v{vE+4}, v{r+2}")
        allreduce("v_min_u32", [vE, vE+3], [vT, vT+1])
        allreduce("v_max_u32", [vE+1, vE+2, vE+4], [vT, vT+1, vT+2])
        a(f"v_mov_b32 v{vE+5}, s96")
        for k in range(1, 6):
            a(f"v_sub_u32 v{vE+k}, v{vE+k}, v{vE}")
        exec_first(1)
        a(f"buffer_store_dwordx4 {vr(vE+2,4)}, v{vDMA}, {sr(rDBG,4)}, 0 offen")
        a(f"buffer_store_dword v{vE+1}, v{vDMA}, {sr(rDBG,4)}, 0 offen offset:16")
        exec_all()
    lab("L_fin")
    if diag:
        exec_all()
        a("s_waitcnt vmcnt(0)")
        stamp("end")
        a("s_getreg_b32 s3, hwreg(HW_REG_XCC_ID)")
        a(f"v_writelane_b32 v{vSt}, s3, 30")
        a(f"v_writelane_b32 v{vSt}, s{sCnt}, 31")
        a(f"s_lshl_b32 s{sT0}, s2, 2")
        a(f"s_add_u32 s{sT0}, s{sT0}, s{sW}")
        a(f"s_lshl_b32 s{sT0}, s{sT0}, 7")
        a(f"s_add_u32 s{sT0}, s{sT0}, {ST}")
        a(f"v_lshlrev_b32 v{vT+1}, 2, v{vLane}")
        exec_first(32)
        a(f"buffer_store_dword v{vSt}, v{vT+1}, {sr(rWS,4)}, s{sT0} offen")
    lab("L_end")
    a("s_endpgm")

    out = [HEADER + f"; @launch grid=(256,1,1) block=(256,1,1) lds={LDS_BYTES}",
           '.amdgcn_target "amdgcn-amd-amdhsa--gfx950"', ".text", f".globl {name}", ".p2align 8",
           f".type {name},@function", f"{name}:"]
    out += g.L
    out += ['.section .rodata,"a"', ".p2align 6", f".amdhsa_kernel {name}",
            f"  .amdhsa_next_free_vgpr {NV}", "  .amdhsa_next_free_sgpr 102", f"  .amdhsa_accum_offset {NV}",
            "  .amdhsa_group_segment_fixed_size 0", "  .amdhsa_kernarg_size 88", "  .amdhsa_user_sgpr_count 2",
            "  .amdhsa_user_sgpr_kernarg_segment_ptr 1", "  .amdhsa_system_sgpr_workgroup_id_x 1",
            "  .amdhsa_float_denorm_mode_32 3",
            ".end_amdhsa_kernel"]
    return "\n".join(out) + "\n"


if __name__ == "__main__":
    kw = json.loads(sys.argv[1]) if len(sys.argv) > 1 else {}
    sys.stdout.write(gen(**kw))
```

```python
import sys, json

KNAME = "sequential_preLN__mha_block_cached__dense_activation_relu__decode_kernel"

HEADER = """; Kernarg layout for this problem (88 bytes, ptrs only, base s[0:1]):
"""

QP = 0x180000
OP = 0x040000
YP = 0x080000
FP = 0x090000
CT = 0x0D0000
ST = 0x100000
WS_REC = 0x200000

QV = 0x000
NV_ = 0x180
XO = 0x200
XOS = 0x700
OV = 0x1E00
XY = 0x2600
HV = 0x2800
XN = HV
XS = 0x2D00
XH = 0x2D40
XC = 0x2E40
XF = 0x2F40
WGT = 0x3200
RING = 0xF200
LDS_BYTES = RING + 0x18000

SCALE = 0x3d93cd3a
LOG2E = 0x3fb8aa3b
EPS = 0x3727c5ac
R640 = 0x3acccccd
R160 = 0x3bcccccd
HEAD_BYTES = 12582912
CB = 12288


class G:
    def __init__(self):
        self.L = []
        self.nlabel = 0

    def a(self, s):
        self.L.append("  " + s)

    def lab(self, s):
        self.L.append(s + ":")

    def c(self, s):
        self.L.append("  ; " + s)

    def newlab(self, p):
        self.nlabel += 1
        return f"L_{p}{self.nlabel}"

    def nop(self, n):
        while n > 0:
            k = min(n, 16)
            self.a(f"s_nop {k-1}")
            n -= k


def vr(b, n=1):
    return f"v{b}" if n == 1 else f"v[{b}:{b+n-1}]"


def sr(b, n=1):
    return f"s{b}" if n == 1 else f"s[{b}:{b+n-1}]"


def gen(name=KNAME, kvflags="nt", wflags="nt", qflags="nt", sched=(24,4,2,1,1), hstag=3, rot=1, aflags='sc0 sc1', diag=0, bound=1 << 16,
        sleep=0, dbgspan=0, perturb=0, pace=8, k3=3, gdelay=0, fsleep=2, kpace=0, chk=8, cdelay=0, ndelay=0, noclr=0, now=0, nocomp=0, tkpos=1, wpace=8, probe=0, early_setup=1, v3early=1, wat=3, watf=3, wo_pre=9, w1_pre=3, w2_pre=0, swz=1, phased=1, qrot=1, stoplast=0, reord=1, noq=0, nowq=0, wbef=0, pubbar=1, hoist=1, bc=0, noqpub=0, fplin=0, qlin=1, w1flags=None):
    assert not dbgspan
    g = G()
    a, lab, c, nop = g.a, g.lab, g.c, g.nop
    pX, pK, pV, pWQ, pWO, pW1, pW2, pOUT, pDBG, pWS = 4, 6, 8, 10, 12, 16, 18, 20, 22, 24
    rK, rV, rWS, rWQ, rX, rDBG, rWA, rWB, rOUT = 28, 32, 36, 40, 44, 48, 52, 56, 60
    sW, sH, sM, sR, sRow, sRole, sF = 64, 65, 66, 67, 68, 69, 70
    sT0, sT1, sT2, sT3 = 71, 72, 73, 74
    sMK, sMV = 75, 78
    sOff, sCnt, sBound, sChunk = 81, 82, 83, 84
    sEx = 86
    sLog, sSc = 88, 89
    sStamp = 90
    sTm = 100
    vLane, vDMA, vKA, vVA, vG, vT = 1, 2, 3, 4, 5, 6
    vML, vL, vTk, vCa = 16, 17, 18, 19
    vXF = 20
    vS = 24
    vP = 32
    vE = 36
    vQ = 44
    vF = 68
    vACC = 116
    vU = 164
    vWF = 212
    vD3, vKA2, vVA4 = 196, 200, 204
    NV = 216

    vSt = 22
    global STAMPS
    STAMPS = []

    def stamp(nm):
        if not diag or (diag == 2 and nm not in ("stream", "end")):
            return
        if nm not in STAMPS:
            STAMPS.append(nm)
        i = STAMPS.index(nm)
        assert i < 30
        a(f"s_memrealtime {sr(sTm,2)}")
        a("s_waitcnt lgkmcnt(0)")
        a(f"v_writelane_b32 v{vSt}, s{sTm}, {i}")

    def srd(d, p, n, addlo=None):
        if addlo is None:
            a(f"s_mov_b32 s{d}, s{p}")
            a(f"s_and_b32 s{d+1}, s{p+1}, 0xffff")
        else:
            a(f"s_add_u32 s{d}, s{p}, s{addlo}")
            a(f"s_addc_u32 s{d+1}, s{p+1}, 0")
            a(f"s_and_b32 s{d+1}, s{d+1}, 0xffff")
        a(f"s_mov_b32 s{d+2}, {n}")
        a(f"s_mov_b32 s{d+3}, 0x20000")

    def exec_first(n):
        a(f"s_bfm_b64 exec, {n}, 0")

    def exec_all():
        a("s_mov_b64 exec, -1")

    def exec_n0():
        a("s_mov_b32 exec_lo, 0x00010001")
        a("s_mov_b32 exec_hi, 0x00010001")

    def allreduce(op, regs, tmps):
        pad = max(0, 2 - (len(regs) - 1))
        nop(2)
        for rr in (8, 4, 2, 1):
            for r in regs:
                a(f"{op}_dpp v{r}, v{r}, v{r} row_ror:{rr} row_mask:0xf bank_mask:0xf")
            nop(pad)
        xgroup(op, regs, tmps)

    def xgroup(op, regs, tmps):
        for sw in ("v_permlane16_swap_b32", "v_permlane32_swap_b32"):
            for r, t in zip(regs, tmps):
                a(f"v_mov_b32 v{t}, v{r}")
            nop(2)
            for r, t in zip(regs, tmps):
                a(f"{sw} v{r}, v{t}")
            for r, t in zip(regs, tmps):
                a(f"{op} v{r}, v{r}, v{t}")

    def unpack(src, lo, hi):
        a(f"v_lshlrev_b32 v{lo}, 16, v{src}")
        a(f"v_and_b32 v{hi}, 0xffff0000, v{src}")

    def round_bf16(r, t):
        a(f"v_cvt_pk_bf16_f32 v{t}, v{r}, v{r}")
        a(f"v_and_b32 v{r}, 0xffff0000, v{t}")

    def ln_finish(vMean, vVar, vRcp, t):
        round_bf16(vMean, t)
        round_bf16(vVar, t)
        a(f"v_add_f32 v{vVar}, {EPS:#x}, v{vVar}")
        round_bf16(vVar, t)
        a(f"v_sqrt_f32 v{vVar}, v{vVar}")
        nop(1)
        round_bf16(vVar, t)
        a(f"v_rcp_f32 v{vRcp}, v{vVar}")
        nop(1)

    def normalise_pair(src, dst, vMean, vDen, vRcp, t):
        unpack(src, t, t + 1)
        a(f"v_sub_f32 v{t}, v{t}, v{vMean}")
        a(f"v_sub_f32 v{t+1}, v{t+1}, v{vMean}")
        a(f"v_cvt_pk_bf16_f32 v{dst}, v{t}, v{t+1}")
        unpack(dst, t, t + 1)
        for k in (0, 1):
            a(f"v_mul_f32 v{t+2+k}, v{t+k}, v{vRcp}")
        for k in (0, 1):
            a(f"v_fma_f32 v{t+k}, -v{t+2+k}, v{vDen}, v{t+k}")
        for k in (0, 1):
            a(f"v_fma_f32 v{t+2+k}, v{t+k}, v{vRcp}, v{t+2+k}")
        a(f"v_cvt_pk_bf16_f32 v{dst}, v{t+2}, v{t+3}")

    def any_marker(regs, t):
        regs = list(regs)
        a(f"v_max3_u32 v{t}, v{regs[0]}, v{regs[1]}, v{regs[2]}")
        regs = regs[3:]
        while len(regs) >= 2:
            a(f"v_max3_u32 v{t}, v{t}, v{regs[0]}, v{regs[1]}")
            regs = regs[2:]
        if regs:
            a(f"v_max_u32 v{t}, v{t}, v{regs[0]}")
        a(f"v_cmp_eq_u32 vcc, -1, v{t}")

    def poll(loads, regs, t, pre_wait=0):
        top, done = g.newlab("poll"), g.newlab("got")
        a(f"s_mov_b32 s{sBound}, {bound}")
        lab(top)
        loads()
        a(f"s_sub_u32 s{sBound}, s{sBound}, 1")
        a("s_cbranch_scc1 L_end")
        a("s_waitcnt vmcnt(0)")
        any_marker(regs, t)
        if sleep:
            nop(1)
            a(f"s_cbranch_vccz {done}")
            a(f"s_sleep {sleep}")
            a(f"s_branch {top}")
        else:
            nop(1)
            a(f"s_cbranch_vccnz {top}")
        lab(done)

    def issue_chunk(r, m0base, groups=(0, 1, 2)):
        for j in groups:
            a(f"s_mov_b32 m0, s{m0base+j}")
            if j == 0:
                a(f"s_mov_b32 s{sT0}, s{sOff}")
            else:
                a(f"s_add_u32 s{sT0}, s{sOff}, {4096*j}")
            for k in range(4):
                vo = vD3 + (4 * j + k) % 3 if swz else vDMA
                a(f"buffer_load_dwordx4 v{vo}, {sr(r,4)}, s{sT0} offen offset:{1024*k} {kvflags} lds")

    c("---------------- entry ----------------")
    a("s_cmp_ge_u32 s2, 256")
    a("s_cbranch_scc1 L_end")
    if diag:
        a(f"s_memrealtime {sr(sTm,2)}")
    if dbgspan:
        a("s_memrealtime s[96:97]")
    sNon = 26
    a(f"s_memrealtime {sr(sNon,2)}")
    a("s_load_dwordx16 s[4:19], s[0:1], 0")
    a("s_load_dwordx4 s[20:23], s[0:1], 64")
    a("s_load_dwordx2 s[24:25], s[0:1], 80")
    a(f"v_lshrrev_b32 v{vT}, 6, v0")
    a(f"v_and_b32 v{vLane}, 63, v0")
    a(f"v_readfirstlane_b32 s{sW}, v{vT}")
    a(f"v_lshlrev_b32 v{vDMA}, 4, v{vLane}")
    a(f"v_lshrrev_b32 v{vG}, 4, v{vLane}")
    a(f"s_and_b32 s{sM}, s2, 7")
    a(f"s_lshr_b32 s{sR}, s2, 3")
    a(f"s_mul_i32 s{sT0}, s{sM}, {rot}")
    a(f"s_add_u32 s{sH}, s{sR}, s{sT0}")
    a(f"s_and_b32 s{sH}, s{sH}, 31")
    a(f"s_lshl_b32 s{sRow}, s{sH}, 3")
    a(f"s_add_u32 s{sRow}, s{sRow}, s{sM}")
    a(f"s_mul_i32 s{sF}, s{sM}, 12")
    a(f"s_add_u32 s{sF}, s{sF}, s{sR}")
    a(f"s_sub_u32 s{sF}, s{sF}, 20")
    a(f"s_mul_i32 s{sT0}, s{sW}, {2*CB}")
    for j in range(3):
        a(f"s_add_u32 s{sMK+j}, s{sT0}, {RING + 4096*j}")
        a(f"s_add_u32 s{sMV+j}, s{sT0}, {RING + CB + 4096*j}")
    vN = 23
    a(f"v_and_b32 v{vN}, 15, v{vLane}")
    a(f"v_mul_u32_u24 v{vT}, 384, v{vN}")
    a(f"v_lshl_add_u32 v{vT}, v{vG}, 4, v{vT}")
    a(f"v_add_u32 v{vKA}, s{sMK}, v{vT}")
    if swz:
        a(f"v_lshlrev_b32 v{vT+1}, 4, v{vN}")
        a(f"v_and_b32 v{vT+1}, 0x60, v{vT+1}")
        a(f"v_xor_b32 v{vKA2}, v{vKA}, v{vT+1}")
        a(f"v_xor_b32 v{vKA2+1}, 64, v{vKA2}")
    vTR0, vTR1 = vU + 5, vU + 6
    a(f"v_lshrrev_b32 v{vTR0}, 2, v{vLane}")
    a(f"v_and_b32 v{vTR1}, 3, v{vLane}")
    a(f"v_lshlrev_b32 v{vTR1}, 3, v{vTR1}")
    a(f"v_mul_u32_u24 v{vT}, 384, v{vTR0}")
    a(f"v_add_u32 v{vT}, v{vT}, v{vTR1}")
    a(f"v_add_u32 v{vVA}, s{sMK}, v{vT}")
    if swz:
        a(f"v_lshlrev_b32 v{vT+1}, 4, v{vTR0}")
        a(f"v_and_b32 v{vT+1}, 0x60, v{vT+1}")
        a(f"v_xor_b32 v{vVA4}, v{vVA}, v{vT+1}")
        for k in range(1, 4):
            a(f"v_xor_b32 v{vVA4+k}, {32*k}, v{vVA4}")
    vWA = vU + 7
    a(f"s_lshl_b32 s{sT0}, s{sW}, 7")
    a(f"s_add_u32 s{sT0}, s{sT0}, {WGT}")
    a(f"v_add_u32 v{vWA}, s{sT0}, v{vT}")
    assert sum(sched) == 32 and len(sched) <= 9 and pace <= 8
    sRnd, sLeft, sJW, sHs = 84, 85, 90, 91
    sTabS, sTabN = 92, 94
    acc_, ts_, tn_ = sched[0], 0, 0
    for i_, n_ in enumerate(sched[1:]):
        ts_ |= acc_ << (8 * i_); tn_ |= n_ << (8 * i_); acc_ += n_
    nblk = len(sched) - 1
    a(f"s_mul_i32 s{sHs}, s{sH}, {hstag}")
    sQ = 3
    if qrot:
        a(f"s_add_u32 s{sQ}, s{sW}, s{sM}")
        a(f"s_and_b32 s{sQ}, s{sQ}, 3")
    else:
        a(f"s_mov_b32 s{sQ}, s{sW}")
    a(f"s_lshl_b32 s{sJW}, s{sM}, 2")
    a(f"s_add_u32 s{sJW}, s{sJW}, s{sQ}")
    a(f"s_mul_i32 s{sJW}, s{sJW}, {CB}")
    a(f"s_mov_b32 s{sRnd}, 0")
    a(f"s_mov_b32 s{sLeft}, {sched[0]}")

    def next_off():
        a(f"s_add_u32 s{sOff}, s{sRnd}, s{sHs}")
        a(f"s_and_b32 s{sOff}, s{sOff}, 31")
        a(f"s_mul_i32 s{sOff}, s{sOff}, {32*CB}")
        a(f"s_add_u32 s{sOff}, s{sOff}, s{sJW}")
        a(f"s_add_u32 s{sRnd}, s{sRnd}, 1")
        a(f"s_sub_u32 s{sLeft}, s{sLeft}, 1")
    next_off()
    vWQ = vU
    for b in range(3):
        a(f"v_add_u32 v{vT}, {64*b}, v{vLane}")
        a(f"v_mul_u32_u24 v{vT}, 2731, v{vT}")
        a(f"v_lshrrev_b32 v{vT}, 16, v{vT}")
        if swz:
            a(f"v_lshlrev_b32 v{vT+1}, 4, v{vT}")
            a(f"v_and_b32 v{vT+1}, 0x60, v{vT+1}")
            a(f"v_xor_b32 v{vD3+b}, v{vT+1}, v{vDMA}")
        a(f"v_mul_u32_u24 v{vT}, 11904, v{vT}")
        a(f"v_add_u32 v{vWQ+b}, v{vT}, v{vDMA}")
    vXA = vU + 3
    a(f"v_lshlrev_b32 v{vXA}, 2, v{vLane}")
    a(f"s_lshl_b32 s{sRow}, s{sRow}, 10")
    a(f"s_mul_i32 s{sT1}, s{sH}, {HEAD_BYTES}")
    a(f"s_mul_i32 s{sT0}, s{sM}, {80*12288}")
    a(f"s_mul_i32 s{sT2}, s{sH}, 384")
    a(f"s_add_u32 s{sT2}, s{sT0}, s{sT2}")
    a(f"s_mul_i32 s{sT3}, s{sM}, 160")
    a("s_waitcnt lgkmcnt(0)")
    if diag:
        a(f"v_mov_b32 v{vSt}, 0")
        a(f"v_writelane_b32 v{vSt}, s{sTm}, 0")
        STAMPS.append("entry")
    stamp("karg")
    srd(rX, pX, 1280)
    srd(rWS, pWS, WS_REC)
    a(f"s_cmp_eq_u32 s{sW}, 3")
    a("s_cbranch_scc1 L_comm")

    def w_loads_wo(rng):
        if not len(rng):
            return
        srd(rWA, pWO, 6144 * 1280)
        a(f"v_mul_u32_u24 v{vT+1}, 1280, v{vTR0}")
        a(f"v_lshl_add_u32 v{vT+1}, v{vTR1}, 1, v{vT+1}")
        a(f"s_lshl_b32 s{sT0}, s{sM}, 2")
        a(f"s_add_u32 s{sT0}, s{sT0}, s{sW}")
        a(f"s_mul_i32 s{sT0}, s{sT0}, {192*1280}")
        a(f"s_lshl_b32 s{sT1}, s{sR}, 6")
        a(f"s_add_u32 s{sT0}, s{sT0}, s{sT1}")
        a(f"s_mul_i32 s{sT2}, s{sW}, 12288")
        for i in rng:
            a(f"s_add_u32 m0, s{sT2}, {WGT + 1024*i}")
            a(f"s_add_u32 s{sT1}, s{sT0}, {20480*i}")
            a(f"buffer_load_dwordx4 v{vT+1}, {sr(rWA,4)}, s{sT1} offen {wflags} lds")

    def w_loads_ffn(r1, r2):
        if not len(r1) and not len(r2):
            return
        srd(rWA, pW1, 640 * 3072)
        srd(rWB, pW2, 1536 * 1280)
        a(f"v_lshrrev_b32 v{vT+1}, 1, v{vLane}")
        a(f"v_mul_u32_u24 v{vT+1}, 3072, v{vT+1}")
        a(f"v_and_b32 v{vT+2}, 1, v{vLane}")
        a(f"v_lshl_add_u32 v{vT+1}, v{vT+2}, 4, v{vT+1}")
        a(f"s_mul_i32 s{sT0}, s{sW}, {160*3072}")
        a(f"s_lshl_b32 s{sT1}, s{sF}, 5")
        a(f"s_add_u32 s{sT0}, s{sT0}, s{sT1}")
        a(f"s_mul_i32 s{sT2}, s{sW}, 5120")
        for i in r1:
            a(f"s_add_u32 m0, s{sT2}, {WGT + 1024*i}")
            a(f"s_add_u32 s{sT1}, s{sT0}, {32*3072*i}")
            a(f"buffer_load_dwordx4 v{vT+1}, {sr(rWA,4)}, s{sT1} offen {wflags if w1flags is None else w1flags} lds")
        a(f"s_mul_i32 s{sT0}, s{sF}, 20480")
        a(f"s_add_u32 s{sT0}, s{sT0}, s{sT2}")
        for i in r2:
            a(f"s_add_u32 m0, s{sT2}, {WGT + 20480 + 1024*i}")
            a(f"s_add_u32 s{sT1}, s{sT0}, {1024*i}")
            a(f"buffer_load_dwordx4 v{vDMA}, {sr(rWB,4)}, s{sT1} offen {qflags} lds")

    def w_loads_at(pos, lo=0, hi=99):
        if pos and wat != pos and watf != pos:
            return
        l1, l2 = g.newlab("wf"), g.newlab("wd")
        a(f"s_cmp_ge_u32 s{sR}, 20")
        a(f"s_cbranch_scc1 {l1}")
        if pos == 0:
            w_loads_wo(range(wo_pre)[lo:hi])
        elif wat == pos:
            w_loads_wo(range(wo_pre, 12))
        a(f"s_branch {l2}")
        lab(l1)
        if pos == 0:
            w_loads_ffn(range(w1_pre)[lo:hi], range(w2_pre)[lo:hi])
        elif watf == pos:
            w_loads_ffn(range(w1_pre, 5), range(w2_pre, 5))
        lab(l2)

    def stream_setup():
        a(f"s_mov_b32 s{sTabS}, {ts_ & 0xffffffff:#x}")
        a(f"s_mov_b32 s{sTabS+1}, {ts_ >> 32:#x}")
        a(f"s_mov_b32 s{sTabN}, {tn_ & 0xffffffff:#x}")
        a(f"s_mov_b32 s{sTabN+1}, {tn_ >> 32:#x}")
        a(f"s_lshl_b32 s{sT0}, s{sH}, 2")
        a(f"s_add_u32 s{sT0}, s{sT0}, s{sQ}")
        a(f"s_lshl_b32 s{sT0}, s{sT0}, 8")
        a(f"s_add_u32 s{sT0}, s{sT0}, {CT}")
        a(f"s_mov_b32 s97, s{sT0}")
        assert 2 <= chk < sched[0]
        a(f"s_cmp_eq_u32 s{sW}, 3")
        a(f"s_cselect_b32 s98, {chk}, 63")
        a(f"s_mov_b32 s{sLog}, {LOG2E:#x}")
        a(f"s_mov_b32 s{sSc}, {SCALE:#x}")
        c("x columns 160w + 4*lane for the FFN role (lanes < 40; the others read zeros past the end or unused values)")
        a(f"s_mul_i32 s{sT0}, s{sW}, 320")
        if bc:
            a(f"v_lshlrev_b32 v{vT+1}, 3, v{vG}")
            a(f"v_lshl_add_u32 v{vT+1}, v{vN}, 5, v{vT+1}")
        else:
            a(f"v_lshlrev_b32 v{vT+1}, 3, v{vLane}")
        a(f"buffer_load_dwordx2 {vr(vXF,2)}, v{vT+1}, {sr(rX,4)}, s{sT0} offen")
        c("---------------- streaming state ----------------")
        a(f"v_mov_b32 v{vML}, 0xff800000")
        a(f"v_mov_b32 v{vL}, 0")
        for r in range(48):
            a(f"v_mov_b32 v{vACC+r}, 0")
        a(f"s_mov_b32 s{sCnt}, 0")

    c("================ waves 0..2: q partial of this member's 80 rows ================")
    srd(rWQ, pWQ, 0 if nowq else 79 * 12288 + 384, addlo=sT2)
    vXS = vU + 8
    vXC = vU + 13
    for i in range(5):
        a(f"buffer_load_dword v{vXS+i}, v{vXA}, {sr(rX,4)}, 0 offen offset:{256*i}")
    a(f"buffer_load_dword v{vXC}, v{vXA}, {sr(rX,4)}, s{sT3} offen")

    def wq_group(sidx):
        a(f"s_mul_i32 s{sT0}, s{sidx}, 3072")
        a(f"s_add_u32 m0, s{sT0}, {WGT}")
        a(f"s_mul_i32 s{sT0}, s{sidx}, {8*12288}")
        for b in range(3):
            a(f"buffer_load_dwordx4 v{vWQ+b}, {sr(rWQ,4)}, s{sT0} offen offset:{1024*b} {qflags} lds")
    a(f"s_mov_b32 s{sT2}, s{sW}")
    for k in range(3):
        wq_group(sT2)
        a(f"s_add_u32 s{sT2}, s{sT2}, 3")
    a(f"s_cmp_lg_u32 s{sW}, 0")
    a("s_cbranch_scc1 L_wq_done")
    wq_group(sT2)
    lab("L_wq_done")
    srd(rK, pK, HEAD_BYTES, addlo=sT1)
    issue_chunk(rK, sMK, (0,))
    srd(rV, pV, HEAD_BYTES, addlo=sT1)
    stamp("wqiss")
    vMk = vU + 14
    for t in range(4):
        a(f"v_cmp_eq_u32 vcc, {4*t if qlin else t}, v{vN}")
        nop(2)
        a(f"v_cndmask_b32 v{vMk+t}, 0, -1, vcc")
    a(f"s_lshl_b32 s{sT0}, s{sW}, 8")
    a(f"s_add_u32 s{sT0}, s{sT0}, {XN}")
    a(f"v_add_u32 v{vXA}, s{sT0}, v{vXA}")
    a(f"v_lshl_add_u32 v{vXA+1}, v{vG}, 3, s{sT0}")
    a("s_waitcnt vmcnt(13)")
    stamp("xland")
    vA0 = vE
    for i in range(5):
        unpack(vXS + i, vA0 + 2 * i, vA0 + 2 * i + 1)
    vMean, vVar, vRcp = vT, vT + 1, vT + 2
    for i in (0, 2):
        a(f"v_pk_add_f32 {vr(vS+i,2)}, {vr(vA0+2*i,2)}, {vr(vA0+2*i+2,2)}")
    a(f"v_pk_add_f32 {vr(vS,2)}, {vr(vS,2)}, {vr(vS+2,2)}")
    a(f"v_pk_add_f32 {vr(vS,2)}, {vr(vS,2)}, {vr(vA0+8,2)}")
    a(f"v_add_f32 v{vMean}, v{vS}, v{vS+1}")
    allreduce("v_add_f32", [vMean], [vT + 3])
    a(f"v_mul_f32 v{vMean}, {R640:#x}, v{vMean}")
    for i in range(10):
        a(f"v_sub_f32 v{vA0+i}, v{vA0+i}, v{vMean}")
    a(f"v_pk_mul_f32 {vr(vS,2)}, {vr(vA0,2)}, {vr(vA0,2)}")
    for i in range(1, 5):
        a(f"v_pk_fma_f32 {vr(vS,2)}, {vr(vA0+2*i,2)}, {vr(vA0+2*i,2)}, {vr(vS,2)}")
    a(f"v_add_f32 v{vVar}, v{vS}, v{vS+1}")
    allreduce("v_add_f32", [vVar], [vT + 3])
    a(f"v_mul_f32 v{vVar}, {R640:#x}, v{vVar}")
    ln_finish(vMean, vVar, vRcp, vT + 3)
    normalise_pair(vXC, vXC, vMean, vVar, vRcp, vT + 4)
    a(f"ds_write_b32 v{vXA}, v{vXC}")
    a("s_waitcnt lgkmcnt(0)")
    for b in range(5):
        a(f"ds_read_b64 {vr(vA0+2*b,2)}, v{vXA+1} offset:{32*b}")
    vB = vACC
    a("s_waitcnt lgkmcnt(0)")
    for t in range(4):
        for k in range(8):
            a(f"v_and_b32 v{vB+8*t+k}, v{vA0+k}, v{vMk+t}")
        for k in range(2):
            a(f"v_and_b32 v{vB+32+2*t+k}, v{vA0+8+k}, v{vMk+t}")
    a(f"s_lshl_b32 s{sT2}, s{sW}, 8")
    a(f"s_add_u32 s{sT2}, s{sT2}, s{sRow}")
    a(f"s_lshl_b32 s{sT2}, s{sT2}, 1")
    a(f"s_add_u32 s{sT2}, s{sT2}, {QP}")
    if qlin:
        a(f"v_lshlrev_b32 v{vT}, 3, v{vLane}")
    else:
        a(f"v_lshlrev_b32 v{vT}, 5, v{vG}")
        a(f"v_lshl_add_u32 v{vT}, v{vN}, 7, v{vT}")
    a(f"v_mov_b32 v{vT+1}, 0")
    stamp("ln")
    a("s_waitcnt vmcnt(4)")
    a("s_barrier")
    stamp("wq")
    rd = [(vF + 8 * t + 2 * b, b * 6144 + t * 32) for t in range(4) for b in range(4)]
    rd += [(vF + 32 + 2 * t, 4 * 6144 + t * 32) for t in range(4)]
    a(f"ds_read_b64 {vr(vS+6,2)}, v{vT+1} offset:{NV_}")
    for k in range(14):
        a(f"ds_read_b64_tr_b16 {vr(rd[k][0],2)}, v{vWA} offset:{rd[k][1]}")
    for k in range(10):
        left = min(20, 14 + 2 * k) - 2 * (k + 1)
        a(f"s_waitcnt lgkmcnt({left})")
        cc = "0" if k == 0 else vr(vS, 4)
        ops = (vr(vF + 4 * k, 4), vr(vB + 4 * k, 4))
        a(f"v_mfma_f32_16x16x32_bf16 {vr(vS,4)}, {ops[1 if qlin else 0]}, {ops[0 if qlin else 1]}, {cc}")
        for kk in (14 + 2 * k, 15 + 2 * k):
            if kk < 20:
                a(f"ds_read_b64_tr_b16 {vr(rd[kk][0],2)}, v{vWA} offset:{rd[kk][1]}")
    if qlin:
        nop(8)
        a(f"v_mov_b32 v{vS+1}, v{vS+6}")
        if not noqpub:
            a(f"buffer_store_dwordx2 {vr(vS,2)}, v{vT}, {sr(rWS,4)}, s{sT2} offen sc1")
    elif not noqpub:
        a("s_mov_b32 exec_lo, 0x000f000f")
        a("s_mov_b32 exec_hi, 0x000f000f")
        nop(6)
        a(f"v_mov_b32 v{vS+4}, v{vS+2}")
        a(f"v_mov_b32 v{vS+5}, v{vS+3}")
        a(f"v_mov_b32 v{vS+2}, v{vS+6}")
        a(f"v_mov_b32 v{vS+3}, v{vS+6}")
        a(f"buffer_store_dwordx4 {vr(vS,4)}, v{vT}, {sr(rWS,4)}, s{sT2} offen sc1")
        a(f"buffer_store_dwordx4 {vr(vS+4,4)}, v{vT}, {sr(rWS,4)}, s{sT2} offen offset:16 sc1")
        exec_all()
    stamp("qpub")
    issue_chunk(rK, sMK, (1,))
    a("s_barrier")
    if early_setup:
        stream_setup()
    if kpace:
        a(f"s_waitcnt vmcnt({kpace})")
    issue_chunk(rK, sMK, (2,))
    if phased:
        next_off()
    for j in range(3):
        a(f"s_waitcnt vmcnt({pace})")
        issue_chunk(rK if phased else rV, sMV, (j,))
    stamp("v0iss")
    if wbef:
        a(f"s_waitcnt vmcnt({pace})")
        w_loads_at(0, 0, wbef)
    stamp("wiss")
    if not early_setup:
        stream_setup()
    a("s_barrier")
    a("s_branch L_qready")

    c("================ wave 3: hand-off set-up and the gather of q ================")
    lab("L_comm")
    c("workgroup 0 draws this launch's nonce (the clock) into debug word 0")
    a("s_cmp_lg_u32 s2, 0")
    a("s_cbranch_scc1 L_no_nonce")
    a(f"s_max_u32 s{sNon}, s{sNon}, 1")
    a(f"s_mov_b32 s{sNon+1}, 0")
    a(f"s_atomic_cmpswap {sr(sNon,2)}, {sr(pDBG,2)}, 0x0")
    lab("L_no_nonce")
    c("members 0..3 reset one ticket counter of the head each")
    a(f"s_cmp_ge_u32 s{sM}, 4")
    a("s_cbranch_scc1 L_no_ct")
    a(f"s_lshl_b32 s{sT0}, s{sH}, 2")
    a(f"s_add_u32 s{sT0}, s{sT0}, s{sM}")
    a(f"s_lshl_b32 s{sT0}, s{sT0}, 8")
    a(f"s_add_u32 s98, s{sT0}, {CT}")
    a(f"s_mov_b32 s99, 0")
    a(f"s_atomic_swap s99, {sr(pWS,2)}, s98 glc")
    lab("L_no_ct")
    for k in range(4):
        a(f"v_mov_b32 v{vT+k}, -1")
    if cdelay:
        a(f"s_sleep {cdelay}")
    c("mark the slots this workgroup publishes in the tail as empty")
    if noclr:
        a("s_branch L_clr_done")
    exec_first(49)
    a(f"s_add_u32 s{sT0}, s{sRow}, {OP}")
    a(f"buffer_store_dwordx4 {vr(vT,4)}, v{vDMA}, {sr(rWS,4)}, s{sT0} offen sc1")
    a(f"s_cmp_ge_u32 s{sR}, 20")
    a("s_cbranch_scc1 L_clr_ffn")
    exec_first(8)
    a(f"s_mul_i32 s{sT0}, s{sM}, 2560")
    a(f"s_lshl_b32 s{sT2}, s{sR}, 7")
    a(f"s_add_u32 s{sT0}, s{sT0}, s{sT2}")
    a(f"s_add_u32 s{sT0}, s{sT0}, {YP}")
    a(f"buffer_store_dwordx4 {vr(vT,4)}, v{vDMA}, {sr(rWS,4)}, s{sT0} offen sc1")
    a("s_branch L_clr_ct")
    lab("L_clr_ffn")
    exec_all()
    a(f"s_mul_i32 s{sT0}, s{sF}, 2560")
    a(f"s_add_u32 s{sT0}, s{sT0}, {FP}")
    a(f"buffer_store_dwordx4 {vr(vT,4)}, v{vDMA}, {sr(rWS,4)}, s{sT0} offen sc1")
    a(f"buffer_store_dwordx4 {vr(vT,4)}, v{vDMA}, {sr(rWS,4)}, s{sT0} offen offset:1024 sc1")
    exec_first(32)
    a(f"buffer_store_dwordx4 {vr(vT,4)}, v{vDMA}, {sr(rWS,4)}, s{sT0} offen offset:2048 sc1")
    lab("L_clr_ct")
    lab("L_clr_done")
    exec_all()
    srd(rK, pK, HEAD_BYTES, addlo=sT1)
    issue_chunk(rK, sMK, (0, 1, 2)[:k3])
    srd(rV, pV, HEAD_BYTES, addlo=sT1)
    a(f"s_mov_b32 s{sBound}, {bound}")
    if ndelay:
        a(f"s_sleep {ndelay}")
    c("first look through the scalar cache (first touch in this launch), further looks by vector loads")
    a("s_waitcnt lgkmcnt(0)")
    a(f"s_load_dword s{sNon}, {sr(pDBG,2)}, 0x0")
    srd(rDBG, pDBG, 256)
    a(f"v_mov_b32 v{vT+6}, 0")
    a("s_waitcnt lgkmcnt(0)")
    lab("L_noncepoll")
    a(f"s_cmp_lg_u32 s{sNon}, 0")
    a("s_cbranch_scc1 L_nonce_ok")
    a(f"buffer_load_dword v{vT+4}, v{vT+6}, {sr(rDBG,4)}, 0 offen sc1")
    a(f"s_sub_u32 s{sBound}, s{sBound}, 1")
    a("s_waitcnt vmcnt(0)")
    a(f"v_readfirstlane_b32 s{sNon}, v{vT+4}")
    a(f"s_cmp_lg_u32 s{sBound}, 0")
    a("s_cbranch_scc1 L_noncepoll")
    a("s_branch L_end")
    lab("L_nonce_ok")
    stamp("nonce")
    a(f"v_mov_b32 v{vT+4}, s{sNon}")
    a(f"v_mov_b32 v{vT+5}, s{sNon}")
    a(f"v_mov_b32 v{vT+6}, 0")
    a(f"ds_write_b64 v{vT+6}, {vr(vT+4,2)} offset:{NV_}")
    a(f"s_lshl_b32 s{sT1}, s{sH}, 14")
    a(f"s_add_u32 s{sT1}, s{sT1}, {QP}")
    for k in range(1, 4):
        a(f"s_add_u32 s{sEx if k == 3 else sT1 + k}, s{sT1}, {4096*k}")
    qbase = [sT1, sT2, sT3, sEx]
    a(f"v_lshlrev_b32 v{vT+6}, 5, v{vLane}")
    a(f"s_waitcnt vmcnt({4*k3}) lgkmcnt(0)")
    stamp("flagst")
    a("s_barrier")
    stream_setup()
    a("s_barrier")
    if not qlin:
        exec_first(48)
    if gdelay:
        a(f"s_sleep {gdelay}")
    vG2 = vQ
    a(f"s_mov_b32 s{sBound}, {bound}")
    if noq:
        a("s_branch L_qgot")
    lab("L_qpoll")
    if qlin:
        for hh in range(2):
            if hh:
                exec_first(32)
            for m in range(8):
                a(f"buffer_load_dwordx4 {vr(vG2+8*m+4*hh,4)}, v{vDMA}, {sr(rWS,4)}, s{qbase[m//2]} offen offset:{2048*(m%2) + 1024*hh} sc1")
        a("s_waitcnt vmcnt(0)")
        a(f"v_mov_b32 v{vT}, 0")
        for hh in (1, 0):
            for m in range(8):
                for k in (1, 3):
                    a(f"v_bitop3_b32 v{vT}, v{vG2+8*m+4*hh+k}, v{vT+4}, v{vT} bitop3:0xbe")
            if hh:
                a("s_mov_b32 exec_lo, 0")
                a("s_mov_b32 exec_hi, -1")
                a(f"v_mov_b32 v{vT}, 0")
                exec_all()
    else:
        for m in range(8):
            for hh in range(2):
                a(f"buffer_load_dwordx3 {vr(vG2+8*m+4*hh,3)}, v{vT+6}, {sr(rWS,4)}, s{qbase[m//2]} offen offset:{2048*(m%2) + 16*hh} sc1")
        a("s_waitcnt vmcnt(0)")
        a(f"v_xor_b32 v{vT}, v{vG2+2}, v{vT+4}")
        for k in range(1, 16):
            a(f"v_bitop3_b32 v{vT}, v{vG2+4*k+2}, v{vT+4}, v{vT} bitop3:0xbe")
    a(f"v_cmp_ne_u32 vcc, 0, v{vT}")
    nop(1)
    a("s_cbranch_vccz L_qgot")
    a(f"s_sub_u32 s{sBound}, s{sBound}, 1")
    a(f"s_cmp_lg_u32 s{sBound}, 0")
    a("s_cbranch_scc1 L_qpoll")
    a("s_branch L_end")
    lab("L_qgot")
    stamp("qgot")
    if qlin:
        for m in range(1, 8):
            for k in (0, 2, 4, 6):
                a(f"v_add_f32 v{vG2+k}, v{vG2+k}, v{vG2+8*m+k}")
        a(f"v_cvt_pk_bf16_f32 v{vF}, v{vG2}, v{vG2+2}")
        a(f"v_cvt_pk_bf16_f32 v{vF+1}, v{vG2+4}, v{vG2+6}")
        a(f"v_lshlrev_b32 v{vT}, 2, v{vLane}")
        a(f"ds_write_b32 v{vT}, v{vF} offset:{QV}")
        exec_first(32)
        a(f"ds_write_b32 v{vT}, v{vF+1} offset:{QV + 256}")
    else:
        for m in range(1, 8):
            for hh in (0, 4):
                a(f"v_pk_add_f32 {vr(vG2+hh,2)}, {vr(vG2+hh,2)}, {vr(vG2+8*m+hh,2)}")
        a(f"v_cvt_pk_bf16_f32 v{vF}, v{vG2}, v{vG2+1}")
        a(f"v_cvt_pk_bf16_f32 v{vF+1}, v{vG2+4}, v{vG2+5}")
        a(f"v_lshlrev_b32 v{vT}, 3, v{vLane}")
        a(f"ds_write_b64 v{vT}, {vr(vF,2)} offset:{QV}")
    exec_all()
    c("all eight members have published q, so they have emptied their slots: member 0 counts the head in debug word 32")
    a(f"s_cmp_lg_u32 s{sM}, 0")
    a("s_cbranch_scc1 L_no_cnt")
    a(f"s_mov_b32 s99, 1")
    a(f"s_atomic_add s99, {sr(pDBG,2)}, 0x80")
    lab("L_no_cnt")
    assert k3 == 3
    if phased:
        next_off()
    if v3early:
        issue_chunk(rK if phased else rV, sMV)
    a("s_waitcnt lgkmcnt(0)")
    a("s_barrier")
    if not v3early:
        issue_chunk(rK if phased else rV, sMV)
    if wbef:
        w_loads_at(0, 0, wbef)

    lab("L_qready")
    w_loads_at(0, wbef)
    stamp("qbar")
    a(f"v_lshlrev_b32 v{vT}, 4, v{vG}")
    for j in range(6):
        a(f"ds_read_b128 {vr(vQ+4*j,4)}, v{vT} offset:{QV + 64*j}")
    stamp("qrdy")
    if dbgspan:
        a("s_memrealtime s[98:99]")
    a("s_waitcnt lgkmcnt(0)")

    def qk_phase(so=0):
        if nocomp:
            a("s_waitcnt lgkmcnt(0)")
            return
        for u in range(2):
            for j in range(6):
                if swz:
                    a(f"ds_read_b128 {vr(vF + 24*u + 4*j, 4)}, v{vKA2 + (j & 1)} offset:{so + 6144*u + 128*(j >> 1)}")
                else:
                    a(f"ds_read_b128 {vr(vF + 24*u + 4*j, 4)}, v{vKA} offset:{so + 6144*u + 64*j}")
        for j in range(6):
            a(f"s_waitcnt lgkmcnt({11 - j})")
            cc = "0" if j == 0 else vr(vS, 4)
            a(f"v_mfma_f32_16x16x32_bf16 {vr(vS,4)}, {vr(vF+4*j,4)}, {vr(vQ+4*j,4)}, {cc}")
        for j in range(6):
            a(f"s_waitcnt lgkmcnt({5 - j})")
            cc = "0" if j == 0 else vr(vS + 4, 4)
            a(f"v_mfma_f32_16x16x32_bf16 {vr(vS+4,4)}, {vr(vF+24+4*j,4)}, {vr(vQ+4*j,4)}, {cc}")

    def round_scores():
        for k in range(4):
            a(f"v_cvt_pk_bf16_f32 v{vP+k}, v{vS+2*k}, v{vS+2*k+1}")
        for k in range(4):
            unpack(vP + k, vS + 2 * k, vS + 2 * k + 1)
        for k in range(8):
            a(f"v_mul_f32 v{vS+k}, s{sSc}, v{vS+k}")
        for k in range(4):
            a(f"v_cvt_pk_bf16_f32 v{vP+k}, v{vS+2*k}, v{vS+2*k+1}")
        for k in range(4):
            unpack(vP + k, vS + 2 * k, vS + 2 * k + 1)

    def exps():
        for k in range(8):
            a(f"v_fma_f32 v{vE+k}, v{vS+k}, s{sLog}, -v{vML}")
        for k in range(8):
            a(f"v_exp_f32 v{vE+k}, v{vE+k}")
        nop(1)
        for k in range(4):
            a(f"v_cvt_pk_bf16_f32 v{vP+k}, v{vE+2*k}, v{vE+2*k+1}")
        for k in range(4):
            a(f"v_add_f32 v{vE+k}, v{vE+k}, v{vE+4+k}")
        a(f"v_add_f32 v{vE}, v{vE}, v{vE+1}")
        a(f"v_add_f32 v{vE+2}, v{vE+2}, v{vE+3}")
        a(f"v_add_f32 v{vE}, v{vE}, v{vE+2}")
        a(f"v_add_f32 v{vL}, v{vL}, v{vE}")

    def softmax_phase():
        if nocomp:
            return
        round_scores()
        a(f"v_max3_f32 v{vT}, v{vS}, v{vS+1}, v{vS+2}")
        a(f"v_max3_f32 v{vT+1}, v{vS+3}, v{vS+4}, v{vS+5}")
        a(f"v_max3_f32 v{vT}, v{vT}, v{vS+6}, v{vS+7}")
        a(f"v_max_f32 v{vT}, v{vT}, v{vT+1}")
        xgroup("v_max_f32", [vT], [vT + 1])
        a(f"v_mul_f32 v{vT}, s{sLog}, v{vT}")
        a(f"v_cmp_gt_f32 vcc, v{vT}, v{vML}")
        skip = g.newlab("keep")
        nop(1)
        a(f"s_cbranch_vccz {skip}")
        a(f"v_sub_f32 v{vT+1}, v{vML}, v{vT}")
        a(f"v_exp_f32 v{vT+1}, v{vT+1}")
        a(f"v_mov_b32 v{vML}, v{vT}")
        a(f"v_mul_f32 v{vL}, v{vL}, v{vT+1}")
        for r in range(0, 48, 4):
            a(f"v_mul_f32 v{vACC+r}, v{vACC+r}, v{vT+1}")
        lab(skip)
        exps()

    def pv_phase(so=CB):
        if nocomp:
            return
        for t in range(12):
            for u in range(2):
                if swz:
                    a(f"ds_read_b64_tr_b16 {vr(vF + 4*t + 2*u, 2)}, v{vVA4 + (t & 3)} offset:{so + 6144*u + 128*(t >> 2)}")
                else:
                    a(f"ds_read_b64_tr_b16 {vr(vF + 4*t + 2*u, 2)}, v{vVA} offset:{so + 6144*u + 32*t}")
            if t >= 6:
                tt = t - 6
                a(f"s_waitcnt lgkmcnt({2*(t - tt)})")
                a(f"v_mfma_f32_16x16x32_bf16 {vr(vACC+4*tt,4)}, {vr(vP,4)}, {vr(vF+4*tt,4)}, {vr(vACC+4*tt,4)}")
        for tt in range(6, 12):
            a(f"s_waitcnt lgkmcnt({2*(11 - tt)})")
            a(f"v_mfma_f32_16x16x32_bf16 {vr(vACC+4*tt,4)}, {vr(vP,4)}, {vr(vF+4*tt,4)}, {vr(vACC+4*tt,4)}")

    sTk, sCa = 96, 97

    def ticket():
        a(f"s_mov_b32 s{sTk}, 1")
        a(f"s_atomic_add s{sTk}, {sr(pWS,2)}, s{sCa} glc")

    def maybe_ticket():
        a(f"s_cmp_lg_u32 s{sLeft}, 0")
        a("s_cbranch_scc1 L_notk")
        if stoplast:
            a(f"s_cmp_ge_u32 s{sTk}, {8*(nblk - 1)}")
            a(f"s_cselect_b32 s{sTk}, {8*nblk}, s{sTk}")
            a("s_cbranch_scc1 L_notk")
        ticket()
        lab("L_notk")

    def decode_ticket(empty):
        a(f"s_mov_b32 s{sT1}, s{sTk}")
        a(f"s_cmp_ge_u32 s{sT1}, {8*nblk}")
        a(f"s_cbranch_scc1 {empty}")
        a(f"s_and_b32 s{sJW}, s{sT1}, 7")
        a(f"s_lshl_b32 s{sJW}, s{sJW}, 2")
        a(f"s_add_u32 s{sJW}, s{sJW}, s{sQ}")
        a(f"s_mul_i32 s{sJW}, s{sJW}, {CB}")
        a(f"s_and_b32 s{sT1}, s{sT1}, 0xf8")
        a(f"s_lshr_b64 {sr(sEx,2)}, {sr(sTabS,2)}, s{sT1}")
        a(f"s_and_b32 s{sRnd}, s{sEx}, 0xff")
        a(f"s_lshr_b64 {sr(sEx,2)}, {sr(sTabN,2)}, s{sT1}")
        a(f"s_and_b32 s{sLeft}, s{sEx}, 0xff")

    def chk_block(back):
        c("once, in wave 3: every head must have been counted before this workgroup reads tail slots")
        lab("L_chk")
        a(f"s_load_dword s{sT1}, {sr(pDBG,2)}, 0x80")
        a(f"s_mov_b32 s{sBound}, {bound}")
        lab("L_chk_poll")
        a("s_waitcnt lgkmcnt(0)")
        a(f"s_cmp_ge_u32 s{sT1}, 32")
        a(f"s_cbranch_scc1 {back}")
        a("s_sleep 32")
        a(f"s_load_dword s{sT1}, {sr(pDBG,2)}, 0x80 glc")
        a(f"s_sub_u32 s{sBound}, s{sBound}, 1")
        a(f"s_cmp_lg_u32 s{sBound}, 0")
        a("s_cbranch_scc1 L_chk_poll")
        a("s_branch L_end")

    assert sched[0] >= 2
    if phased:
        n0 = sched[0]
        assert n0 % 2 == 0 and n0 >= 8 and 64 * n0 <= XOS and chk % 2 == 0 and chk >= 6 and nblk
        vSC, vMx, sPair = vTk, vCa, 99
        c("================ static part, first pass: all scores (two K chunks per trip) ================")
        a(f"s_mul_i32 s{sT0}, s{sW}, {XOS}")
        a(f"s_add_u32 s{sT0}, s{sT0}, {XO}")
        a(f"v_lshl_add_u32 v{vSC}, v{vG}, 4, s{sT0}")
        a(f"v_mov_b32 v{vMx}, 0xff800000")
        a(f"s_mov_b32 s{sPair}, {n0 // 2}")
        a("s_branch L_kfirst")
        chk_block("L_kloop")
        lab("L_kloop")
        a("s_waitcnt vmcnt(12)")
        lab("L_kfirst")
        for h_, (so, m0b) in enumerate(((0, sMK), (CB, sMV))):
            if h_:
                a("s_waitcnt vmcnt(12)")
            qk_phase(so)
            a(f"s_cmp_eq_u32 s{sPair}, 1")
            a(f"s_cbranch_scc1 L_kv{h_}")
            next_off()
            issue_chunk(rK, m0b)
            a(f"s_branch L_kd{h_}")
            lab(f"L_kv{h_}")
            if h_ == 0:
                a(f"s_mov_b32 s{sRnd}, 0")
            next_off()
            issue_chunk(rV, m0b)
            lab(f"L_kd{h_}")
            round_scores()
            exec_n0()
            a(f"ds_write_b128 v{vSC}, {vr(vP,4)} offset:{64*h_}")
            exec_all()
            for k in range(0, 8, 2):
                a(f"v_max3_f32 v{vMx}, v{vMx}, v{vS+k}, v{vS+k+1}")
        a(f"v_add_u32 v{vSC}, 128, v{vSC}")
        a(f"s_sub_u32 s{sPair}, s{sPair}, 1")
        a(f"s_cmp_eq_u32 s{sRnd}, s98")
        a("s_cbranch_scc1 L_chk")
        a(f"s_cmp_lg_u32 s{sPair}, 0")
        a("s_cbranch_scc1 L_kloop")
        stamp("kdone")
        c("================ static part, second pass: V ================")
        xgroup("v_max_f32", [vMx], [vT])
        a(f"v_mul_f32 v{vML}, s{sLog}, v{vMx}")
        a(f"v_subrev_u32 v{vSC}, {64*n0}, v{vSC}")
        a(f"s_mov_b32 s{sPair}, {n0 // 2 - 1}")
        a("s_waitcnt lgkmcnt(0)")

        def prep(off):
            a(f"ds_read_b128 {vr(vP,4)}, v{vSC} offset:{off}")
            a("s_waitcnt lgkmcnt(0)")
            for k in range(4):
                unpack(vP + k, vS + 2 * k, vS + 2 * k + 1)
            exps()
        lab("L_vloop")
        for h_, (so, m0b) in enumerate(((0, sMK), (CB, sMV))):
            prep(64 * h_)
            a("s_waitcnt vmcnt(12)")
            pv_phase(so)
            next_off()
            issue_chunk(rV, m0b)
        a(f"v_add_u32 v{vSC}, 128, v{vSC}")
        a(f"s_sub_u32 s{sPair}, s{sPair}, 1")
        a(f"s_cmp_lg_u32 s{sPair}, 0")
        a("s_cbranch_scc1 L_vloop")
        prep(0)
        ticket()
        a("s_waitcnt vmcnt(12)")
        pv_phase(0)
        decode_ticket("L_vempty")
        next_off()
        issue_chunk(rK, sMK)
        prep(64)
        a("s_waitcnt vmcnt(12)")
        pv_phase(CB)
        issue_chunk(rV, sMV)
        stamp("vdone")
    c("================ shared part: one 32-key chunk per trip, handed out by ticket ================")
    if not phased:
        a("s_branch L_first")
    lab("L_loop")
    if nblk and tkpos == 1:
        maybe_ticket()
    a("s_waitcnt vmcnt(12)")
    if nblk and tkpos == 2:
        maybe_ticket()
    lab("L_first")
    qk_phase()
    a(f"s_cmp_lg_u32 s{sLeft}, 0")
    a("s_cbranch_scc1 L_have")
    if nblk:
        decode_ticket("L_last")
    else:
        a("s_branch L_last")
    lab("L_have")
    next_off()
    issue_chunk(rK, sMK)
    softmax_phase()
    a("s_waitcnt vmcnt(12)")
    pv_phase()
    if nblk and tkpos == 0:
        maybe_ticket()
    issue_chunk(rV, sMV)
    if diag:
        a(f"s_add_u32 s{sCnt}, s{sCnt}, 1")
    if phased:
        assert tkpos != 0
        a("s_branch L_loop")
        lab("L_vempty")
        prep(64)
        a("s_branch L_lastv")
    else:
        a(f"s_cmp_eq_u32 s{sRnd}, s98")
        a("s_cbranch_scc0 L_loop")
        chk_block("L_loop")
    lab("L_last")
    nop(8)
    softmax_phase()
    lab("L_lastv")

    def stash_head():
        a(f"s_mul_i32 s{sT0}, s{sW}, {XOS}")
        a(f"s_add_u32 s{sT0}, s{sT0}, {XO}")
        a(f"v_lshl_add_u32 v{vT+2}, v{vN}, 2, s{sT0}")
        a(f"v_mov_b32 v{vT+1}, s{sT0}")
        xgroup("v_add_f32", [vL], [vT])
        exec_first(16)
        a(f"ds_write_b64 v{vT+1}, {vr(vML,2)} offset:768")
    if hoist:
        stash_head()
        exec_all()
    c("weights of the tail -> LDS WGT, behind the last V chunk")
    if wat == 1 or watf == 1:
        l1, l2 = "L_w1f", "L_w1d"
        a(f"s_cmp_ge_u32 s{sR}, 20")
        a(f"s_cbranch_scc1 {l1}")
        if wat == 1:
            w_loads_wo(range(wo_pre, 12))
        a(f"s_waitcnt vmcnt({12 - wo_pre if wat == 1 else 0})")
        a(f"s_branch {l2}")
        lab(l1)
        if watf == 1:
            w_loads_ffn(range(w1_pre, 5), range(w2_pre, 5))
        a(f"s_waitcnt vmcnt({10 - w1_pre - w2_pre if watf == 1 else 0})")
        lab(l2)
    else:
        a("s_waitcnt vmcnt(0)")
    pv_phase()
    stamp("stream")
    if dbgspan:
        a("s_memrealtime s[100:101]")
        a("s_waitcnt lgkmcnt(0)")
        a(f"v_mov_b32 v{vE}, s96")
        a(f"v_mov_b32 v{vE+1}, s98")
        a(f"v_mov_b32 v{vE+2}, s100")
        a(f"v_mov_b32 v{vE+3}, 0")
        a(f"s_lshl_b32 s{sT0}, s2, 2")
        a(f"s_add_u32 s{sT0}, s{sT0}, s{sW}")
        a(f"s_lshl_b32 s{sT0}, s{sT0}, 4")
        a(f"s_add_u32 s{sT0}, s{sT0}, {ST}")
        exec_first(1)
        a(f"buffer_store_dwordx4 {vr(vE,4)}, v{vDMA}, {sr(rWS,4)}, s{sT0} offen sc1")
        exec_all()
        a("s_waitcnt vmcnt(0)")
    c("---------------- combine the four waves ----------------")

    def pk_scale(dst, w, src, first):
        for r in (0, 2):
            if first:
                a(f"v_pk_mul_f32 {vr(dst+r,2)}, {vr(w,2)}, {vr(src+r,2)} op_sel_hi:[0,1]")
            else:
                a(f"v_pk_fma_f32 {vr(dst+r,2)}, {vr(w,2)}, {vr(src+r,2)}, {vr(dst+r,2)} op_sel_hi:[0,1,1]")

    def pk_sum4(b):
        for r in (0, 2):
            a(f"v_pk_add_f32 {vr(b+r,2)}, {vr(b+r,2)}, {vr(b+4+r,2)}")
            a(f"v_pk_add_f32 {vr(b+8+r,2)}, {vr(b+8+r,2)}, {vr(b+12+r,2)}")
        for r in (0, 2):
            a(f"v_pk_add_f32 {vr(b+r,2)}, {vr(b+r,2)}, {vr(b+8+r,2)}")

    if hoist:
        exec_first(16)
        nop(2)
    else:
        stash_head()
    for t in range(0, 12, 2):
        a(f"ds_write2_b32 v{vT+2}, v{vACC+4*t}, v{vACC+4*t+4} offset0:{16*t} offset1:{16*t+16}")
    exec_all()
    w_loads_at(2)
    a(f"v_mov_b32 v{vT}, 0")
    a(f"s_add_u32 s{sT0}, s{sRow}, {OP}")
    a("s_waitcnt lgkmcnt(0)")
    a("s_barrier")
    a(f"s_cmp_lg_u32 s{sW}, 0")
    a("s_cbranch_scc1 L_pub_done")
    for w in range(4):
        a(f"ds_read_b64 {vr(vE+2*w,2)}, v{vT} offset:{XO + XOS*w + 768}")
    for w in range(4):
        a(f"ds_read_b128 {vr(vF+4*w,4)}, v{vDMA} offset:{XO + XOS*w}")
    a("s_waitcnt lgkmcnt(4)")
    a(f"v_max3_f32 v{vT}, v{vE}, v{vE+2}, v{vE+4}")
    a(f"v_max_f32 v{vT}, v{vT}, v{vE+6}")
    for w in range(4):
        a(f"v_sub_f32 v{vE+2*w}, v{vE+2*w}, v{vT}")
    for w in range(4):
        a(f"v_exp_f32 v{vE+2*w}, v{vE+2*w}")
    a("s_waitcnt lgkmcnt(0)")
    a(f"v_mul_f32 v{vT+1}, v{vE}, v{vE+1}")
    pk_scale(vS, vE, vF, True)
    for w in range(1, 4):
        a(f"v_fmac_f32 v{vT+1}, v{vE+2*w}, v{vE+2*w+1}")
        pk_scale(vS, vE + 2 * w, vF + 4 * w, False)
    a(f"s_bfm_b64 exec, 1, 48")
    a(f"v_mov_b32 v{vS}, v{vT}")
    a(f"v_mov_b32 v{vS+1}, v{vT+1}")
    exec_first(49)
    a(f"v_min_u32 v{vS}, 0xfffffffe, v{vS}")
    a(f"buffer_store_dwordx4 {vr(vS,4)}, v{vDMA}, {sr(rWS,4)}, s{sT0} offen sc1")
    exec_all()
    lab("L_pub_done")
    if pubbar:
        a("s_barrier")
    stamp("opub")
    w_loads_at(3)
    a(f"s_cmp_ge_u32 s{sR}, 20")
    a("s_cbranch_scc1 L_ffn")

    c("================ output projection role: heads 4m..4m+3, columns 32r..32r+31 ================")
    vWf = vACC
    a(f"s_mul_i32 s{sT0}, s{sW}, 12288")
    a(f"s_add_u32 s{sT0}, s{sT0}, {WGT}")
    vWb = vT + 9
    a(f"v_lshl_add_u32 v{vWb}, v{vTR0}, 6, v{vTR1}")
    a(f"v_add_u32 v{vWb}, s{sT0}, v{vWb}")
    a(f"s_lshl_b32 s{sT1}, s{sM}, 2")
    a(f"s_add_u32 s{sT1}, s{sT1}, s{sW}")
    a(f"s_lshl_b32 s{sT1}, s{sT1}, 13")
    a(f"s_add_u32 s{sT1}, s{sT1}, {OP}")
    a(f"s_add_u32 s{sT2}, s{sT1}, 4096")
    a(f"v_mov_b32 v{vT+4}, 768")
    a(f"s_lshl_b32 s{sT0}, s{sW}, 9")
    a(f"s_add_u32 s{sT0}, s{sT0}, {OV}")
    a(f"v_lshl_add_u32 v{vT+6}, v{vLane}, 3, s{sT0}")
    a(f"v_lshl_add_u32 v{vT+7}, v{vG}, 3, s{sT0}")
    a(f"s_lshl_b32 s{sT0}, s{sW}, 7")
    a(f"s_add_u32 s{sT0}, s{sT0}, {XY}")
    a(f"v_lshl_add_u32 v{vT+8}, v{vG}, 4, s{sT0}")
    a(f"s_mul_i32 s{sT0}, s{sM}, 2560")
    a(f"s_lshl_b32 s{sT3}, s{sR}, 7")
    a(f"s_add_u32 s{sT0}, s{sT0}, s{sT3}")
    a(f"s_add_u32 s{sT0}, s{sT0}, {YP}")
    vO, vMLs = vF, vF + 32
    def preread(blocks):
        for t in range(2):
            for b in blocks:
                a(f"ds_read_b64_tr_b16 {vr(vWf + 24*t + 2*b, 2)}, v{vWb} offset:{1024*b + 32*t}")
            if len(blocks) > 6:
                a("s_waitcnt lgkmcnt(0)")
    if reord:
        preread(range(wo_pre))
    else:
        if wo_pre < 12:
            a("s_waitcnt vmcnt(0)")
        stamp("wland")
        preread(range(12))
    vGA = vDMA
    if bc:
        vGA = vT + 6
        a(f"v_lshlrev_b32 v{vGA}, 4, v{vG}")
        a(f"v_lshl_add_u32 v{vGA}, v{vN}, 6, v{vGA}")

    def exec_blk(n):
        a(f"s_mov_b32 exec_lo, {((1 << n) - 1) * 0x10001:#x}")
        a(f"s_mov_b32 exec_hi, {((1 << n) - 1) * 0x10001:#x}")

    def exec_ga():
        exec_blk(12) if bc else exec_first(48)
    exec_ga()

    def aloads():
        for m in range(8):
            so = sT1 if m < 4 else sT2
            a(f"buffer_load_dwordx2 {vr(vMLs+2*m,2)}, v{vT+4}, {sr(rWS,4)}, s{so} offen offset:{1024*(m%4)} sc1")
            a(f"buffer_load_dwordx4 {vr(vO+4*m,4)}, v{vGA}, {sr(rWS,4)}, s{so} offen offset:{1024*(m%4)} sc1")
    poll(aloads, [vO + 4 * m for m in range(8)] + [vMLs + 2 * m for m in range(8)], vT + 5)
    stamp("hopA")
    if reord and wo_pre < 12:
        exec_all()
        preread(range(wo_pre, 12))
        exec_ga()
    a(f"v_max3_f32 v{vT}, v{vMLs}, v{vMLs+2}, v{vMLs+4}")
    a(f"v_max3_f32 v{vT+1}, v{vMLs+6}, v{vMLs+8}, v{vMLs+10}")
    a(f"v_max3_f32 v{vT}, v{vT}, v{vMLs+12}, v{vMLs+14}")
    a(f"v_max_f32 v{vT}, v{vT}, v{vT+1}")
    for m in range(8):
        a(f"v_sub_f32 v{vMLs+2*m}, v{vMLs+2*m}, v{vT}")
    for m in range(8):
        a(f"v_exp_f32 v{vMLs+2*m}, v{vMLs+2*m}")
    a(f"v_mul_f32 v{vT+2}, v{vMLs}, v{vMLs+1}")
    for m in range(1, 8):
        a(f"v_fmac_f32 v{vT+2}, v{vMLs+2*m}, v{vMLs+2*m+1}")
    a(f"v_rcp_f32 v{vT+2}, v{vT+2}")
    for m in range(8):
        pk_scale(vS, vMLs + 2 * m, vO + 4 * m, m == 0)
    pk_scale(vS, vT + 2, vS, True)
    if bc:
        a(f"v_cvt_pk_bf16_f32 v{vP}, v{vS}, v{vS+1}")
        a(f"v_cvt_pk_bf16_f32 v{vP+1}, v{vS+2}, v{vS+3}")
        exec_all()
        a("s_waitcnt lgkmcnt(0)")

        def bcast(j):
            for b in (2 * j, 2 * j + 1):
                for k in range(2):
                    a(f"v_mov_b32_dpp v{vQ+2*b+k}, v{vP+k} row_newbcast:{b} row_mask:0xf bank_mask:0xf")
        bcast(0)
        for j in range(6):
            if j < 5:
                bcast(j + 1)
            else:
                nop(1)
            for t in range(2):
                cc = "0" if j == 0 else vr(vS + 4 * t, 4)
                a(f"v_mfma_f32_16x16x32_bf16 {vr(vS+4*t,4)}, {vr(vWf+24*t+4*j,4)}, {vr(vQ+4*j,4)}, {cc}")
    else:
        a(f"v_cvt_pk_bf16_f32 v{vS}, v{vS}, v{vS+1}")
        a(f"v_cvt_pk_bf16_f32 v{vS+1}, v{vS+2}, v{vS+3}")
        a(f"ds_write_b64 v{vT+6}, {vr(vS,2)}")
        exec_all()
        a("s_waitcnt lgkmcnt(0)")
        for b in range(12):
            a(f"ds_read_b64 {vr(vQ+2*b,2)}, v{vT+7} offset:{32*b}")
        for j in range(6):
            a(f"s_waitcnt lgkmcnt({10 - 2*j})")
            for t in range(2):
                cc = "0" if j == 0 else vr(vS + 4 * t, 4)
                a(f"v_mfma_f32_16x16x32_bf16 {vr(vS+4*t,4)}, {vr(vWf+24*t+4*j,4)}, {vr(vQ+4*j,4)}, {cc}")
    exec_n0()
    nop(5)
    for t in range(2):
        a(f"ds_write_b128 v{vT+8}, {vr(vS+4*t,4)} offset:{64*t}")
        if t == 0:
            pass
    exec_first(8)
    a("s_waitcnt lgkmcnt(0)")
    a("s_barrier")
    a(f"s_cmp_lg_u32 s{sW}, 0")
    a("s_cbranch_scc1 L_fin")
    for w in range(4):
        a(f"ds_read_b128 {vr(vF+4*w,4)}, v{vDMA} offset:{XY + 128*w}")
    a("s_waitcnt lgkmcnt(0)")
    pk_sum4(vF)
    a(f"v_min_u32 v{vF}, 0xfffffffe, v{vF}")
    a(f"buffer_store_dwordx4 {vr(vF,4)}, v{vDMA}, {sr(rWS,4)}, s{sT0} offen sc1")
    a("s_branch L_fin")

    c("================ FFN role: hidden columns 16f..16f+15 ================")
    lab("L_ffn")
    vW1, vW2, vCs, vMk2, vXU = vACC, vACC + 20, vACC + 40, vU + 18, vACC + 44
    a(f"s_mul_i32 s{sT0}, s{sW}, 5120")
    a(f"s_add_u32 s{sT0}, s{sT0}, {WGT}")
    a(f"v_lshl_add_u32 v{vT}, v{vLane}, 3, s{sT0}")
    for t in range(10):
        a(f"v_cmp_eq_u32 vcc, {4*(t % 4) + t // 4 if fplin else t}, v{vN}")
        nop(2)
        a(f"v_cndmask_b32 v{vMk2+t}, 0, -1, vcc")
    a("s_waitcnt vmcnt(0)")
    stamp("wland")
    for b in range(10):
        a(f"ds_read_b64_tr_b16 {vr(vW1+2*b,2)}, v{vT} offset:{512*b}")
    a(f"v_mul_u32_u24 v{vT+1}, 1280, v{vTR0}")
    a(f"s_mul_i32 s{sT0}, s{sW}, 320")
    a(f"s_add_u32 s{sT1}, s{sT0}, {WGT + 20480}")
    a(f"v_add3_u32 v{vT+1}, v{vT+1}, v{vTR1}, s{sT1}")
    for r in range(4):
        a(f"v_mov_b32 v{vE+r}, 0x3f803f80")
    a(f"v_lshlrev_b32 v{vT+6}, 4, v{vG}")
    a(f"s_lshl_b32 s{sT2}, s{sW}, 6")
    a(f"v_add_u32 v{vT+7}, s{sT2}, v{vT+6}")
    a("s_waitcnt lgkmcnt(0)")
    c("column sums of this w1 slice (layernorm's mean is applied after the product)")
    for j in range(5):
        cc = "0" if j == 0 else vr(vS, 4)
        a(f"v_mfma_f32_16x16x32_bf16 {vr(vS,4)}, {vr(vW1+4*j,4)}, {vr(vE,4)}, {cc}")
    nop(8)
    exec_n0()
    a(f"ds_write_b128 v{vT+7}, {vr(vS,4)} offset:{XC}")
    exec_all()
    a("s_waitcnt lgkmcnt(0)")
    a("s_barrier")
    for w in range(4):
        a(f"ds_read_b128 {vr(vF+4*w,4)}, v{vT+6} offset:{XC + 64*w}")
    for t in range(10):
        a(f"ds_read_b64_tr_b16 {vr(vW2+2*t,2)}, v{vT+1} offset:{32*t}")
    unpack(vXF, vXU, vXU + 1)
    unpack(vXF + 1, vXU + 2, vXU + 3)
    a(f"v_lshl_add_u32 v{vT+4}, v{vLane}, 3, s{sT0}")
    a(f"v_lshl_add_u32 v{vT+5}, v{vG}, 3, s{sT0}")
    if bc:
        a(f"v_lshl_add_u32 v{vT+4}, v{vN}, 5, v{vT+5}")
    a(f"s_lshl_b32 s{sT2}, s{sW}, 3")
    a(f"v_mov_b32 v{vT+8}, s{sT2}")
    a(f"v_lshl_add_u32 v{vT+9}, v{vN}, 6, v{vT+6}")
    a("s_waitcnt lgkmcnt(0)")
    pk_sum4(vF)
    for r in range(4):
        a(f"v_mov_b32 v{vCs+r}, v{vF+r}")
    a(f"s_mul_i32 s{sT1}, s{sW}, 640")
    a(f"s_mul_i32 s{sT0}, s{sF}, 2560")
    a(f"s_add_u32 s{sT0}, s{sT0}, s{sT1}")
    a(f"s_add_u32 s{sT0}, s{sT0}, {FP}")
    a(f"s_add_u32 s{sT1}, s{sT1}, {YP}")
    for k in range(1, 4):
        a(f"s_add_u32 s{sEx if k == 3 else sT1 + k}, s{sT1}, {5120*k}")
    ybase = [sT1, sT2, sT3, sEx]
    a(f"v_mov_b32 v{vS+4}, 0")
    a(f"v_mov_b32 v{vS+5}, 0")
    exec_blk(10) if bc else exec_first(40)

    def bloads():
        for m in range(8):
            a(f"buffer_load_dwordx4 {vr(vF+4*m,4)}, v{vT+9 if bc else vDMA}, {sr(rWS,4)}, s{ybase[m//2]} offen offset:{2560*(m%2)} sc1")
    poll(bloads, [vF + 4 * m for m in range(8)], vT + 3)
    stamp("hopB")
    pk_sum4(vF)
    pk_sum4(vF + 16)
    for r in (0, 2):
        a(f"v_pk_add_f32 {vr(vF+r,2)}, {vr(vF+r,2)}, {vr(vF+16+r,2)}")
    a(f"v_cvt_pk_bf16_f32 v{vF+4}, v{vF}, v{vF+1}")
    a(f"v_cvt_pk_bf16_f32 v{vF+5}, v{vF+2}, v{vF+3}")
    unpack(vF + 4, vF, vF + 1)
    unpack(vF + 5, vF + 2, vF + 3)
    for r in (0, 2):
        a(f"v_pk_add_f32 {vr(vF+r,2)}, {vr(vF+r,2)}, {vr(vXU+r,2)}")
    vH = vP
    a(f"v_cvt_pk_bf16_f32 v{vH}, v{vF}, v{vF+1}")
    a(f"v_cvt_pk_bf16_f32 v{vH+1}, v{vF+2}, v{vF+3}")
    a(f"ds_write_b64 v{vT+4}, {vr(vH,2)} offset:{HV}")
    unpack(vH, vF, vF + 1)
    unpack(vH + 1, vF + 2, vF + 3)
    a(f"v_pk_add_f32 {vr(vF+4,2)}, {vr(vF,2)}, {vr(vF+2,2)}")
    a(f"v_pk_mul_f32 {vr(vF,2)}, {vr(vF,2)}, {vr(vF,2)}")
    a(f"v_pk_fma_f32 {vr(vF,2)}, {vr(vF+2,2)}, {vr(vF+2,2)}, {vr(vF,2)}")
    a(f"v_add_f32 v{vS+4}, v{vF+4}, v{vF+5}")
    a(f"v_add_f32 v{vS+5}, v{vF}, v{vF+1}")
    if bc:
        exec_all()

        def bch(j):
            for b in (2 * j, 2 * j + 1):
                for k in range(2):
                    a(f"v_mov_b32_dpp v{vQ+2*b+k}, v{vH+k} row_newbcast:{b} row_mask:0xf bank_mask:0xf")
        bch(0)
        for k in range(5):
            if k < 4:
                bch(k + 1)
                for r in (vS + 4, vS + 5):
                    a(f"v_add_f32_dpp v{r}, v{r}, v{r} row_ror:{(8, 4, 2, 1)[k]} row_mask:0xf bank_mask:0xf")
            cc = "0" if k == 0 else vr(vS, 4)
            a(f"v_mfma_f32_16x16x32_bf16 {vr(vS,4)}, {vr(vW1+4*k,4)}, {vr(vQ+4*k,4)}, {cc}")
    else:
        exec_all()
        a("s_waitcnt lgkmcnt(0)")
        for b in range(10):
            a(f"ds_read_b64 {vr(vQ+2*b,2)}, v{vT+5} offset:{HV + 32*b}")
        for k, rr in enumerate((8, 4, 2, 1)):
            for r in (vS + 4, vS + 5):
                a(f"v_add_f32_dpp v{r}, v{r}, v{r} row_ror:{rr} row_mask:0xf bank_mask:0xf")
            a(f"s_waitcnt lgkmcnt({8 - 2*k})")
            cc = "0" if k == 0 else vr(vS, 4)
            a(f"v_mfma_f32_16x16x32_bf16 {vr(vS,4)}, {vr(vW1+4*k,4)}, {vr(vQ+4*k,4)}, {cc}")
        a("s_waitcnt lgkmcnt(0)")
        a(f"v_mfma_f32_16x16x32_bf16 {vr(vS,4)}, {vr(vW1+16,4)}, {vr(vQ+16,4)}, {vr(vS,4)}")
    c("fold the four lane groups: lanes 0..31 end with the sum, lanes 32..63 with the sum of squares")
    a(f"v_permlane32_swap_b32 v{vS+4}, v{vS+5}")
    a(f"v_add_f32 v{vS+4}, v{vS+4}, v{vS+5}")
    a(f"v_mov_b32 v{vS+5}, v{vS+4}")
    a(f"v_lshrrev_b32 v{vT+3}, 5, v{vLane}")
    a(f"v_lshl_add_u32 v{vT+3}, v{vT+3}, 2, v{vT+8}")
    a(f"v_permlane16_swap_b32 v{vS+4}, v{vS+5}")
    a(f"v_add_f32 v{vS+4}, v{vS+4}, v{vS+5}")
    exec_n0()
    a(f"ds_write_b32 v{vT+3}, v{vS+4} offset:{XS}")
    a(f"ds_write_b128 v{vT+7}, {vr(vS,4)} offset:{XH}")
    exec_all()
    a(f"v_mov_b32 v{vT}, 0")
    a("s_waitcnt lgkmcnt(0)")
    a("s_barrier")
    a(f"ds_read_b128 {vr(vE,4)}, v{vT} offset:{XS}")
    a(f"ds_read_b128 {vr(vE+4,4)}, v{vT} offset:{XS+16}")
    for w in range(4):
        a(f"ds_read_b128 {vr(vF+4*w,4)}, v{vT+6} offset:{XH + 64*w}")
    a("s_waitcnt lgkmcnt(4)")
    a(f"v_pk_add_f32 {vr(vE,2)}, {vr(vE,2)}, {vr(vE+2,2)}")
    a(f"v_pk_add_f32 {vr(vE+4,2)}, {vr(vE+4,2)}, {vr(vE+6,2)}")
    a(f"v_pk_add_f32 {vr(vE,2)}, {vr(vE,2)}, {vr(vE+4,2)}")
    a(f"v_mul_f32 v{vMean}, {R640:#x}, v{vE}")
    a(f"v_mul_f32 v{vVar}, {R640:#x}, v{vE+1}")
    a(f"v_fma_f32 v{vVar}, -v{vMean}, v{vMean}, v{vVar}")
    a(f"v_max_f32 v{vVar}, 0, v{vVar}")
    a(f"v_cvt_pk_bf16_f32 v{vT+3}, v{vMean}, v{vVar}")
    unpack(vT + 3, vMean, vVar)
    a(f"v_add_f32 v{vVar}, {EPS:#x}, v{vVar}")
    round_bf16(vVar, vT + 3)
    a(f"v_sqrt_f32 v{vVar}, v{vVar}")
    a("s_waitcnt lgkmcnt(0)")
    pk_sum4(vF)
    round_bf16(vVar, vT + 3)
    a(f"v_rcp_f32 v{vRcp}, v{vVar}")
    for r in (0, 2):
        a(f"v_pk_fma_f32 {vr(vF+r,2)}, {vr(vMean,2)}, {vr(vCs+r,2)}, {vr(vF+r,2)} op_sel_hi:[0,1,1] neg_lo:[1,0,0] neg_hi:[1,0,0]")
    pk_scale(vF, vRcp, vF, True)
    for r in range(4):
        a(f"v_max_f32 v{vF+r}, 0, v{vF+r}")
    a(f"v_cvt_pk_bf16_f32 v{vF+4}, v{vF}, v{vF+1}")
    a(f"v_cvt_pk_bf16_f32 v{vF+5}, v{vF+2}, v{vF+3}")
    c("tile t of w2 lands in result column n = t: operand is hidden where n == t, else 0")
    for u in range(5):
        for t in (2 * u, 2 * u + 1):
            a(f"v_and_b32 v{vQ+2*t}, v{vF+4}, v{vMk2+t}")
            a(f"v_and_b32 v{vQ+2*t+1}, v{vF+5}, v{vMk2+t}")
        if u:
            cc = "0" if u == 1 else vr(vS, 4)
            ops = (vr(vQ + 4 * (u - 1), 4), vr(vW2 + 4 * (u - 1), 4))
            a(f"v_mfma_f32_16x16x32_bf16 {vr(vS,4)}, {ops[0 if fplin else 1]}, {ops[1 if fplin else 0]}, {cc}")
    nop(1)
    if fplin:
        a(f"v_mfma_f32_16x16x32_bf16 {vr(vS,4)}, {vr(vQ+16,4)}, {vr(vW2+16,4)}, {vr(vS,4)}")
        a(f"v_lshlrev_b32 v{vT+9}, 2, v{vLane}")
        nop(7)
        for r in range(3):
            a(f"v_min_u32 v{vS+r}, 0xfffffffe, v{vS+r}")
        for r in range(3):
            if r == 2:
                exec_first(32)
            a(f"buffer_store_dword v{vS+r}, v{vT+9}, {sr(rWS,4)}, s{sT0} offen offset:{256*r} sc1")
    else:
        a(f"v_mfma_f32_16x16x32_bf16 {vr(vS,4)}, {vr(vW2+16,4)}, {vr(vQ+16,4)}, {vr(vS,4)}")
        a("s_mov_b32 exec_lo, 0x03ff03ff")
        a("s_mov_b32 exec_hi, 0x03ff03ff")
        nop(6)
        a(f"v_min_u32 v{vS}, 0xfffffffe, v{vS}")
        a(f"buffer_store_dwordx4 {vr(vS,4)}, v{vT+9}, {sr(rWS,4)}, s{sT0} offen sc1")
    exec_all()
    c("---------------- final reduction: workgroups with e = 3m + (r-20) < 20, r < 23 ----------------")
    a(f"s_cmp_ge_u32 s{sR}, 23")
    a("s_cbranch_scc1 L_fin")
    a(f"s_mul_i32 s{sF}, s{sM}, 3")
    a(f"s_add_u32 s{sF}, s{sF}, s{sR}")
    a(f"s_sub_u32 s{sF}, s{sF}, 20")
    a(f"s_cmp_ge_u32 s{sF}, 20")
    a("s_cbranch_scc1 L_fin")
    a(f"v_lshrrev_b32 v{vT}, 3, v{vLane}")
    a(f"v_mul_u32_u24 v{vT}, 2560, v{vT}")
    a(f"v_and_b32 v{vT+1}, 7, v{vLane}")
    a(f"v_lshl_add_u32 v{vT}, v{vT+1}, 4, v{vT}")
    a(f"s_mul_i32 s{sT1}, s{sW}, {24*2560}")
    a(f"s_lshl_b32 s{sT2}, s{sF}, 7")
    a(f"s_add_u32 s{sT1}, s{sT1}, s{sT2}")
    a(f"s_add_u32 s{sT1}, s{sT1}, {FP}")
    a(f"s_add_u32 s{sT2}, s{sT1}, {8*2560}")
    a(f"s_add_u32 s{sT3}, s{sT1}, {16*2560}")
    srd(rOUT, pOUT, 1280)
    a(f"v_lshrrev_b32 v{vT+2}, 1, v{vG}")
    a(f"v_and_b32 v{vT+3}, 1, v{vG}")
    a(f"v_lshl_add_u32 v{vT+2}, v{vT+3}, 1, v{vT+2}")
    a(f"v_lshl_add_u32 v{vT+2}, v{vT+1}, 2, v{vT+2}")
    a(f"s_lshl_b32 s{sT0}, s{sW}, 7")
    a(f"v_lshl_add_u32 v{vT+2}, v{vT+2}, 2, s{sT0}")
    a(f"v_lshlrev_b32 v{vT+3}, 2, v{vLane}")
    a(f"s_lshl_b32 s{sT0}, s{sF}, 6")
    a(f"v_lshl_add_u32 v{vT+4}, v{vLane}, 1, s{sT0}")
    a(f"ds_read_u16 v{vE}, v{vT+4} offset:{HV}")

    def cloads():
        for k, so in enumerate((sT1, sT2, sT3)):
            a(f"buffer_load_dwordx4 {vr(vF+4*k,4)}, v{vT}, {sr(rWS,4)}, s{so} offen sc1")
    stamp("fpub")
    poll(cloads, range(vF, vF + 12) if fplin else [vF, vF + 4, vF + 8], vT + 5)
    stamp("hopC")
    for r in (0, 2):
        a(f"v_pk_add_f32 {vr(vF+r,2)}, {vr(vF+r,2)}, {vr(vF+4+r,2)}")
    for r in (0, 2):
        a(f"v_pk_add_f32 {vr(vF+r,2)}, {vr(vF+r,2)}, {vr(vF+8+r,2)}")
    nop(1)
    a(f"v_permlane32_swap_b32 v{vF}, v{vF+1}")
    a(f"v_permlane32_swap_b32 v{vF+2}, v{vF+3}")
    a(f"v_add_f32 v{vF}, v{vF}, v{vF+1}")
    a(f"v_add_f32 v{vF+2}, v{vF+2}, v{vF+3}")
    nop(2)
    a(f"v_permlane16_swap_b32 v{vF}, v{vF+2}")
    a(f"v_add_f32 v{vF}, v{vF}, v{vF+2}")
    nop(2)
    a(f"v_add_f32_dpp v{vF}, v{vF}, v{vF} row_ror:8 row_mask:0xf bank_mask:0xf")
    a(f"ds_write_b32 v{vT+2}, v{vF} offset:{XF}")
    exec_first(32)
    a("s_waitcnt lgkmcnt(0)")
    a("s_barrier")
    a(f"s_cmp_lg_u32 s{sW}, 0")
    a("s_cbranch_scc1 L_fin")
    for w in range(4):
        a(f"ds_read_b32 v{vF+w}, v{vT+3} offset:{XF + 128*w}")
    a(f"v_lshlrev_b32 v{vE}, 16, v{vE}")
    a("s_waitcnt lgkmcnt(0)")
    a(f"v_pk_add_f32 {vr(vF,2)}, {vr(vF,2)}, {vr(vF+2,2)}")
    a(f"v_add_f32 v{vF}, v{vF}, v{vF+1}")
    round_bf16(vF, vF + 1)
    a(f"v_add_f32 v{vF}, v{vF}, v{vE}")
    if perturb:
        a(f"s_cmp_eq_u32 s{sF}, 0")
        a(f"s_cselect_b32 s{sT0}, {perturb:#x}, 0")
        a(f"v_add_f32 v{vF}, s{sT0}, v{vF}")
    a(f"v_cvt_pk_bf16_f32 v{vF}, v{vF}, v{vF}")
    a(f"buffer_store_short v{vF}, v{vT+4}, {sr(rOUT,4)}, 0 offen")
    exec_all()
    if dbgspan:
        a(f"s_cmp_lg_u32 s{sF}, 0")
        a("s_cbranch_scc1 L_fin")
        a("s_waitcnt vmcnt(0)")
        a("s_memrealtime s[96:97]")
        srd(rDBG, pDBG, 256)
        for k in range(16):
            a(f"s_mov_b32 s{sT0}, {ST + 1024*k}")
            a(f"buffer_load_dwordx4 {vr(vACC+4*(k%12) if k < 12 else vF + 4*(k-12),4)}, v{vDMA}, {sr(rWS,4)}, s{sT0} offen sc1")
        a("s_waitcnt vmcnt(0) lgkmcnt(0)")
        regs = [vACC + 4*k for k in range(12)] + [vF + 4*k for k in range(4)]
        a(f"v_mov_b32 v{vE}, v{regs[0]}")
        a(f"v_mov_b32 v{vE+1}, v{regs[0]}")
        a(f"v_mov_b32 v{vE+2}, v{regs[0]+1}")
        a(f"v_mov_b32 v{vE+3}, v{regs[0]+2}")
        a(f"v_mov_b32 v{vE+4}, v{regs[0]+2}")
        for r in regs[1:]:
            a(f"v_min_u32 v{vE}, v{vE}, v{r}")
            a(f"v_max_u32 v{vE+1}, v{vE+1}, v{r}")
            a(f"v_max_u32 v{vE+2}, v{vE+2}, v{r+1}")
            a(f"v_min_u32 v{vE+3}, v{vE+3}, v{r+2}")
            a(f"v_max_u32 v{vE+4}, v{vE+4}, v{r+2}")
        allreduce("v_min_u32", [vE, vE+3], [vT, vT+1])
        allreduce("v_max_u32", [vE+1, vE+2, vE+4], [vT, vT+1, vT+2])
        a(f"v_mov_b32 v{vE+5}, s96")
        for k in range(1, 6):
            a(f"v_sub_u32 v{vE+k}, v{vE+k}, v{vE}")
        exec_first(1)
        a(f"buffer_store_dwordx4 {vr(vE+2,4)}, v{vDMA}, {sr(rDBG,4)}, 0 offen")
        a(f"buffer_store_dword v{vE+1}, v{vDMA}, {sr(rDBG,4)}, 0 offen offset:16")
        exec_all()
    lab("L_fin")
    if diag:
        exec_all()
        a("s_waitcnt vmcnt(0)")
        stamp("end")
        a("s_getreg_b32 s3, hwreg(HW_REG_XCC_ID)")
        a(f"v_writelane_b32 v{vSt}, s3, 30")
        a(f"v_writelane_b32 v{vSt}, s{sCnt}, 31")
        a(f"s_lshl_b32 s{sT0}, s2, 2")
        a(f"s_add_u32 s{sT0}, s{sT0}, s{sW}")
        a(f"s_lshl_b32 s{sT0}, s{sT0}, 7")
        a(f"s_add_u32 s{sT0}, s{sT0}, {ST}")
        a(f"v_lshlrev_b32 v{vT+1}, 2, v{vLane}")
        exec_first(32)
        a(f"buffer_store_dword v{vSt}, v{vT+1}, {sr(rWS,4)}, s{sT0} offen")
    lab("L_end")
    a("s_endpgm")

    out = [HEADER + f"; @launch grid=(256,1,1) block=(256,1,1) lds={LDS_BYTES}",
           '.amdgcn_target "amdgcn-amd-amdhsa--gfx950"', ".text", f".globl {name}", ".p2align 8",
           f".type {name},@function", f"{name}:"]
    out += g.L
    out += ['.section .rodata,"a"', ".p2align 6", f".amdhsa_kernel {name}",
            f"  .amdhsa_next_free_vgpr {NV}", "  .amdhsa_next_free_sgpr 102", f"  .amdhsa_accum_offset {NV}",
            "  .amdhsa_group_segment_fixed_size 0", "  .amdhsa_kernarg_size 88", "  .amdhsa_user_sgpr_count 2",
            "  .amdhsa_user_sgpr_kernarg_segment_ptr 1", "  .amdhsa_system_sgpr_workgroup_id_x 1",
            "  .amdhsa_float_denorm_mode_32 3",
            ".end_amdhsa_kernel"]
    return "\n".join(out) + "\n"


if __name__ == "__main__":
    kw = json.loads(sys.argv[1]) if len(sys.argv) > 1 else {}
    sys.stdout.write(gen(**kw))
```
